```python
import torch

def _softmax(x, axis=-1):
    return torch.softmax(x, dim=axis)
def _gelu(x):
    return torch.nn.functional.gelu(x, approximate="tanh")
def _silu(x):
    return torch.nn.functional.silu(x)
def _sigmoid(x):
    return torch.sigmoid(x)
def _layernorm(x, axis=-1, eps=1e-5):
    m = x.mean(dim=axis, keepdim=True)
    v = x.var(dim=axis, keepdim=True, unbiased=False)
    return (x - m) / torch.sqrt(v + eps)
def _scatter_add(tgt, idx, src, axis=0):
    return tgt.clone().index_add_(axis, idx, src)
def _segment_sum(src, seg, n):
    out = torch.zeros((n,) + src.shape[1:], dtype=src.dtype)
    return out.index_add_(0, seg, src)
def _pad(x, pw):
    flat = tuple(v for pair in reversed(pw) for v in pair)
    return torch.nn.functional.pad(x, flat)

kernel_name = 'parallel_sum__spectral_gfnet__glu_gated_bilinear__prompt'

def setup_inputs():

    _w = (lambda a: (lambda t: t.to(torch.bfloat16) if t.is_floating_point() else t)(torch.as_tensor(a)))
    def _A_setup():
        B, S, D = 1, 2048, 448
        Df = D // 2 + 1
        return {
            "x": _w((lambda *s: torch.randn(*s, dtype=torch.bfloat16) * 0.05)(B, S, D)),
            "w_r": _w((lambda *s: torch.randn(*s, dtype=torch.bfloat16) * 0.4)(S, Df) * 0.02),
            "w_i": _w((lambda *s: torch.randn(*s, dtype=torch.bfloat16) * 0.4)(S, Df) * 0.02),
        }
    _A_in = _A_setup()

    def _B_setup():
        B, S, D, F = 1, 2048, 448, 1792
        return {
            "x": _w((lambda *s: torch.randn(*s, dtype=torch.bfloat16) * 0.05)(B, S, D)),
            "w_gate": _w((lambda *s: torch.randn(*s, dtype=torch.bfloat16) * 0.2)(D, F) * (D ** -0.5)),
            "w_up": _w((lambda *s: torch.randn(*s, dtype=torch.bfloat16) * 0.2)(D, F) * (D ** -0.5)),
            "w_down": _w((lambda *s: torch.randn(*s, dtype=torch.bfloat16) * 0.2)(F, D) * (F ** -0.5)),
        }
    _B_in = _B_setup()

    return {
        "A_x": _A_in["x"],
        "A_w_r": _A_in["w_r"],
        "A_w_i": _A_in["w_i"],
        "B_x": _B_in["x"],
        "B_w_gate": _B_in["w_gate"],
        "B_w_up": _B_in["w_up"],
        "B_w_down": _B_in["w_down"],
    }

def reference(A_x, A_w_r, A_w_i, B_x, B_w_gate, B_w_up, B_w_down):
    def _A_ref(x, w_r, w_i):
        B, S, D = x.shape
        X = (lambda x, axes=(-2,-1): torch.fft.rfft2(x.float(), dim=axes))(x, axes=(-2, -1))
        W = w_r + 1j * w_i
        X = X * W
        y = (lambda x, s, axes=(-2,-1): torch.fft.irfft2(x, s=s, dim=axes).to(torch.bfloat16))(X, (S, D), axes=(-2, -1))
        return y

    def _B_ref(x, w_gate, w_up, w_down):
        g = torch.einsum("bsd,df->bsf", x, w_gate)
        u = torch.einsum("bsd,df->bsf", x, w_up)
        h = g * u
        return torch.einsum("bsf,fd->bsd", h, w_down)

    x = A_x
    xn = _layernorm(x, axis=-1)
    return x + _A_ref(xn, A_w_r, A_w_i) + _B_ref(xn, B_w_gate, B_w_up, B_w_down)
```

```python
class Asm:
    def __init__(self):
        self.lines = []
        self.launch = []
        self.kernels = []
        self._lab = 0
    def e(self, s=""):
        for l in s.split("\n"):
            self.lines.append("    " + l.strip() if l.strip() and not l.strip().endswith(":") else l.strip())
    def label(self, base="L"):
        self._lab += 1
        return f"{base}_{self._lab}"
    def begin_kernel(self, name):
        self.lines.append(f".globl {name}\n.p2align 8\n.type {name},@function\n{name}:")
    def end_kernel(self, name, vgpr, sgpr=96, accum=None, grid=None, block=None, lds=0):
        if accum is None:
            accum = (min(vgpr, 256) + 3) // 4 * 4
        self.kernels.append((name, vgpr, sgpr, accum))
    def add_launch(self, name, grid, block, lds=0):
        self.launch.append(f"; @launch kernel={name} grid=({grid},1,1) block=({block},1,1) lds={lds}")
    def srd(self, d, base, nbytes, off=0):
        if off:
            self.e(f"s_add_u32 s{d}, s{base}, {off:#x}")
            self.e(f"s_addc_u32 s{d+1}, s{base+1}, 0")
        else:
            self.e(f"s_mov_b32 s{d}, s{base}")
            self.e(f"s_mov_b32 s{d+1}, s{base+1}")
        self.e(f"s_mov_b32 s{d+2}, {nbytes:#x}")
        self.e(f"s_mov_b32 s{d+3}, 0x20000")
    def text(self, header=""):
        out = [header] if header else []
        out += self.launch
        out.append('.amdgcn_target "amdgcn-amd-amdhsa--gfx950"')
        out.append(".text")
        out += self.lines
        out.append('.section .rodata,"a"')
        for name, vgpr, sgpr, accum in self.kernels:
            out.append(".p2align 6")
            out.append(f""".amdhsa_kernel {name}
  .amdhsa_next_free_vgpr {vgpr}
  .amdhsa_next_free_sgpr {sgpr}
  .amdhsa_accum_offset {accum}
  .amdhsa_group_segment_fixed_size 0
  .amdhsa_kernarg_size 80
  .amdhsa_user_sgpr_count 2
  .amdhsa_user_sgpr_kernarg_segment_ptr 1
  .amdhsa_system_sgpr_workgroup_id_x 1
  .amdhsa_float_denorm_mode_32 3
  .amdhsa_float_denorm_mode_16_64 3
.end_amdhsa_kernel""")
        return "\n".join(out) + "\n"
```

```python
import struct, sys
from asmlib import Asm
NAME = "parallel_sum__spectral_gfnet__glu_gated_bilinear__prompt"
def f2u(x): return struct.unpack("<I", struct.pack("<f", x))[0]
def fh(x): return f"0x{f2u(x):08x}"

Q_OFF, Q_BYTES = 0, 225 * 8192
NSTEP = 141
HZ_OFF, HZ_BYTES = 2 << 20, 64 * NSTEP * 1024
FL_OFF = 12 << 20
TS_OFF = 200 << 20
LDS_BYTES = 160 * 1024
SX, SWG, SWU, SWD, SQ, SHZ, SOUT, SFL, SPF = 24, 28, 32, 36, 40, 44, 48, 52, 56
sW, sSG, sFG, sRT, sFT, sT0, sT1, sT2, sT3, sONE, sS2, sLW, sST, sDT, sA, sK0, sQC, sSC = range(60, 78)
sTS = 80

class VM:
    def __init__(s): s.q = []
    def add(s, tag): s.q.append(tag)
    def n_after(s, tag):
        idx = [i for i, t in enumerate(s.q) if t == tag]
        assert idx, tag
        return min(63, len(s.q) - 1 - idx[-1])

def mfma(a, d, A, B, c=None):
    cs = "0" if c == 0 else f"v[{d}:{d+15}]"
    a.e(f"v_mfma_f32_32x32x16_bf16 v[{d}:{d+15}], v[{A}:{A+3}], v[{B}:{B+3}], {cs}")

def load_args(a):
    a.e("s_load_dwordx16 s[4:19], s[0:1], 0\ns_load_dwordx4 s[20:23], s[0:1], 64")

def wave_ids(a):
    a.e(f"v_readfirstlane_b32 s{sW}, v0\nv_and_b32 v1, 63, v0\ns_nop 0\ns_lshr_b32 s{sW}, s{sW}, 6\ns_and_b32 s{sW}, s{sW}, 7")

def g_ids(a):
    a.e(f"""s_lshr_b32 s{sT0}, s2, 3
    s_and_b32 s{sRT}, s2, 6
    s_lshl_b32 s{sRT}, s{sRT}, 1
    s_and_b32 s{sT1}, s{sT0}, 3
    s_add_u32 s{sRT}, s{sRT}, s{sT1}
    s_and_b32 s{sT1}, s2, 1
    s_lshr_b32 s{sDT}, s{sT0}, 2
    s_mul_i32 s{sFT}, s{sT1}, 7
    s_add_u32 s{sFT}, s{sFT}, s{sDT}
    s_lshl_b32 s{sST}, s{sRT}, 1
    s_add_u32 s{sST}, s{sST}, s{sT1}""")

class TS:
    def __init__(s, on): s.on = on; s.n = 0
    def stamp(s, a, i):
        if s.on: a.e(f"s_memrealtime s[{sTS+2*i}:{sTS+2*i+1}]")
    def store(s, a, base_wg=0, n=8):
        if not s.on: return
        a.e("s_waitcnt lgkmcnt(0)")
        a.srd(SPF, 22, 1 << 20, TS_OFF)
        for i in range(n): a.e(f"v_mov_b32 v{8+i}, s{sTS+2*i}")
        a.e(f"s_add_u32 s{sT0}, s2, {base_wg}\ns_lshl_b32 s{sT0}, s{sT0}, 3\ns_add_u32 s{sT0}, s{sT0}, s{sW}\ns_lshl_b32 s{sT0}, s{sT0}, 5\nv_mov_b32 v2, 0")
        a.e(f"s_mov_b64 exec, 1\nbuffer_store_dwordx4 v[8:11], v2, s[{SPF}:{SPF+3}], s{sT0} offen\nbuffer_store_dwordx4 v[12:15], v2, s[{SPF}:{SPF+3}], s{sT0} offen offset:16")

TRB, VX0, VX1, VWG, VWU, XRD, RS2, M4, CS, TMP = 2, 10, 11, 12, 13, 14, 18, 20, 24, 26
AB, ACC, XF = 32, 64, 128
F_LDS, MISC = 131072, 159744
NEGM_L, RS_L, CS_L = MISC, MISC + 512, MISC + 1024

def g1_prologue(a, ts, st_flags):
    wave_ids(a)
    g_ids(a)
    a.e(f"s_and_b32 s{sSG}, s{sW}, 3\ns_lshr_b32 s{sFG}, s{sW}, 2")
    a.e(f"""v_lshrrev_b32 v{TMP}, 3, v1
    v_mul_u32_u24 v{VX0}, {64*896}, v{TMP}
    v_lshrrev_b32 v{TMP}, 4, v1
    v_and_b32 v{TMP+1}, 7, v1
    v_xor_b32 v{TMP+1}, v{TMP+1}, v{TMP}
    v_lshl_add_u32 v{VX0}, v{TMP+1}, 4, v{VX0}
    s_and_b32 s{sT0}, s{sW}, 1
    s_mul_i32 s{sT0}, s{sT0}, {64*16*896}
    s_lshr_b32 s{sT1}, s{sW}, 1
    s_lshl_b32 s{sT2}, s{sRT}, 2
    s_add_u32 s{sT1}, s{sT1}, s{sT2}
    s_mul_i32 s{sT1}, s{sT1}, 896
    s_add_u32 s{sT0}, s{sT0}, s{sT1}
    v_add_u32 v{VX0}, s{sT0}, v{VX0}
    v_xor_b32 v{VX1}, 64, v{VX0}
    v_add_u32 v{VX1}, {64*8*896 - 1024}, v{VX1}
    s_lshl_b32 s{sLW}, s{sW}, 11
    s_waitcnt lgkmcnt(0)""")
    a.srd(SX, 4, 2048 * 896)
    vm = VM()
    for b in range(7):
        a.e(f"s_add_u32 m0, s{sLW}, {b*16384}\ns_movk_i32 s{sT0}, {b*128}")
        a.e(f"buffer_load_dwordx4 v{VX0}, s[{SX}:{SX+3}], s{sT0} offen lds")
        a.e(f"buffer_load_dwordx4 v{VX1}, s[{SX}:{SX+3}], s{sT0} offen offset:1024 lds")
        vm.add(("X", b)); vm.add(("X", b))
    ts.stamp(a, 1)
    a.srd(SWG, 12, 448 * 3584)
    a.srd(SWU, 14, 448 * 3584)
    a.srd(SQ, 22, Q_BYTES, Q_OFF)
    a.srd(SHZ, 22, HZ_BYTES, HZ_OFF)
    a.e(f"s_mov_b32 s{sONE}, 0x3f803f80\ns_lshl_b32 s{sS2}, s{sRT}, 2\ns_add_u32 s{sS2}, s{sS2}, s{sSG}")
    return vm

def w_dma(a, vm, i):
    slot = (7 + i) % 8
    out = []
    for h in range(2):
        for u in range(2):
            out.append(f"s_add_u32 m0, s{sLW}, {slot*16384 + u*8192 + h*1024}\ns_mov_b32 s{sT0}, {(32*i + 4*h)*3584}\n"
                       f"buffer_load_dwordx4 v{VWU if u else VWG}, s[{SWU if u else SWG}:{(SWU if u else SWG)+3}], s{sT0} offen lds")
            vm.add(("W", i))
    return out

def gen_F(a):
    T = TMP
    a.e(f"""v_bfe_u32 v{T}, v1, 1, 4
    s_lshl_b32 s{sT0}, s{sFT}, 4
    v_add_u32 v{T}, s{sT0}, v{T}
    v_and_b32 v{T+1}, 1, v1
    v_lshl_add_u32 v{T+2}, v{T}, 1, v{T+1}
    v_cmp_eq_u32 vcc, 1, v{T+2}
    v_mov_b32 v{T+3}, 224
    v_cvt_f32_u32 v{T+1}, v{T+1}
    v_cndmask_b32 v{T}, v{T}, v{T+3}, vcc
    v_mul_f32 v{T+1}, 0x3e800000, v{T+1}
    v_cvt_f32_u32 v{T}, v{T}
    v_cndmask_b32 v{T+1}, v{T+1}, 0, vcc
    v_mul_f32 v{T}, {fh(1/448)}, v{T}
    v_lshrrev_b32 v{T+2}, 5, v1
    v_lshlrev_b32 v{T+2}, 3, v{T+2}
    s_lshl_b32 s{sT0}, s{sW}, 4
    v_add_u32 v{T+2}, s{sT0}, v{T+2}
    v_cvt_f32_u32 v{T+2}, v{T+2}
    v_fmac_f32 v{T+1}, v{T}, v{T+2}
    v_lshlrev_b32 v{T+3}, 4, v0
    v_add_u32 v{T+3}, {F_LDS}, v{T+3}""")
    for i in range(4):
        r = AB + 8 * (i & 1)
        for j in range(8):
            if 128 * i + j == 0: a.e(f"v_cos_f32 v{r}, v{T+1}")
            else: a.e(f"v_fmamk_f32 v{r+j}, v{T}, {fh(128*i+j)}, v{T+1}\nv_cos_f32 v{r+j}, v{r+j}")
        o = AB + 16 + 4 * (i & 1)
        a.e("s_nop 0")
        for j in range(4): a.e(f"v_cvt_pk_bf16_f32 v{o+j}, v{r+2*j}, v{r+2*j+1}")
        a.e(f"ds_write_b128 v{T+3}, v[{o}:{o+3}] offset:{i*8192}")

def g1_addrs(a):
    T = TMP
    a.e(f"""v_and_b32 v{T}, 31, v1
    v_bfe_u32 v{T+1}, v1, 1, 3
    v_lshrrev_b32 v{T+2}, 5, v1
    v_xor_b32 v{T+1}, v{T+1}, v{T+2}
    v_lshlrev_b32 v{T+1}, 4, v{T+1}
    v_lshl_add_u32 v{XRD}, v{T}, 7, v{T+1}
    s_lshl_b32 s{sT0}, s{sSG}, 12
    v_add_u32 v{XRD}, s{sT0}, v{XRD}
    v_xor_b32 v{XRD+1}, 32, v{XRD}
    v_xor_b32 v{XRD+2}, 64, v{XRD}
    v_xor_b32 v{XRD+3}, 96, v{XRD}""")
    a.e(f"""v_bfe_u32 v{T}, v1, 4, 1
    v_bfe_u32 v{T+1}, v1, 2, 2
    v_lshl_add_u32 v{T+3}, v{T+2}, 3, v{T+1}
    v_lshlrev_b32 v{T+3}, 8, v{T+3}
    v_lshl_add_u32 v{T+3}, v{T}, 13, v{T+3}
    v_lshl_add_u32 v{T+1}, v{T+1}, 1, v{T}
    v_lshl_add_u32 v{T+3}, v{T+1}, 5, v{T+3}
    v_and_b32 v{T}, 3, v1
    v_lshl_add_u32 v{T+3}, v{T}, 3, v{T+3}""")
    for j in range(4):
        a.e(f"s_add_u32 s{sT0}, s{sSG}, {j}\ns_and_b32 s{sT0}, s{sT0}, 3\ns_lshl_b32 s{sT1}, s{sFG}, 2\ns_add_u32 s{sT0}, s{sT0}, s{sT1}\ns_lshl_b32 s{sT0}, s{sT0}, 5")
        a.e(f"v_xor_b32 v{TRB+j}, s{sT0}, v{T+3}\nv_add_u32 v{TRB+4+j}, 0x10000, v{TRB+j}")
    a.e(f"v_lshlrev_b32 v1, 4, v1")
    a.e(f"v_mov_b32 v{M4+1}, 0\nv_mov_b32 v{M4+2}, 0\nv_mov_b32 v{M4+3}, 0")

def tr_reads(n):
    i, kk = n // 2, n % 2
    slot = (7 + i) % 8
    buf = AB + 16 * (n & 1)
    res = []
    for j in range(4):
        base = TRB + j + (4 if slot >= 4 else 0)
        off = (slot & 3) * 16384 + kk * 4096
        res.append([f"ds_read_b64_tr_b16 v[{buf+4*j+2*hh}:{buf+4*j+2*hh+1}], v{base} offset:{off + hh*1024}" for hh in range(2)])
    return res

def split_hilo(a, dst, src, t):
    a.e(f"""v_cvt_pk_bf16_f32 v{t}, v{src}, v{src}
    v_and_b32 v{t}, 0xffff0000, v{t}
    v_sub_f32 v{t}, v{src}, v{t}
    v_cvt_pk_bf16_f32 v{dst}, v{src}, v{t}""")

def g1_role(a, role, vm0, ts, st_flags):
    vm = VM(); vm.q = list(vm0.q)
    T = TMP
    D1, E, D2C, D2S = ACC, ACC + 16, ACC + 32, ACC + 48
    if role == 1:
        a.e(f"""v_lshrrev_b32 v{T}, 4, v1
        v_bfe_u32 v{T+1}, v1, 1, 3
        v_lshlrev_b32 v{T+2}, 1, v{T}
        v_xor_b32 v{T+1}, v{T+1}, v{T+2}
        v_mul_u32_u24 v{VWG}, 3584, v{T}
        v_lshl_add_u32 v{VWG}, v{T+1}, 5, v{VWG}
        v_and_b32 v{T}, 1, v1
        v_lshl_add_u32 v{VWG}, v{T}, 4, v{VWG}
        s_mul_i32 s{sT0}, s{sSG}, {8*3584}
        s_lshl_b32 s{sT1}, s{sFT}, 8
        s_add_u32 s{sT0}, s{sT0}, s{sT1}
        v_add_u32 v{VWG}, s{sT0}, v{VWG}
        v_xor_b32 v{VWU}, 32, v{VWG}
        s_lshl_b32 s{sLW}, s{sSG}, 11""")
        for s in w_dma(a, vm, 0): a.e(s)
    gen_F(a)
    if role == 0:
        a.e(f"""v_and_b32 v{T}, 31, v1
        v_cvt_f32_u32 v{T}, v{T}
        v_lshrrev_b32 v{T+1}, 5, v1
        v_lshlrev_b32 v{T+1}, 8, v{T+1}
        v_add_u32 v{T+1}, s{sS2}, v{T+1}
        v_cvt_f32_u32 v{T+1}, v{T+1}
        v_mul_f32 v{T+1}, {fh(1/2048)}, v{T+1}
        v_mul_f32 v{T+1}, v{T+1}, v{T}
        v_mul_f32 v{T}, {fh(1/32)}, v{T}""")
        for q in range(2):
            for j in range(8):
                c = 16 * q + 8 * (j >> 2) + (j & 3)
                a.e(f"v_fmamk_f32 v{D2C+j}, v{T}, {fh(c)}, v{T+1}\nv_sin_f32 v{D2S+j}, v{D2C+j}\nv_cos_f32 v{D2C+j}, v{D2C+j}")
            a.e("s_nop 0")
            for j in range(4):
                a.e(f"v_cvt_pk_bf16_f32 v{E+4*q+j}, v{D2C+2*j}, v{D2C+2*j+1}\nv_cvt_pk_bf16_f32 v{E+8+4*q+j}, v{D2S+2*j}, v{D2S+2*j+1}")
    g1_addrs(a)
    for r in range(4): a.e(f"v_mov_b32 v{CS+r}, 0")
    if role == 0: a.e(f"v_add_u32 v{T+4}, {F_LDS}, v1")
    for b in range(7):
        a.e(f"s_waitcnt vmcnt({vm.n_after(('X', b))}) lgkmcnt(0)\ns_barrier")
        if b == 0: ts.stamp(a, 2)
        if b == 4:
            for r in range(4): a.e(f"v_add_u32 v{XRD+r}, 0x10000, v{XRD+r}")
        for r in range(4):
            kk = 4 * b + r
            a.e(f"ds_read_b128 v[{XF+4*kk}:{XF+4*kk+3}], v{XRD+r} offset:{(b&3)*16384}")
            if role == 0:
                fb = AB + 16 * (b & 1) + 4 * r
                a.e(f"ds_read_b128 v[{fb}:{fb+3}], v{T+4} offset:{kk*1024}")
        if role == 1 and b >= 1:
            for s in w_dma(a, vm, b): a.e(s)
        for r in range(4):
            kk = 4 * b + r
            if role == 0:
                fb = AB + 16 * (b & 1) + 4 * r
                a.e(f"s_waitcnt lgkmcnt({6-2*r})")
                mfma(a, D1, XF + 4 * kk, fb, 0 if kk == 0 else None)
                for e in range(4): a.e(f"v_dot2c_f32_bf16 v{CS+(e&1)}, s{sONE}, v{fb+e}")
            else:
                a.e(f"s_waitcnt lgkmcnt({3-r})")
                for e in range(4):
                    x = XF + 4 * kk + e
                    a.e(f"v_dot2c_f32_bf16 v{CS+(e&1)}, s{sONE}, v{x}\nv_dot2c_f32_bf16 v{CS+2+(e&1)}, v{x}, v{x}")
    ts.stamp(a, 3)
    if role == 1:
        S1, S2, U = CS, CS + 2, CS + 4
        a.e(f"""s_nop 2
        v_add_f32 v{S1}, v{S1}, v{S1+1}
        v_add_f32 v{S2}, v{S2}, v{S2+1}
        v_mov_b32 v{S1+1}, v{S1}
        v_mov_b32 v{S2+1}, v{S2}
        s_nop 1
        v_permlane32_swap_b32 v{S1}, v{S1+1}
        v_permlane32_swap_b32 v{S2}, v{S2+1}
        s_nop 0
        v_add_f32 v{S1}, v{S1}, v{S1+1}
        v_add_f32 v{S2}, v{S2}, v{S2+1}
        v_mul_f32 v{S1}, {fh(1/448)}, v{S1}
        v_mul_f32 v{S2}, {fh(1/448)}, v{S2}
        v_cvt_pk_bf16_f32 v{M4}, -v{S1}, -v{S1}
        v_fma_f32 v{S2}, -v{S1}, v{S1}, v{S2}
        v_max_f32 v{S2}, 0, v{S2}
        v_cvt_pk_bf16_f32 v{S2}, v{S2}, v{S2}
        v_and_b32 v{S2}, 0xffff0000, v{S2}
        v_add_f32 v{S2}, {fh(1e-5)}, v{S2}
        v_cvt_pk_bf16_f32 v{S2}, v{S2}, v{S2}
        v_and_b32 v{S2}, 0xffff0000, v{S2}
        v_sqrt_f32 v{S2}, v{S2}
        s_nop 0
        v_cvt_pk_bf16_f32 v{S2}, v{S2}, v{S2}
        v_and_b32 v{S2}, 0xffff0000, v{S2}
        v_rcp_f32 v{S2}, v{S2}
        v_bfe_u32 v{U}, v1, 4, 5
        v_lshlrev_b32 v{U}, 2, v{U}
        s_lshl_b32 s{sT0}, s{sSG}, 7
        s_add_u32 s{sT0}, s{sT0}, {NEGM_L}
        v_add_u32 v{U}, s{sT0}, v{U}
        ds_write_b32 v{U}, v{M4}
        ds_write_b32 v{U}, v{S2} offset:512
        v_mul_f32 v{RS2}, v{S2}, v{S2}
        v_mul_f32 v{RS2+1}, v{S2}, v{S2}""")
        a.e(f"s_waitcnt vmcnt({vm.n_after(('W', 0))}) lgkmcnt(0)\ns_barrier")
        for x in tr_reads(0):
            for s in x: a.e(s)
        for s in w_dma(a, vm, 7): a.e(s)
    else:
        U = CS + 4
        a.e(f"""s_nop 2
        v_add_f32 v{CS}, v{CS}, v{CS+1}""")
        split_hilo(a, AB, CS, CS + 1)
        a.e(f"""v_bfe_u32 v{U}, v1, 4, 5
        v_lshlrev_b32 v{U}, 2, v{U}
        s_lshl_b32 s{sT0}, s{sSG}, 7
        s_add_u32 s{sT0}, s{sT0}, {NEGM_L}
        v_add_u32 v{U}, s{sT0}, v{U}
        v_lshrrev_b32 v{U+1}, 9, v1
        v_lshlrev_b32 v{U+1}, 4, v{U+1}
        v_add_u32 v{U+1}, s{sT0}, v{U+1}
        s_barrier
        ds_read_b32 v{M4}, v{U}
        ds_read_b32 v{RS2}, v{U} offset:512""")
        RSR = AB + 16
        for q in range(4): a.e(f"ds_read_b128 v[{RSR+4*q}:{RSR+4*q+3}], v{U+1} offset:{512 + 32*q}")
        a.e("s_waitcnt lgkmcnt(5)")
        mfma(a, D1, M4, AB)
        a.e(f"""v_lshrrev_b32 v{U}, 9, v1
        v_lshlrev_b32 v{U}, 14, v{U}
        v_bfe_u32 v{U+1}, v1, 4, 5
        v_lshl_add_u32 v{U}, v{U+1}, 2, v{U}
        s_lshl_b32 s{sT0}, s{sFT}, 17
        s_lshl_b32 s{sT1}, s{sS2}, 7
        s_add_u32 s{sT0}, s{sT0}, s{sT1}
        s_waitcnt lgkmcnt(0)
        v_mul_f32 v{RS2}, v{RS2}, v{RS2}
        v_mov_b32 v{RS2+1}, v{RS2}
        s_nop 3""")
        PA = AB + 4
        for p in range(8): a.e(f"v_pk_mul_f32 v[{D1+2*p}:{D1+2*p+1}], v[{D1+2*p}:{D1+2*p+1}], v[{RSR+2*p}:{RSR+2*p+1}]")
        for p in range(8): a.e(f"v_cvt_pk_bf16_f32 v{PA+p}, v{D1+2*p}, v{D1+2*p+1}")
        a.e("s_nop 1")
        mfma(a, D2C, PA, E, 0); mfma(a, D2S, PA, E + 8, 0)
        mfma(a, D2C, PA + 4, E + 4); mfma(a, D2S, PA + 4, E + 12)
        a.e("s_nop 11")
        for p in range(8):
            a.e(f"v_pk_add_f32 v[{D1+2*p}:{D1+2*p+1}], v[{D2C+2*p}:{D2C+2*p+1}], v[{D2S+2*p}:{D2S+2*p+1}] op_sel:[0,1] op_sel_hi:[1,0] neg_hi:[0,1]")
        QO = RSR
        for p in range(8): a.e(f"v_cvt_pk_bf16_f32 v{QO+p}, v{D1+2*p}, v{D1+2*p+1}")
        L = a.label("nonyq")
        a.e(f"""s_cmp_lg_u32 s{sFT}, 0
        s_cbranch_scc1 {L}
        s_mov_b32 exec_hi, 0
        v_cvt_pk_bf16_f32 v{QO}, v{D2C}, -v{D2S}
        v_cvt_pk_bf16_f32 v{QO+8}, v{D2C+1}, -v{D2S+1}
        s_add_u32 s{sT2}, s{sT1}, {224*8192}
        buffer_store_dword v{QO+8}, v{U}, s[{SQ}:{SQ+3}], s{sT2} offen {st_flags}
        s_mov_b32 exec_hi, -1
        {L}:""")
        for p in range(8):
            kl = 4 * (p >> 1) + (p & 1)
            a.e(f"s_add_u32 s{sT2}, s{sT0}, {kl*8192}\nbuffer_store_dword v{QO+p}, v{U}, s[{SQ}:{SQ+3}], s{sT2} offen {st_flags}")
            vm.add("Q")
        for x in tr_reads(0):
            for s in x: a.e(s)
    a.e(f"v_mov_b32 v{CS}, 0\nv_mov_b32 v{CS+1}, 0")
    ts.stamp(a, 4)
    for n in range(28):
        buf = AB + 16 * (n & 1)
        dma = []
        if n + 1 < 28 and (n + 1) % 2 == 0:
            i = (n + 1) // 2
            if role == 1: a.e(f"s_waitcnt vmcnt({vm.n_after(('W', i))}) lgkmcnt(0)\ns_barrier")
            else: a.e("s_waitcnt lgkmcnt(0)\ns_barrier")
            if role == 1 and i + 7 <= 13: dma = w_dma(a, vm, i + 7)
        else:
            a.e("s_waitcnt lgkmcnt(0)")
        rd = tr_reads(n + 1) if n + 1 < 28 else [[], [], [], []]
        if n == 27:
            for e in range(4): a.e(f"v_dot2c_f32_bf16 v{CS+(e&1)}, s{sONE}, v{buf+e}")
            mfma(a, ACC, buf, XF + 4 * n)
            a.e(f"s_nop 1\nv_add_f32 v{CS}, v{CS}, v{CS+1}")
            split_hilo(a, CS, CS, CS + 1)
            a.e(f"""v_lshrrev_b32 v{T+2}, 2, v1
            s_lshl_b32 s{sT0}, s{sFG}, 10
            s_add_u32 s{sT0}, s{sT0}, {CS_L}
            v_add_u32 v{T+2}, s{sT0}, v{T+2}
            s_lshl_b32 s{sT1}, s{sSG}, 8
            v_add_u32 v{T+3}, s{sT1}, v{T+2}
            ds_write_b32 v{T+3}, v{CS}""")
            for j in range(1, 4): mfma(a, ACC + 16 * j, buf + 4 * j, XF + 4 * n)
            continue
        for j in range(4):
            mfma(a, ACC + 16 * j, buf + 4 * j, XF + 4 * n, 0 if n == 0 else None)
            for s in rd[j]: a.e(s)
            a.e(f"v_dot2c_f32_bf16 v{CS+(j&1)}, s{sONE}, v{buf+j}")
            if dma: a.e(dma.pop(0))
    a.e("s_waitcnt lgkmcnt(0)\ns_barrier")
    for j in range(4):
        a.e(f"s_add_u32 s{sT1}, s{sSG}, {j}\ns_and_b32 s{sT1}, s{sT1}, 3\ns_lshl_b32 s{sT1}, s{sT1}, 8\nv_add_u32 v{T+3}, s{sT1}, v{T+2}\nds_read_b32 v{AB+4*j}, v{T+3}")
    for j in range(4):
        a.e(f"s_waitcnt lgkmcnt({3-j})")
        mfma(a, ACC + 16 * j, AB + 4 * j, M4)
    ts.stamp(a, 5)
    a.e(f"""s_mul_i32 s{sT0}, s{sS2}, {NSTEP}
    s_lshl_b32 s{sT1}, s{sFT}, 3
    s_add_u32 s{sT0}, s{sT0}, s{sT1}
    s_lshl_b32 s{sT1}, s{sFG}, 2
    s_add_u32 s{sT0}, s{sT0}, s{sT1}
    s_nop 4""")
    for j in range(4):
        c = ACC + 16 * j
        o = AB + 16 + 4 * j
        for p in range(4): a.e(f"v_pk_mul_f32 v[{c+2*p}:{c+2*p+1}], v[{c+2*p}:{c+2*p+1}], v[{RS2}:{RS2+1}]")
        for p in range(4): a.e(f"v_pk_mul_f32 v[{c+2*p}:{c+2*p+1}], v[{c+2*p}:{c+2*p+1}], v[{c+8+2*p}:{c+8+2*p+1}]")
        for p in range(4): a.e(f"v_cvt_pk_bf16_f32 v{o+p}, v{c+2*p}, v{c+2*p+1}")
        a.e(f"s_add_u32 s{sT1}, s{sSG}, {j}\ns_and_b32 s{sT1}, s{sT1}, 3\ns_add_u32 s{sT1}, s{sT1}, s{sT0}\ns_lshl_b32 s{sT1}, s{sT1}, 10")
        a.e(f"buffer_store_dwordx4 v[{o}:{o+3}], v1, s[{SHZ}:{SHZ+3}], s{sT1} offen {st_flags}")
        vm.add("H")
    ts.stamp(a, 6)
    return vm

WL, TWL, ZL = 0, 65536, 81920
def aux_body(a, ts, ld_flags, st_flags):
    T64, T32, QD, QE, XA, WR = 16, 80, 96, 128, 160, 224
    T = 2
    NINV = 1.0 / (2048 * 448)
    wave_ids(a)
    a.e(f"""s_lshl_b32 s{sK0}, s{sA}, 3
    s_add_u32 s{sQC}, s{sK0}, s{sW}
    s_mov_b32 s{sSC}, {fh(2*NINV)}
    s_cmp_eq_u32 s{sQC}, 0
    s_cselect_b32 s{sSC}, {fh(NINV)}, s{sSC}
    s_cmp_eq_u32 s{sW}, 7
    s_cselect_b32 s{sT0}, {fh(NINV)}, 0
    s_cmp_eq_u32 s{sA}, 28
    s_cselect_b32 s{sSC}, s{sT0}, s{sSC}
    s_cselect_b32 s{sK0}, 217, s{sK0}
    s_cselect_b32 s{sQC}, 224, s{sQC}
    v_and_b32 v{T}, 31, v0
    v_lshrrev_b32 v{T+1}, 5, v0
    v_lshl_add_u32 v{T}, v{T+1}, 7, v{T}
    v_mul_u32_u24 v{T}, 450, v{T}
    s_lshl_b32 s{sT0}, s{sK0}, 1
    s_waitcnt lgkmcnt(0)""")
    a.srd(SWG, 6, 2048 * 450)
    a.srd(SWU, 8, 2048 * 450)
    for i in range(4):
        a.e(f"s_add_u32 s{sT1}, s{sT0}, {14400*i}")
        a.e(f"buffer_load_dwordx4 v[{XA+4*i}:{XA+4*i+3}], v{T}, s[{SWG}:{SWG+3}], s{sT1} offen")
        a.e(f"buffer_load_dwordx4 v[{XA+16+4*i}:{XA+16+4*i+3}], v{T}, s[{SWU}:{SWU+3}], s{sT1} offen")
    a.srd(SQ, 22, Q_BYTES, Q_OFF)
    a.srd(SHZ, 22, HZ_BYTES, HZ_OFF)
    vI, vH, vL16 = 4, 5, 6
    a.e(f"""v_and_b32 v{vI}, 31, v1
    v_cvt_f32_u32 v{vI}, v{vI}
    v_lshrrev_b32 v{vH}, 5, v1
    v_lshlrev_b32 v{vH}, 2, v{vH}
    v_cvt_f32_u32 v{vH}, v{vH}
    v_lshlrev_b32 v{vL16}, 4, v1
    s_lshr_b32 s{sT0}, s{sW}, 2
    s_lshl_b32 s{sT0}, s{sT0}, 5
    v_cvt_f32_u32 v7, s{sT0}
    v_add_f32 v7, v7, v{vI}
    s_and_b32 s{sT1}, s{sW}, 3
    s_lshl_b32 s{sT1}, s{sT1}, 3
    v_cvt_f32_u32 v8, s{sT1}""")
    a.e(f"""v_mul_f32 v9, {fh(1/64)}, v7
    v_fma_f32 v10, 2.0, v8, v{vH}
    v_mul_f32 v10, v10, v9
    s_lshl_b32 s{sT2}, s{sW}, 11
    s_add_u32 s{sT3}, s{sT2}, {ZL}
    v_add_u32 v11, s{sT3}, v{vL16}""")
    for e in range(2):
        for jj in range(4):
            a.e(f"v_fmamk_f32 v{QD+jj}, v9, {fh(8*e+jj)}, v10\nv_sin_f32 v{QD+4+jj}, v{QD+jj}\nv_cos_f32 v{QD+jj}, v{QD+jj}")
        a.e("s_nop 0")
        for jj in range(4): a.e(f"v_cvt_pk_bf16_f32 v{QD+8+4*e+jj}, v{QD+jj}, v{QD+4+jj}")
        a.e(f"ds_write_b128 v11, v[{QD+8+4*e}:{QD+11+4*e}] offset:{e*1024}")
    a.e(f"""v_mul_f32 v9, {fh(1/2048)}, v7
    v_add_f32 v10, v8, v{vH}
    v_mul_f32 v10, v10, v9
    s_add_u32 s{sT3}, s{sT2}, {TWL}
    v_add_u32 v11, s{sT3}, v{vL16}""")
    for r in range(4):
        a.e(f"v_fmamk_f32 v{QE+r}, v9, {fh(r)}, v10\nv_sin_f32 v{QE+4+r}, v{QE+r}\nv_cos_f32 v{QE+r}, v{QE+r}")
    a.e(f"s_nop 0\nds_write_b128 v11, v[{QE}:{QE+3}]\nds_write_b128 v11, v[{QE+4}:{QE+7}] offset:1024")
    a.e(f"v_mul_f32 v9, {fh(1/32)}, v{vI}\nv_mul_f32 v10, v{vH}, v9")
    for q in range(4):
        for jj in range(4):
            a.e(f"v_fmamk_f32 v{QE+8+jj}, v9, {fh(8*q+jj)}, v10\nv_sin_f32 v{QE+12+jj}, v{QE+8+jj}\nv_cos_f32 v{QE+8+jj}, v{QE+8+jj}")
        a.e("s_nop 0")
        for jj in range(8): a.e(f"v_mul_f32 v{QE+8+jj}, s{sSC}, v{QE+8+jj}")
        for jj in range(4): a.e(f"v_cvt_pk_bf16_f32 v{T32+4*q+jj}, v{QE+8+jj}, v{QE+12+jj}")
    a.e(f"s_mov_b32 s{sT0}, 0x05040100\ns_mov_b32 s{sT1}, 0x07060302\nv_lshlrev_b32 v11, 4, v0\ns_waitcnt vmcnt(0)")
    for e in range(4):
        for hf in range(2):
            o = XA + 32 + 4 * hf + 8 * (e & 1)
            for i in range(4): a.e(f"v_perm_b32 v{o+i}, v{XA+16+4*i+e}, v{XA+4*i+e}, s{sT1 if hf else sT0}")
            a.e(f"ds_write_b128 v11, v[{o}:{o+3}] offset:{WL + (2*e+hf)*8192}")
    a.e("s_waitcnt lgkmcnt(0)\ns_barrier")
    a.e(f"v_add_u32 v11, {ZL}, v{vL16}\ns_lshl_b32 s{sT0}, s{sW}, 13\nv_add_u32 v12, s{sT0}, v{vL16}")
    for f in range(16): a.e(f"ds_read_b128 v[{T64+4*f}:{T64+4*f+3}], v11 offset:{f*1024}")
    for f in range(8): a.e(f"ds_read_b128 v[{WR+4*f}:{WR+4*f+3}], v12 offset:{WL + f*1024}")
    a.e(f"""v_lshrrev_b32 v7, 5, v1
    v_and_b32 v8, 31, v1
    v_lshlrev_b32 v9, 2, v8
    v_lshl_add_u32 v9, v7, 9, v9
    s_lshl_b32 s{sT0}, s{sQC}, 13
    s_add_u32 s{sT1}, s{sT0}, 4096
    v_lshlrev_b32 v10, 4, v8
    v_lshl_add_u32 v10, v7, 12, v10
    s_lshr_b32 s{sT2}, s{sW}, 2
    s_lshl_b32 s{sT2}, s{sT2}, 9
    s_and_b32 s{sT3}, s{sW}, 3
    s_lshl_b32 s{sT3}, s{sT3}, 2
    s_add_u32 s{sT2}, s{sT2}, s{sT3}
    s_add_u32 s{sT2}, s{sT2}, {ZL}
    v_add_u32 v10, s{sT2}, v10
    v_add_u32 v13, {TWL}, v{vL16}
    s_waitcnt lgkmcnt(0)
    s_barrier""")
    ts.stamp(a, 1)
    a.e("AUX_QWAIT:")
    for kk in range(8):
        for jj in range(4):
            a.e(f"buffer_load_dword v{QD+4*kk+jj}, v9, s[{SQ}:{SQ+3}], s{sT1 if kk >= 4 else sT0} offen offset:{(kk&3)*1024 + jj*128} {ld_flags}")
    XRE = lambda t: XA + 16 * t
    XIM = lambda t: XA + 32 + 16 * t
    for kk in range(8):
        a.e(f"s_waitcnt vmcnt({28-4*kk})")
        for jj in range(4):
            a.e(f"v_pk_mul_f16 v{QE+4*kk+jj}, v{QD+4*kk+jj}, 1.0 op_sel:[1,0] op_sel_hi:[0,0] neg_hi:[1,0]")
        c = 0 if kk == 0 else None
        mfma(a, XRE(0), T64 + 4 * kk, QD + 4 * kk, c)
        mfma(a, XRE(1), T64 + 32 + 4 * kk, QD + 4 * kk, c)
        mfma(a, XIM(0), T64 + 4 * kk, QE + 4 * kk, c)
        mfma(a, XIM(1), T64 + 32 + 4 * kk, QE + 4 * kk, c)
    ts.stamp(a, 2)
    a.e("s_nop 10")
    for t in range(2):
        if t == 1: pass
        for g in range(16):
            w = WR + 16 * t + g
            xr, xi = XRE(t) + g, XIM(t) + g
            u = 2 + 4 * (g & 1) if False else None
            a0, a1, a2, a3 = (2, 3, 4, 5) if g & 1 == 0 else (7, 8, 14, 15)
            a.e(f"""v_lshlrev_b32 v{a0}, 16, v{w}
            v_and_b32 v{a1}, 0xffff0000, v{w}
            v_mul_f32 v{a2}, v{xr}, v{a0}
            v_mul_f32 v{a3}, v{xr}, v{a1}
            v_fma_f32 v{a2}, -v{xi}, v{a1}, v{a2}
            v_fmac_f32 v{a3}, v{xi}, v{a0}
            v_cvt_pk_bf16_f32 v{QD+16*t+g}, v{a2}, -v{a3}
            v_cvt_pk_bf16_f32 v{QE+16*t+g}, v{a3}, v{a2}""")
    for q in range(4):
        a.e(f"ds_read_b128 v[{WR+8*q}:{WR+8*q+3}], v13 offset:{q*2048}\nds_read_b128 v[{WR+8*q+4}:{WR+8*q+7}], v13 offset:{q*2048+1024}")
    a.e("s_nop 0")
    for kk in range(8):
        c = 0 if kk == 0 else None
        mfma(a, XRE(0), QD + 4 * kk, T64 + 4 * kk, c)
        mfma(a, XIM(0), QE + 4 * kk, T64 + 4 * kk, c)
    for kk in range(8):
        c = 0 if kk == 0 else None
        mfma(a, XRE(1), QD + 4 * kk, T64 + 32 + 4 * kk, c)
        mfma(a, XIM(1), QE + 4 * kk, T64 + 32 + 4 * kk, c)
    for q in range(4):
        a.e(f"ds_read_b128 v[{T64+8*q}:{T64+8*q+3}], v13 offset:{8192+q*2048}\nds_read_b128 v[{T64+8*q+4}:{T64+8*q+7}], v13 offset:{8192+q*2048+1024}")
    ts.stamp(a, 3)
    a.e("s_nop 3")
    for t in range(2):
        tw = WR if t == 0 else T64
        a.e("s_waitcnt lgkmcnt(0)")
        for g in range(16):
            q, r = g >> 2, g & 3
            c_, s_ = tw + 8 * q + r, tw + 8 * q + 4 + r
            xr, xi = XRE(t) + g, XIM(t) + g
            a2, a3 = (2, 3) if g & 1 == 0 else (7, 8)
            a.e(f"""v_mul_f32 v{a2}, v{xr}, v{c_}
            v_mul_f32 v{a3}, v{xr}, v{s_}
            v_fma_f32 v{a2}, -v{xi}, v{s_}, v{a2}
            v_fmac_f32 v{a3}, v{xi}, v{c_}
            v_cvt_pk_bf16_f32 v{QD+16*t+g}, v{a2}, -v{a3}
            v_cvt_pk_bf16_f32 v{QE+16*t+g}, v{a3}, v{a2}""")
        a.e("s_nop 1")
        for q in range(4):
            c = 0 if q == 0 else None
            mfma(a, XRE(t), QD + 16 * t + 4 * q, T32 + 4 * q, c)
            mfma(a, XIM(t), QE + 16 * t + 4 * q, T32 + 4 * q, c)
    ts.stamp(a, 4)
    for t in range(2):
        if t == 1: a.e("s_nop 7")
        for g in range(16):
            q2, r = g >> 2, g & 3
            a.e(f"v_cvt_pk_bf16_f32 v{WR+16*t+g}, v{XRE(t)+g}, v{XIM(t)+g}")
            a.e(f"ds_write_b32 v10, v{WR+16*t+g} offset:{(32*t + 8*q2 + r)*1024}")
    a.e("s_waitcnt lgkmcnt(0)\ns_barrier")
    a.e(f"s_lshl_b32 s{sT0}, s{sW}, 13\nv_add_u32 v11, s{sT0}, v11")
    for f in range(8): a.e(f"ds_read_b128 v[{QD+4*f}:{QD+4*f+3}], v11 offset:{f*1024}")
    a.e(f"s_mul_i32 s{sT0}, s{sW}, {8*NSTEP}\ns_add_u32 s{sT0}, s{sT0}, s{sA}\ns_add_u32 s{sT0}, s{sT0}, 112\ns_lshl_b32 s{sT0}, s{sT0}, 10")
    for f in range(8):
        a.e(f"s_add_u32 s{sT1}, s{sT0}, {f*NSTEP*1024}\ns_waitcnt lgkmcnt({7-f})\nbuffer_store_dwordx4 v[{QD+4*f}:{QD+4*f+3}], v{vL16}, s[{SHZ}:{SHZ+3}], s{sT1} offen {st_flags}")
    ts.stamp(a, 5)

def g2_body(a, ts, ld_flags, tsb=0):
    L16, TB, VD, XR, T = 1, 2, 4, 8, 12
    ACC2, FI, POOL, AF = 16, 80, 112, 144
    vm = VM()
    a.srd(SWD, 16, 1792 * 896)
    a.srd(SOUT, 18, 2048 * 896)
    a.e(f"""v_and_b32 v{T}, 63, v0
    v_lshrrev_b32 v{T+1}, 3, v{T}
    v_mul_u32_u24 v{VD}, 896, v{T+1}
    v_bfe_u32 v{T+2}, v{T}, 4, 1
    v_lshlrev_b32 v{T+2}, 2, v{T+2}
    v_and_b32 v{T+3}, 7, v{T}
    v_xor_b32 v{T+2}, v{T+2}, v{T+3}
    v_lshl_add_u32 v{VD}, v{T+2}, 4, v{VD}
    s_mul_i32 s{sT0}, s{sW}, {14*16*896}
    s_lshl_b32 s{sT1}, s{sDT}, 7
    s_add_u32 s{sT0}, s{sT0}, s{sT1}
    v_add_u32 v{VD}, s{sT0}, v{VD}
    s_mul_i32 s{sLW}, s{sW}, 20480""")
    def dma(i):
        for hh in range(2):
            a.e(f"s_add_u32 m0, s{sLW}, {(i%10)*2048 + hh*1024}\ns_mov_b32 s{sT0}, {(16*i + 8*hh)*896}")
            a.e(f"buffer_load_dwordx4 v{VD}, s[{SWD}:{SWD+3}], s{sT0} offen lds")
            vm.add(("D", i))
    for i in range(10): dma(i)
    a.e(f"""v_mul_u32_u24 v5, {64*896}, v{T+1}
    v_lshl_add_u32 v5, v{T+3}, 4, v5
    s_and_b32 s{sT0}, s{sW}, 3
    s_lshl_b32 s{sT0}, s{sT0}, 9
    s_lshr_b32 s{sT2}, s{sW}, 2
    s_add_u32 s{sT0}, s{sT0}, s{sT2}
    s_lshl_b32 s{sT2}, s{sST}, 1
    s_add_u32 s{sT0}, s{sT0}, s{sT2}
    s_mul_i32 s{sT0}, s{sT0}, 896
    s_add_u32 s{sT0}, s{sT0}, s{sT1}
    v_add_u32 v5, s{sT0}, v5
    buffer_load_dwordx4 v[{XR}:{XR+3}], v5, s[{SX}:{SX+3}], 0 offen""")
    vm.add("XR")
    a.e(f"""v_mul_u32_u24 v6, 1088, v{T+3}
    v_lshl_add_u32 v6, v{T+1}, 4, v6
    s_and_b32 s{sT0}, s{sW}, 3
    s_lshl_b32 s{sT0}, s{sT0}, 7
    s_lshr_b32 s{sT2}, s{sW}, 2
    s_mul_i32 s{sT2}, s{sT2}, {8*1088}
    s_add_u32 s{sT0}, s{sT0}, s{sT2}
    v_add_u32 v6, s{sT0}, v6""")
    a.e(f"""v_lshrrev_b32 v{T+1}, 5, v{T}
    v_bfe_u32 v{T+2}, v{T}, 2, 2
    v_lshl_add_u32 v{TB}, v{T+1}, 2, v{T+2}
    v_lshlrev_b32 v{TB}, 7, v{TB}
    v_bfe_u32 v{T+2}, v{T}, 3, 1
    v_lshl_add_u32 v{TB}, v{T+2}, 6, v{TB}
    v_bfe_u32 v{T+2}, v{T}, 4, 1
    v_lshl_add_u32 v{TB}, v{T+2}, 5, v{TB}
    v_and_b32 v{T+2}, 3, v{T}
    v_lshl_add_u32 v{TB}, v{T+2}, 3, v{TB}
    v_add_u32 v{TB}, s{sLW}, v{TB}
    v_xor_b32 v{TB+1}, 64, v{TB}
    v_lshlrev_b32 v{L16}, 4, v{T}""")
    a.e(f"""v_and_b32 v{T+2}, 31, v{T}
    s_lshl_b32 s{sT0}, s{sDT}, 6
    v_add_u32 v{T+2}, s{sT0}, v{T+2}
    v_cvt_f32_u32 v{T+2}, v{T+2}
    v_mul_f32 v{T+2}, {fh(1/448)}, v{T+2}
    v_add_f32 v{T+3}, {fh(32/448)}, v{T+2}
    v_lshlrev_b32 v{T+1}, 2, v{T+1}""")
    P = POOL
    for i in range(4):
        a.e(f"s_lshl_b32 s{sT0}, s{sW}, 3\ns_add_u32 s{sT0}, s{sT0}, {64*i}")
        if i == 3: a.e(f"s_cmp_ge_u32 s{sT0}, 224\ns_cselect_b32 s{sT0}, 217, s{sT0}")
        a.e(f"v_add_u32 v7, s{sT0}, v{T+1}\nv_cvt_f32_u32 v7, v7")
        for t in range(2):
            dq = T + 2 + t
            a.e(f"v_mul_f32 v{P}, v7, v{dq}")
            for jj in range(1, 4): a.e(f"v_fmamk_f32 v{P+jj}, v{dq}, {fh(jj)}, v{P}")
            for jj in range(4): a.e(f"v_sin_f32 v{P+4+jj}, v{P+jj}\nv_cos_f32 v{P+jj}, v{P+jj}")
            a.e("s_nop 0")
            for jj in range(4): a.e(f"v_cvt_pk_bf16_f32 v{FI+8*i+4*t+jj}, v{P+jj}, -v{P+4+jj}")
    def trr(i):
        for t in range(2):
            for hh in range(2):
                r = AF + 8 * i + 4 * t + 2 * hh
                a.e(f"ds_read_b64_tr_b16 v[{r}:{r+1}], v{TB+t} offset:{(i%10)*2048 + hh*1024}")
    for i in range(4):
        a.e(f"s_waitcnt vmcnt({vm.n_after(('D', i))})"); trr(i)
    a.e("s_waitcnt lgkmcnt(0)")
    for i in range(10, 14): dma(i)
    for i in range(4, 14):
        a.e(f"s_waitcnt vmcnt({vm.n_after(('D', i))})"); trr(i)
    ts.stamp(a, tsb + 1)
    a.e("G2_HWAIT:")
    a.e(f"""s_mul_i32 s{sT2}, s{sST}, {2*NSTEP}
    s_mul_i32 s{sT3}, s{sW}, 14
    s_add_u32 s{sT3}, s{sT3}, s{sT2}
    s_lshl_b32 s{sT3}, s{sT3}, 10
    s_add_u32 s{sT2}, s{sT2}, s{sW}
    s_add_u32 s{sT2}, s{sT2}, 112
    s_lshl_b32 s{sT2}, s{sT2}, 10""")
    free = [POOL + 8 * i for i in range(4)]
    breg = {}
    nxt = [0]
    def bload():
        i = nxt[0]
        if i >= 17 or not free: return False
        r = free.pop(0); breg[i] = r
        for S in range(2):
            if i < 14: a.e(f"s_add_u32 s{sT0}, s{sT3}, {(i + S*NSTEP)*1024}")
            else: a.e(f"s_add_u32 s{sT0}, s{sT2}, {((i-14)*8 + S*NSTEP)*1024}")
            a.e(f"buffer_load_dwordx4 v[{r+4*S}:{r+4*S+3}], v{L16}, s[{SHZ}:{SHZ+3}], s{sT0} offen {ld_flags}")
            vm.add(("B", i))
        nxt[0] += 1
        return True
    while bload(): pass
    a.e("s_waitcnt lgkmcnt(0)")
    acc = lambda t, S: ACC2 + 16 * (2 * S + t)
    last_r = None
    for i in range(17):
        a.e(f"s_waitcnt vmcnt({vm.n_after(('B', i))})")
        ar = AF + 8 * i if i < 14 else FI + 8 * (i - 14)
        for S in range(2):
            for t in range(2): mfma(a, acc(t, S), ar + 4 * t, breg[i] + 4 * S, 0 if i == 0 else None)
        free.append(breg[i])
        if i < 14: free.append(ar)
        while bload(): pass
        if nxt[0] == 17 and last_r is None and free:
            last_r = free.pop(0)
            a.e(f"s_min_u32 s{sT1}, s{sW}, 4\ns_sub_u32 s{sT1}, s{sT1}, s{sW}\ns_add_u32 s{sT1}, s{sT1}, 24\ns_lshl_b32 s{sT1}, s{sT1}, 10\ns_add_u32 s{sT1}, s{sT1}, s{sT2}")
            for S in range(2):
                a.e(f"s_add_u32 s{sT0}, s{sT1}, {S*NSTEP*1024}")
                a.e(f"buffer_load_dwordx4 v[{last_r+4*S}:{last_r+4*S+3}], v{L16}, s[{SHZ}:{SHZ+3}], s{sT0} offen {ld_flags}")
                vm.add(("B", 17))
    L = a.label("skipz")
    a.e(f"s_waitcnt vmcnt(0)\ns_cmp_gt_u32 s{sW}, 4\ns_cbranch_scc1 {L}")
    for S in range(2):
        for t in range(2): mfma(a, acc(t, S), FI + 24 + 4 * t, last_r + 4 * S)
    a.e(f"{L}:")
    ts.stamp(a, tsb + 2)
    a.e(f"v_add_u32 v7, s{sLW}, v{L16}\ns_nop 9")
    for S in range(2):
        for t in range(2):
            for q in range(4):
                r = acc(t, S) + 4 * q
                a.e(f"ds_write_b128 v7, v[{r}:{r+3}] offset:{(S*8 + t*4 + q)*1088}")
    a.e("s_waitcnt lgkmcnt(0)\ns_barrier")
    R = AF
    a.e(f"v_add_u32 v7, {4*20480}, v6")
    for w in range(8):
        for hi in range(2):
            r = R + 8 * w + 4 * hi
            a.e(f"ds_read_b128 v[{r}:{r+3}], v{6 if w < 4 else 7} offset:{(w&3)*20480 + hi*512}")
    X = P
    for e in range(4):
        a.e(f"v_lshlrev_b32 v{X+2*e}, 16, v{XR+e}\nv_and_b32 v{X+2*e+1}, 0xffff0000, v{XR+e}")
    for w in range(8):
        a.e(f"s_waitcnt lgkmcnt({14-2*w})")
        for e in range(4): a.e(f"v_pk_add_f32 v[{X+2*e}:{X+2*e+1}], v[{X+2*e}:{X+2*e+1}], v[{R+8*w+2*e}:{R+8*w+2*e+1}]")
    for e in range(4): a.e(f"v_cvt_pk_bf16_f32 v{XR+e}, v{X+2*e}, v{X+2*e+1}")
    a.e(f"buffer_store_dwordx4 v[{XR}:{XR+3}], v5, s[{SOUT}:{SOUT+3}], 0 offen")
    ts.stamp(a, tsb + 3)

def header():
    ref = open(f"cdna_kernels/{NAME}.s.ref").read().split("\n")
    return "\n".join(l for l in ref if l.startswith(";") and "@launch" not in l)

def gen_v1(tson=False):
    a = Asm()
    ts = TS(tson)
    a.add_launch("g1_kernel", 224, 512, LDS_BYTES)
    a.add_launch("aux_kernel", 29, 512, LDS_BYTES)
    a.add_launch("g2_kernel", 224, 512, LDS_BYTES)
    a.begin_kernel("g1_kernel")
    ts.stamp(a, 0)
    a.e("s_cmp_ge_u32 s2, 224\ns_cbranch_scc1 G1_END")
    load_args(a)
    vm = g1_prologue(a, ts, "")
    a.e(f"s_cmp_eq_u32 s{sFG}, 1\ns_cbranch_scc1 G1_R1")
    g1_role(a, 0, vm, ts, "")
    a.e("s_branch G1_FIN\nG1_R1:")
    g1_role(a, 1, vm, ts, "")
    a.e("G1_FIN:")
    ts.store(a, 0)
    a.e("G1_END:\ns_endpgm")
    a.end_kernel("g1_kernel", 256, sgpr=102)
    a.begin_kernel("aux_kernel")
    ts.stamp(a, 0)
    a.e("s_cmp_ge_u32 s2, 29\ns_cbranch_scc1 AUX_END")
    load_args(a)
    a.e(f"s_mov_b32 s{sA}, s2")
    aux_body(a, ts, "", "")
    ts.store(a, 224)
    a.e("AUX_END:\ns_endpgm")
    a.end_kernel("aux_kernel", 256, sgpr=102)
    a.begin_kernel("g2_kernel")
    ts.stamp(a, 0)
    a.e("s_cmp_ge_u32 s2, 224\ns_cbranch_scc1 G2_END")
    load_args(a)
    wave_ids(a)
    g_ids(a)
    a.e("s_waitcnt lgkmcnt(0)")
    a.srd(SX, 4, 2048 * 896)
    a.srd(SHZ, 22, HZ_BYTES, HZ_OFF)
    g2_body(a, ts, "")
    ts.store(a, 256)
    a.e("G2_END:\ns_endpgm")
    a.end_kernel("g2_kernel", 256, sgpr=102)
    return a.text(header())

if __name__ == "__main__":
    open("t/v1.s", "w").write(gen_v1(False))
    open("t/v1ts.s", "w").write(gen_v1(True))
```

```python
import re, copy
MODRE = re.compile(r"\b(op_sel|op_sel_hi|neg_lo|neg_hi|quad_perm):\[[^\]]*\]")
TRANS = ("v_exp_", "v_log_", "v_rcp_", "v_rsq_", "v_sqrt_", "v_sin_", "v_cos_")
def regs(op):
    op = op.strip().lstrip("-").strip("|")
    m = re.fullmatch(r"v\[(\d+):(\d+)\]", op)
    if m: return set(range(int(m[1]), int(m[2]) + 1)), set()
    m = re.fullmatch(r"v(\d+)", op)
    if m: return {int(m[1])}, set()
    m = re.fullmatch(r"s\[(\d+):(\d+)\]", op)
    if m: return set(), {f"s{i}" for i in range(int(m[1]), int(m[2]) + 1)}
    if re.fullmatch(r"s\d+", op): return set(), {op}
    if op in ("vcc", "vcc_lo", "vcc_hi"): return set(), {"vcc"}
    if op in ("exec", "exec_lo", "exec_hi"): return set(), {"exec"}
    if op == "m0": return set(), {"m0"}
    return set(), set()

class Ins:
    def __init__(s, text):
        s.text = text
        t = MODRE.sub("", text.split(";")[0]).strip()
        p = t.split(None, 1)
        s.mn = mn = p[0]
        ops = [o.strip() for o in p[1].split(",")] if len(p) > 1 else []
        mods = []
        if ops:
            q = ops[-1].split()
            ops[-1] = q[0] if q else ""
            mods = q[1:]
        s.ops, s.mods = ops, mods
        R = [regs(o) for o in ops]
        s.vw, s.vr, s.sw, s.sr = set(), set(), set(), set()
        def rd(lst):
            for v, g in lst: s.vr |= v; s.sr |= g
        def wr(x): s.vw |= x[0]; s.sw |= x[1]
        s.passes = 0
        if mn.startswith("v_mfma"):
            s.kind = "mfma"
            s.passes = 8 if "32x32x16" in mn else 4 if "16x16x32" in mn else 2 if "4x4x4" in mn else None
            wr(R[0]); rd(R[1:]); s.ab = R[1][0] | R[2][0]; s.c = R[3][0]
        elif mn.startswith("v_"):
            s.kind = "valu"
            if mn == "v_nop": pass
            elif "permlane" in mn and "swap" in mn: wr(R[0]); wr(R[1]); rd(R)
            else:
                wr(R[0]); rd(R[1:])
                if mn.startswith(("v_fmac", "v_dot2c", "v_mac")) or "_dpp" in mn or "_sdwa" in mn or "writelane" in mn: rd(R[:1])
        elif mn.startswith("ds_"):
            s.kind = "ds"
            if mn.startswith("ds_read"): wr(R[0]); rd(R[1:])
            else: rd(R)
        elif mn.startswith(("buffer_", "global_")):
            s.kind = "vm"
            if "load" in mn and "lds" not in mods: wr(R[0]); rd(R[1:])
            else: rd(R)
        elif mn.startswith("s_"):
            s.kind = "salu"
            if mn.startswith(("s_cmp", "s_waitcnt", "s_barrier", "s_branch", "s_cbranch", "s_nop", "s_sleep", "s_setprio", "s_endpgm", "s_bitcmp")): rd(R)
            else: wr(R[0]); rd(R[1:])
            if mn.startswith("s_cbranch_vcc"): s.sr.add("vcc")
        else: raise ValueError(text)
        s.trans = mn.startswith(TRANS)
        s.dot = mn.startswith("v_dot")
        s.dma = s.kind == "vm" and "lds" in mods
        s.wide = s.kind == "vm" and "store" in mn and ("x4" in mn or "x3" in mn)
        if s.wide: s.data = R[0][0]
    def cost(s):
        if s.kind == "valu": return 8 if s.trans else 14 if s.dot else 4
        if s.kind == "mfma": return 8
        return 2

P3 = {2: 0, 4: 1, 8: 2}
def need(p, c):
    n = 0
    if p.kind == "valu":
        if c.kind == "mfma" and p.vw & c.vr: n = max(n, 3 if p.dot else 2)
        if c.kind == "valu":
            if p.trans and not c.trans and p.vw & c.vr: n = max(n, 1)
            if p.dot and p.vw & (c.vr | c.vw) and not (c.mn == p.mn and not (p.vw & (regs(c.ops[1])[0] | regs(c.ops[2])[0]))): n = max(n, 3)
            if p.vw & c.vr:
                if "permlane" in c.mn or "_dpp" in c.mn: n = max(n, 2)
                if "readfirstlane" in c.mn or "readlane" in c.mn: n = max(n, 1)
                if "_sdwa" in p.mn: n = max(n, 1)
            if p.sw & c.sr: n = max(n, 4 if "lane" in c.mn else 2)
        if c.kind in ("vm", "ds"):
            if p.sw & c.sr: n = max(n, 5)
            if (p.trans or p.dot) and p.vw & c.vr: n = max(n, 3 if p.dot else 1)
        if c.kind == "salu" and p.sw & c.sr: n = max(n, 4 if c.mn.startswith("s_cbranch") else 2)
    elif p.kind == "mfma":
        i = P3[p.passes]
        if c.kind == "mfma":
            if p.vw & c.ab: n = max(n, (5, 8, 12)[i])
            if p.vw & c.c:
                if p.vw == c.c and p.passes == c.passes: n = max(n, (2, 0, 0)[i])
                else: n = max(n, (4, 6, 10)[i])
            if p.vw & c.vw and not (p.vw & c.c): n = max(n, (5, 8, 12)[i])
        elif p.vw & (c.vr | c.vw): n = max(n, (5, 8, 12)[i])
        if c.kind != "mfma" and p.c & c.vw: n = max(n, (1, 3, 7)[i])
    elif p.kind == "salu":
        if "m0" in p.sw and (c.dma or "addtid" in c.mn): n = max(n, 1)
    elif p.kind == "vm":
        if p.wide and p.data & c.vw: n = max(n, 2)
    return n

class K:
    def __init__(s):
        s.lines = []; s.vm = []; s.lg = []; s.hist = []; s._lab = 0; s.nops = 0; s.lvl = 0; s.lognop = False
    def snap(s): return (list(s.vm), list(s.lg), list(s.hist))
    def restore(s, st): s.vm, s.lg, s.hist = list(st[0]), list(st[1]), list(st[2])
    def label(s, b="L"):
        s._lab += 1; return f"{b}_{s._lab}"
    def raw(s, l): s.lines.append(l)
    def _age(s, n): s.hist = [(p, a + n) for p, a in s.hist if a + n < 13]
    def _cnt(s, q, idx):
        return sum(1 for e in q[idx + 1:] if not e["opt"])
    def _emit_wait(s, nv, nl):
        parts = []
        if nv is not None: parts.append(f"vmcnt({min(nv, 63)})")
        if nl is not None: parts.append(f"lgkmcnt({min(nl, 15)})")
        if parts: s.lines.append("    s_waitcnt " + " ".join(parts)); s._age(1)
    def _wait_idx(s, iv, il):
        nv = nl = None
        if iv is not None: nv = s._cnt(s.vm, iv); s.vm = s.vm[iv + 1:]
        if il is not None: nl = s._cnt(s.lg, il); s.lg = s.lg[il + 1:]
        s._emit_wait(nv, nl)
    def wait(s, vm=None, lg=None):
        def find(q, t):
            if t is None or not q: return None
            if t == "all": return len(q) - 1
            idx = [i for i, e in enumerate(q) if e["tag"] == t]
            return idx[-1] if idx else None
        s._wait_idx(find(s.vm, vm), find(s.lg, lg))
    def e(s, text, tag=None):
        c = 0
        for l in text.split("\n"):
            l = l.strip()
            if not l: continue
            if l.endswith(":") or l.startswith((";", ".")): s.lines.append(l); continue
            c += s._ins(l, tag)
        return c
    def _ins(s, l, tag):
        c = Ins(l)
        if c.mn == "s_waitcnt":
            m = re.search(r"vmcnt\((\d+)\)", l)
            if m: assert m[1] == "0"; s.vm = []
            m = re.search(r"lgkmcnt\((\d+)\)", l)
            if m: assert m[1] == "0"; s.lg = []
        touched = c.vr | c.vw
        def last(q, same):
            idx = [i for i, e in enumerate(q) if e["regs"] & (c.vr if same else touched)]
            return idx[-1] if idx else None
        s._wait_idx(last(s.vm, c.kind == "vm"), last(s.lg, c.kind == "ds"))
        n = max([need(p, c) - a for p, a in s.hist] + [0])
        if n > 0:
            s.lines.append(f"    s_nop {n-1}"); s._age(n); s.nops += n
            if s.lognop: print("  nop", n, "before", l)
        s.lines.append("    " + l)
        s._age(int(c.ops[0]) + 1 if c.mn == "s_nop" else 1)
        s.hist.append((c, 0))
        if c.kind == "vm": s.vm.append(dict(tag=tag, regs=set(c.vw), opt=False))
        if c.kind == "ds": s.lg.append(dict(tag=tag, regs=set(c.vw), opt=False))
        return c.cost()
    def cond_begin(s):
        s._cs = s.snap(); s._cv = {id(e) for e in s.vm + s.lg}
    def cond_end(s):
        vm0, lg0, h0 = s._cs
        nv = [dict(e, opt=True) for e in s.vm if id(e) not in s._cv]
        nl = [dict(e, opt=True) for e in s.lg if id(e) not in s._cv]
        s.vm, s.lg = vm0 + nv, lg0 + nl
        s.hist = s.hist + h0
    def srd(s, d, base, nbytes, off=0):
        if off: s.e(f"s_add_u32 s{d}, s{base}, {off:#x}\ns_addc_u32 s{d+1}, s{base+1}, 0")
        else: s.e(f"s_mov_b64 s[{d}:{d+1}], s[{base}:{base+1}]")
        s.e(f"s_mov_b32 s{d+2}, {nbytes:#x}\ns_mov_b32 s{d+3}, 0x20000")

class Fill:
    def __init__(s): s.g = []; s.t = 0
    def add(s, gen, at=0): s.g.append([gen, at])
    def run(s, budget):
        while budget > 0:
            act = [x for x in s.g if x[1] <= s.t]
            if not act: return
            x = act[0]
            try: r = next(x[0])
            except StopIteration: s.g.remove(x); continue
            if isinstance(r, tuple): x[1] = r[1]
            else: budget -= r
    def drain(s):
        s.t = 1 << 30
        while s.g: s.run(1000)
```

```python
import struct, sys
from asm2 import K, Fill
NAME = "parallel_sum__spectral_gfnet__glu_gated_bilinear__prompt"
def fh(x): return "0x%08x" % struct.unpack("<I", struct.pack("<f", x))[0]
MB = 1 << 20
QT, WT, CSO, FL, HO, ZT = 0, 2 * MB, 4 * MB, 4 * MB + MB // 2, 5 * MB, 12 * MB
WS_BYTES = ZT + 225 * 8192
FQ, FW, FH, FZ, EPOCH = FL, FL + 4096, FL + 8192, FL + 32768, FL + 65536
TS_OFF = 200 * MB
LDS_BYTES = 160 * 1024
F_LDS, QX, MISC = 131072, 147456, 159744
FCS_L, ST_L = MISC, MISC + 2048
EX1, EX2 = 147456, 155648
WDR = 65536
SX, SWG, SWU, SWD, SWS, SOUT, SC = 24, 28, 32, 36, 40, 44, 48
sW, sSG, sRT, sFT, sST, sDT, sCOL, sTAG, sS2, sA, sB, sCNT, sLW, sLD, sT0, sT1, sT2, sT3, sT4, sT5, sU0, sU1 = range(52, 74)
sM = 74
sTS = 82
OPT = set()
TRB, M4, RS2, VWG, VWU, VD, TB, VTAG, TMP = 2, 4, 8, 9, 10, 11, 12, 14, 16
AB, ACC1, ACC2, WD1, XF = 24, 40, 72, 104, 144
SC1 = "sc1"

def R(b, n=4): return f"v[{b}:{b+n-1}]"
def S4(b): return f"s[{b}:{b+3}]"
def mf32(d, A, B, c0=False): return f"v_mfma_f32_32x32x16_bf16 {R(d,16)}, {R(A)}, {R(B)}, {'0' if c0 else R(d,16)}"
def mf16(d, A, B, c0=False): return f"v_mfma_f32_16x16x32_bf16 {R(d)}, {R(A)}, {R(B)}, {'0' if c0 else R(d)}"
def mf4(d, A, B, c0=False): return f"v_mfma_f32_4x4x4_16b_bf16 {R(d)}, {R(A,2)}, {R(B,2)}, {'0' if c0 else R(d)}"

class G:
    def __init__(s, tson):
        s.k = K(); s.tson = tson
    def stamp(s, i):
        if s.tson: s.k.e(f"{'s_memtime' if 'cyc' in OPT else 's_memrealtime'} s[{sTS+2*i}:{sTS+2*i+1}]")
    def ts_store(s):
        if not s.tson: return
        k = s.k
        k.e("s_waitcnt vmcnt(0) lgkmcnt(0)")
        k.srd(SC, 22, MB, TS_OFF)
        for i in range(10): k.e(f"v_mov_b32 v{8+i}, s{sTS+2*i}")
        k.e(f"s_lshl_b32 s{sT0}, s2, 3\ns_add_u32 s{sT0}, s{sT0}, s{sW}\ns_lshl_b32 s{sT0}, s{sT0}, 6\ns_mov_b64 exec, 1")
        for i in range(3): k.e(f"buffer_store_dwordx4 {R(8+4*i)}, off, {S4(SC)}, s{sT0} offset:{16*i}")
    def seq(s, text, tag=None):
        for l in text.split("\n"):
            if l.strip(): yield s.k.e(l, tag)
    def flag(s, soff):
        return s.k.e(f"s_mov_b64 exec, 1\nbuffer_store_dword v{VTAG}, off, {S4(SWS)}, s{soff} {SC1}\ns_mov_b64 exec, -1", "flag")
    def check(s, tagregs, reload):
        k = s.k
        def chk():
            for i, r in enumerate(tagregs): k.e(f"v_cmp_ne_u32 s[{sM+2*i}:{sM+2*i+1}], s{sTAG}, v{r}")
            if len(tagregs) == 1: k.e(f"s_cmp_lg_u64 s[{sM}:{sM+1}], 0")
            for i in range(1, len(tagregs)): k.e(f"s_or_b64 s[{sM}:{sM+1}], s[{sM}:{sM+1}], s[{sM+2*i}:{sM+2*i+1}]")
        ok, lp = k.label("ok"), k.label("spin")
        chk()
        k.e(f"s_cbranch_scc0 {ok}")
        k.cond_begin()
        k.e(f"{lp}:\ns_sleep 1\n{reload}\ns_waitcnt vmcnt(0)\ns_add_u32 s{sCNT}, s{sCNT}, 1\ns_cmp_ge_u32 s{sCNT}, 0x4000\ns_cbranch_scc1 {ok}")
        chk()
        k.e(f"s_cbranch_scc1 {lp}")
        k.cond_end()
        k.e(f"{ok}:")
        return 16
    def get_tag(s):
        s.k.e(f"s_or_b32 s{sTAG}, s{sTAG}, 0x40004000\ns_add_u32 s{sTAG}, s{sTAG}, 1\ns_and_b32 s{sTAG}, s{sTAG}, 0xbfffbfff\nv_mov_b32 v{VTAG}, s{sTAG}\ns_mov_b32 s{sCNT}, 0")
    def load_epoch(s):
        s.k.e(f"s_add_u32 s{sT4}, s22, {EPOCH:#x}\ns_addc_u32 s{sT5}, s23, 0\ns_load_dword s{sTAG}, s[{sT4}:{sT5}], 0")

    def gen_F(s, role):
        k = s.k; T = TMP; B = ACC1
        k.e(f"""v_bfe_u32 v{T}, v1, 1, 4
        s_lshl_b32 s{sT0}, s{sFT}, 4
        v_add_u32 v{T}, s{sT0}, v{T}
        v_and_b32 v{T+1}, 1, v1
        v_lshl_add_u32 v{T+2}, v{T}, 1, v{T+1}
        v_cmp_eq_u32 vcc, 1, v{T+2}
        v_mov_b32 v{T+3}, 224
        v_cvt_f32_u32 v{T+1}, v{T+1}
        v_cndmask_b32 v{T}, v{T}, v{T+3}, vcc
        v_mul_f32 v{T+1}, 0x3e800000, v{T+1}
        v_cvt_f32_u32 v{T}, v{T}
        v_cndmask_b32 v{T+1}, v{T+1}, 0, vcc
        v_mul_f32 v{T}, {fh(1/448)}, v{T}
        v_lshrrev_b32 v{T+2}, 5, v1
        v_lshlrev_b32 v{T+2}, 3, v{T+2}
        s_lshl_b32 s{sT0}, s{sW}, 4
        v_add_u32 v{T+2}, s{sT0}, v{T+2}
        v_cvt_f32_u32 v{T+2}, v{T+2}
        v_fmac_f32 v{T+1}, v{T}, v{T+2}
        v_lshlrev_b32 v{T+3}, 4, v0
        v_add_u32 v{T+3}, {F_LDS}, v{T+3}
        v_mov_b32 v{T+2}, 0
        s_mov_b32 s{sT0}, 0x3f803f80""")
        for i in range(4 - role):
            r = B + 8 * (i & 1)
            for j in range(8):
                if 128 * i + j == 0: k.e(f"v_cos_f32 v{r}, v{T+1}")
                else: k.e(f"v_fmamk_f32 v{r+j}, v{T}, {fh(128*i+j)}, v{T+1}\nv_cos_f32 v{r+j}, v{r+j}")
            o = B + 16 + 4 * (i & 1)
            for j in range(4): k.e(f"v_cvt_pk_bf16_f32 v{o+j}, v{r+2*j}, v{r+2*j+1}")
            k.e(f"ds_write_b128 v{T+3}, {R(o)} offset:{i*8192}")
            for j in range(4): k.e(f"v_dot2c_f32_bf16 v{T+2}, s{sT0}, v{o+j}")
        k.e(f"v_lshlrev_b32 v{T+3}, 2, v0\nv_add_u32 v{T+3}, {FCS_L}, v{T+3}\nds_write_b32 v{T+3}, v{T+2}")
    def addrs(s, role, XRD):
        k = s.k; T = ACC2
        k.e(f"""v_and_b32 v{T}, 31, v1
        v_bfe_u32 v{T+1}, v1, 1, 3
        v_lshrrev_b32 v{T+2}, 5, v1
        v_xor_b32 v{T+1}, v{T+1}, v{T+2}
        v_lshlrev_b32 v{T+1}, 4, v{T+1}
        v_lshl_add_u32 v{XRD}, v{T}, 7, v{T+1}
        s_lshl_b32 s{sT0}, s{sSG}, 12
        s_add_u32 s{sT0}, s{sT0}, 16384
        v_add_u32 v{XRD}, s{sT0}, v{XRD}
        v_xor_b32 v{XRD+1}, 32, v{XRD}
        v_xor_b32 v{XRD+2}, 64, v{XRD}
        v_xor_b32 v{XRD+3}, 96, v{XRD}""")
        k.e(f"""v_bfe_u32 v{T}, v1, 4, 1
        v_bfe_u32 v{T+1}, v1, 2, 2
        v_lshl_add_u32 v{T+3}, v{T+2}, 3, v{T+1}
        v_lshlrev_b32 v{T+3}, 7, v{T+3}
        v_lshl_add_u32 v{TRB}, v{T}, 13, v{T+3}
        v_and_or_b32 v{T+4}, v{T+1}, 2, v{T}
        v_lshl_add_u32 v{TRB}, v{T+4}, 5, v{TRB}
        v_and_b32 v{T+4}, 3, v1
        v_lshl_add_u32 v{TRB}, v{T+4}, 3, v{TRB}""")
        if role: k.e(f"v_xor_b32 v{TRB}, 64, v{TRB}")
        k.e(f"v_xor_b32 v{TRB+1}, 32, v{TRB}")
        k.e(f"""v_lshl_add_u32 v{TB}, v{T+2}, 2, v{T+1}
        v_lshlrev_b32 v{TB}, 7, v{TB}
        v_bfe_u32 v{T+3}, v1, 3, 1
        v_lshl_add_u32 v{TB}, v{T+3}, 6, v{TB}
        v_lshl_add_u32 v{TB}, v{T}, 5, v{TB}
        v_lshl_add_u32 v{TB}, v{T+4}, 3, v{TB}
        s_mul_i32 s{sLD}, s{sW}, 10240
        s_add_u32 s{sLD}, s{sLD}, {WDR}
        v_add_u32 v{TB}, s{sLD}, v{TB}
        v_xor_b32 v{TB+1}, 64, v{TB}""")
        k.e(f"""v_lshrrev_b32 v{T+1}, 3, v1
        v_mul_u32_u24 v{VD}, 896, v{T+1}
        v_lshlrev_b32 v{T}, 2, v{T}
        v_and_b32 v{T+3}, 7, v1
        v_xor_b32 v{T}, v{T}, v{T+3}
        v_lshl_add_u32 v{VD}, v{T}, 4, v{VD}
        s_mul_i32 s{sT0}, s{sW}, {112*896}
        s_lshl_b32 s{sT1}, s{sDT}, 7
        s_add_u32 s{sT0}, s{sT0}, s{sT1}
        v_add_u32 v{VD}, s{sT0}, v{VD}
        v_mov_b32 v{M4+1}, 0
        v_mov_b32 v{M4+3}, 0
        v_lshlrev_b32 v1, 4, v1""")
    def w_dma(s, i):
        k = s.k; P, ii = divmod(i, 7); slot = i & 3
        so = 64 * ii * 3584 + 1792 * P
        for u in range(2):
            c = k.e(f"s_add_u32 m0, s{sLW}, {slot*16384 + u*8192}\ns_mov_b32 s{sT4}, {so}")
            yield c + 6 + k.e(f"buffer_load_dwordx4 v{VWU if u else VWG}, {S4(SWU if u else SWG)}, s{sT4} offen lds", ("W", i))
            c = k.e(f"s_add_u32 m0, s{sLW}, {slot*16384 + u*8192}\ns_mov_b32 s{sT4}, {so + 8*3584 - 1024}")
            yield c + 6 + k.e(f"buffer_load_dwordx4 v{VWU if u else VWG}, {S4(SWU if u else SWG)}, s{sT4} offen offset:1024 lds", ("W", i))
    def wd_dma(s, q, slot):
        k = s.k
        for hh in range(2):
            so = (16 * (q % 7) + 896 * (q // 7) + 8 * hh) * 896
            c = k.e(f"s_add_u32 m0, s{sLD}, {slot*2048 + hh*1024}\ns_mov_b32 s{sT4}, {so}")
            yield c + 6 + k.e(f"buffer_load_dwordx4 v{VD}, {S4(SWD)}, s{sT4} offen lds", ("D", q))
    def wd_rd(s, q, slot, r):
        k = s.k
        k.wait(vm=("D", q))
        for t in range(2):
            for hh in range(2):
                yield 2 + k.e(f"ds_read_b64_tr_b16 {R(r+4*t+2*hh, 2)}, v{TB+t} offset:{slot*2048 + hh*1024}", "wdr")
    def split_hilo(s, dst, src, t):
        return f"""v_cvt_pk_bf16_f32 v{t}, v{src}, v{src}
        v_and_b32 v{t}, 0xffff0000, v{t}
        v_sub_f32 v{t}, v{src}, v{t}
        v_cvt_pk_bf16_f32 v{dst}, v{src}, v{t}"""

    T12, T32, QR, WRAW, TW, WF = 152, 184, 200, 216, 220, 228
    VQ, VZ, VP = 15, 9, 10
    def fft_tables(s, at):
        k = s.k; T = TMP
        yield from s.seq(f"""s_and_b32 s{sA}, s{sW}, 3
        s_lshr_b32 s{sB}, s{sW}, 2
        v_bfe_u32 v{T}, v1, 4, 4
        s_lshl_b32 s{sU0}, s{sA}, 4
        v_add_u32 v{T}, s{sU0}, v{T}
        v_cvt_f32_u32 v{T}, v{T}
        v_mul_f32 v{T}, {fh(1/64)}, v{T}
        v_lshrrev_b32 v{T+1}, 8, v1
        v_lshlrev_b32 v{T+1}, 2, v{T+1}
        v_cvt_f32_u32 v{T+1}, v{T+1}
        v_mul_f32 v{T+2}, v{T+1}, v{T}""")
        def pair(d, iq, base, c0):
            for h in range(2):
                for jj in range(2): yield from s.seq(f"v_fmamk_f32 v{T+4+jj}, v{iq}, {fh(c0+2*h+jj)}, v{base}\nv_sin_f32 v{T+6+jj}, v{T+4+jj}\nv_cos_f32 v{T+4+jj}, v{T+4+jj}")
                for jj in range(2): yield from s.seq(f"v_cvt_pk_bf16_f32 v{d+2*h+jj}, v{T+4+jj}, v{T+6+jj}\nv_cvt_pk_bf16_f32 v{d+4+2*h+jj}, -v{T+6+jj}, v{T+4+jj}")
        for kk in range(4):
            yield at(3 + 2 * kk)
            yield from pair(s.T12 + 8 * kk, T, T + 2, 16 * kk)
        yield from s.seq(f"""v_bfe_u32 v{T+3}, v1, 4, 4
        s_lshl_b32 s{sU0}, s{sB}, 4
        v_add_u32 v{T+3}, s{sU0}, v{T+3}
        v_cvt_f32_u32 v{T+3}, v{T+3}
        v_mul_f32 v{T+3}, {fh(1/32)}, v{T+3}
        s_xor_b32 s{sU1}, s{sU0}, 16
        v_cvt_f32_u32 v{T+2}, s{sU1}
        v_add_f32 v{T+2}, v{T+2}, v{T+1}
        v_mul_f32 v{T+2}, v{T+2}, v{T+3}""")
        yield at(11)
        yield from pair(s.T32, T + 3, T + 2, 0)
        yield from s.seq(f"""s_lshl_b32 s{sU0}, s{sB}, 4
        v_cvt_f32_u32 v{T+2}, s{sU0}
        v_add_f32 v{T+1}, v{T+2}, v{T+1}
        v_mul_f32 v{T+2}, v{T+1}, v{T+3}""")
        yield at(13)
        yield from pair(s.T32 + 8, T + 3, T + 2, 0)
        NINV = 1.0 / (2048 * 448)
        yield from s.seq(f"""v_mul_f32 v{T}, {fh(1/32)}, v{T}
        v_mul_f32 v{T+2}, v{T+1}, v{T}""")
        yield k.e(f"""s_cmp_eq_u32 s{sCOL}, 0
        s_cselect_b32 s{sU0}, 224, s{sCOL}
        s_cmp_eq_u32 s{sU0}, 224
        s_mov_b32 s{sU1}, {fh(NINV)}
        s_cselect_b32 s{sU0}, s{sU1}, {fh(2*NINV)}
        v_mov_b32 v{T+3}, s{sU0}""")
        yield at(20)
        for i in range(4): yield from s.seq(f"v_fmamk_f32 v{T+4}, v{T}, {fh(i)}, v{T+2}\nv_sin_f32 v{s.TW+4+i}, v{T+4}\nv_cos_f32 v{s.TW+i}, v{T+4}")
        for i in range(8): yield from s.seq(f"v_mul_f32 v{s.TW+i}, v{T+3}, v{s.TW+i}")
    def fft_loads(s, at, PA, PD):
        k = s.k
        yield from s.seq(f"""v_and_b32 v{s.VQ}, 0x300, v1
        v_add_u32 v{s.VQ}, v{s.VQ}, v1""")
        yield at(12)
        c = k.e(f"""s_lshr_b32 s{sT0}, s{sCOL}, 2
        s_and_b32 s{sT1}, s{sT0}, 7
        s_lshl_b32 s{sT1}, s{sT1}, 7
        s_add_u32 s{sT1}, s{sT1}, {FW}
        s_cmp_eq_u32 s{sCOL}, 224
        s_cselect_b32 s{sT0}, 0, s{sT0}
        s_lshl_b32 s{sT0}, s{sT0}, 6
        s_add_u32 s{sT0}, s{sT0}, {FQ}
        v_lshrrev_b32 v{PA}, 2, v1
        v_and_b32 v{PD}, 60, v{PA}
        v_add_u32 v{PD}, s{sT0}, v{PD}
        v_add_u32 v{PA}, s{sT1}, v{PA}
        s_mov_b32 exec_lo, 0
        v_mov_b32 v{PA}, v{PD}
        s_mov_b32 exec_lo, -1""")
        yield c
        rl = f"buffer_load_dword v{PD}, v{PA}, {S4(SWS)}, 0 offen {SC1}"
        yield k.e(rl)
        yield at(18)
        yield s.check([PD], rl)
        yield k.e(f"""s_lshl_b32 s{sT2}, s{sCOL}, 13
        s_lshl_b32 s{sT0}, s{sB}, 8
        s_add_u32 s{sT2}, s{sT2}, s{sT0}
        s_add_u32 s{sT3}, s{sT2}, 4096""")
        for kk in range(4):
            yield 4 + k.e(f"buffer_load_dwordx4 {R(s.QR+4*kk)}, v{s.VQ}, {S4(SWS)}, s{sT3 if kk >= 2 else sT2} offen offset:{(kk&1)*2048} {SC1}")
        yield k.e(f"""s_lshl_b32 s{sT0}, s{sA}, 11
        s_add_u32 s{sT2}, s{sT2}, s{sT0}
        s_add_u32 s{sT2}, s{sT2}, {WT}
        buffer_load_dwordx4 {R(s.WRAW)}, v{s.VQ}, {S4(SWS)}, s{sT2} offen {SC1}""")
    def fft_run(s, mid=None):
        k = s.k; XR, XI, Y, T = AB, AB + 4, AB + 8, TMP
        for i in range(4): k.e(f"v_lshlrev_b32 v{s.WF+i}, 16, v{s.WRAW+i}\nv_and_b32 v{s.WF+4+i}, 0xffff0000, v{s.WRAW+i}")
        for kk in range(4):
            k.e(mf16(XR, s.T12 + 8 * kk, s.QR + 4 * kk, kk == 0)); k.e(mf16(XI, s.T12 + 8 * kk + 4, s.QR + 4 * kk, kk == 0))
        k.e(f"""s_lshl_b32 s{sT0}, s{sW}, 10
        s_add_u32 s{sT0}, s{sT0}, {EX1}
        v_add_u32 v{T+6}, s{sT0}, v1
        s_lshl_b32 s{sT0}, s{sB}, 12
        s_add_u32 s{sT0}, s{sT0}, {EX1}
        v_add_u32 v{T+7}, s{sT0}, v1
        v_bfe_u32 v{s.VZ}, v1, 4, 4
        v_lshlrev_b32 v{s.VZ}, 7, v{s.VZ}
        v_lshrrev_b32 v{T}, 8, v1
        v_lshl_add_u32 v{s.VZ}, v{T}, 4, v{s.VZ}""")
        for i in range(4):
            a2, a3 = T + 2 * (i & 1), T + 1 + 2 * (i & 1)
            k.e(f"""v_mul_f32 v{a2}, v{XR+i}, v{s.WF+i}
            v_mul_f32 v{a3}, v{XR+i}, v{s.WF+4+i}
            v_fma_f32 v{a2}, -v{XI+i}, v{s.WF+4+i}, v{a2}
            v_fmac_f32 v{a3}, v{XI+i}, v{s.WF+i}
            v_cvt_pk_bf16_f32 v{Y+i}, v{a2}, -v{a3}""")
        k.e(f"ds_write_b128 v{T+6}, {R(Y)}\ns_waitcnt lgkmcnt(0)\ns_barrier")
        for kk in range(4): k.e(f"ds_read_b128 {R(s.QR+4*kk)}, v{T+7} offset:{kk*1024}")
        if mid: mid(0)
        for kk in range(4):
            k.e(mf16(XR, s.QR + 4 * kk, s.T12 + 8 * kk, kk == 0)); k.e(mf16(XI, s.QR + 4 * kk, s.T12 + 8 * kk + 4, kk == 0))
        k.e(f"""v_xor_b32 v{T+7}, 4096, v{T+6}
        s_lshl_b32 s{sT2}, s{sCOL}, 13
        s_lshl_b32 s{sT0}, s{sA}, 11
        s_add_u32 s{sT2}, s{sT2}, s{sT0}
        s_lshl_b32 s{sT1}, s{sB}, 6
        s_add_u32 s{sT2}, s{sT2}, s{sT1}
        s_add_u32 s{sT2}, s{sT2}, {ZT}
        s_lshl_b32 s{sT3}, s{sCOL}, 3
        s_add_u32 s{sT3}, s{sT3}, s{sT0}
        s_lshl_b32 s{sT1}, s{sB}, 2
        s_add_u32 s{sT3}, s{sT3}, s{sT1}
        s_add_u32 s{sT3}, s{sT3}, {FZ}""")
        for i in range(4):
            a2, a3 = T + 2 * (i & 1), T + 1 + 2 * (i & 1)
            k.e(f"""v_mul_f32 v{a2}, v{XR+i}, v{s.TW+i}
            v_mul_f32 v{a3}, v{XI+i}, v{s.TW+i}
            v_fmac_f32 v{a2}, v{XI+i}, v{s.TW+4+i}
            v_fma_f32 v{a3}, -v{XR+i}, v{s.TW+4+i}, v{a3}
            v_cvt_pk_bf16_f32 v{Y+i}, v{a2}, v{a3}""")
        k.e(f"ds_write_b128 v{T+6}, {R(Y)} offset:8192")
        k.e(mf16(XR, s.T32 + 8, Y, True)); k.e(mf16(XI, s.T32 + 12, Y, True))
        k.e(f"s_waitcnt lgkmcnt(0)\ns_barrier\nds_read_b128 {R(Y+4)}, v{T+7} offset:8192")
        if mid: mid(1)
        k.e(mf16(XR, s.T32, Y + 4)); k.e(mf16(XI, s.T32 + 4, Y + 4))
        for i in range(4): k.e(f"v_cvt_pk_bf16_f32 v{Y+i}, v{XR+i}, v{XI+i}")
        k.e(f"buffer_store_dwordx4 {R(Y)}, v{s.VZ}, {S4(SWS)}, s{sT2} offen {SC1}", "Z")

    def g_role(s, role):
        k = s.k; T = TMP
        XRD = 20
        F = Fill()
        if role == 0:
            VX = ACC2 + 8
            k.e(f"""v_lshrrev_b32 v{T}, 3, v1
            v_mul_u32_u24 v{VX}, {64*896}, v{T}
            v_lshrrev_b32 v{T}, 4, v1
            v_and_b32 v{T+1}, 7, v1
            v_xor_b32 v{T+1}, v{T+1}, v{T}
            v_lshl_add_u32 v{VX}, v{T+1}, 4, v{VX}
            v_xor_b32 v{VX+1}, 64, v{VX}
            v_add_u32 v{VX+2}, {2*(8*64*896-1024)}, v{VX}
            v_add_u32 v{VX+1}, {8*64*896-1024}, v{VX+1}
            v_add_u32 v{VX+3}, {2*(8*64*896-1024)}, v{VX+1}
            s_mul_i32 s{sT1}, s{sS2}, 896
            s_lshl_b32 s{sLW}, s{sSG}, 12
            s_waitcnt lgkmcnt(0)""")
            k.srd(SX, 4, 2048 * 896)
            for b in range(7):
                k.e(f"s_add_u32 m0, s{sLW}, {(b+1)*16384}\ns_add_u32 s{sT0}, s{sT1}, {b*128}")
                for i in range(4): k.e(f"buffer_load_dwordx4 v{VX+i}, {S4(SX)}, s{sT0} offen offset:{i*1024} lds", ("X", b))
            s.load_epoch()
            s.stamp(1)
        else:
            CL, CD, CI = WD1, WD1 + 16, WD1 + 32
            k.e(f"""v_and_b32 v{T}, 31, v1
            v_mul_u32_u24 v{T+4}, 3584, v{T}
            v_lshrrev_b32 v{T+1}, 5, v1
            v_lshl_add_u32 v{T+4}, v{T+1}, 4, v{T+4}
            s_and_b32 s{sT0}, s{sRT}, 1
            s_mul_i32 s{sT0}, s{sT0}, 56
            s_lshl_b32 s{sT1}, s{sFT}, 2
            s_add_u32 s{sT0}, s{sT0}, s{sT1}
            s_lshr_b32 s{sT1}, s{sRT}, 2
            s_add_u32 s{sT2}, s{sT0}, s{sT1}
            s_lshl_b32 s{sT0}, s{sT2}, 5
            s_mul_i32 s{sT1}, s{sSG}, {128*3584}
            s_add_u32 s{sT0}, s{sT0}, s{sT1}
            s_waitcnt lgkmcnt(0)""")
            s.load_epoch()
            k.srd(SWG, 12, 448 * 3584)
            k.srd(SWU, 14, 448 * 3584)
            k.e(f"""s_bitcmp1_b32 s{sRT}, 1
            s_cselect_b32 s{SC}, s14, s12
            s_cselect_b32 s{SC+1}, s15, s13
            s_mov_b32 s{SC+2}, {448*3584}
            s_mov_b32 s{SC+3}, 0x20000""")
            for i in range(4):
                k.e(f"s_add_u32 s{sT1}, s{sT0}, {32*i*3584}\nbuffer_load_dwordx4 {R(CL+4*i)}, v{T+4}, {S4(SC)}, s{sT1} offen")
            k.e(f"""v_lshrrev_b32 v{T+2}, 3, v1
            v_mul_u32_u24 v{VWG}, 3584, v{T+2}
            v_and_b32 v{T+2}, 2, v{T+2}
            v_bfe_u32 v{T+3}, v1, 1, 2
            v_xor_b32 v{T+2}, v{T+2}, v{T+3}
            v_lshl_add_u32 v{VWG}, v{T+2}, 5, v{VWG}
            v_and_b32 v{T+2}, 1, v1
            v_lshl_add_u32 v{VWG}, v{T+2}, 4, v{VWG}
            s_mul_i32 s{sT0}, s{sSG}, {16*3584}
            s_lshl_b32 s{sT1}, s{sFT}, 7
            s_add_u32 s{sT0}, s{sT0}, s{sT1}
            v_add_u32 v{VWG}, s{sT0}, v{VWG}
            v_xor_b32 v{VWU}, 32, v{VWG}
            s_lshl_b32 s{sLW}, s{sSG}, 11""")
            for _ in s.w_dma(0): pass
            s.stamp(1)
            k.e(f"""v_lshlrev_b32 v{T+1}, 3, v{T+1}
            v_sub_u32 v{T+1}, v{T}, v{T+1}
            v_and_b32 v{T+2}, 1, v{T+1}
            v_lshlrev_b32 v{T+2}, 4, v{T+2}
            v_mov_b32 v{T+3}, 0x3f80
            v_lshlrev_b32 v{T+2}, v{T+2}, v{T+3}
            v_ashrrev_i32 v{T+1}, 1, v{T+1}""")
            for r in range(4): k.e(f"v_cmp_eq_u32 s[{sM+2*r}:{sM+2*r+1}], {r}, v{T+1}")
            for r in range(4): k.e(f"v_cndmask_b32 v{CI+r}, 0, v{T+2}, s[{sM+2*r}:{sM+2*r+1}]")
            k.e(f"""s_lshl_b32 s{sT3}, s{sT2}, 10
            s_and_b32 s{sT0}, s{sSG}, 2
            s_lshl_b32 s{sT0}, s{sT0}, 8
            s_add_u32 s{sT3}, s{sT3}, s{sT0}
            s_and_b32 s{sT0}, s{sSG}, 1
            s_lshl_b32 s{sT0}, s{sT0}, 3
            s_add_u32 s{sT3}, s{sT3}, s{sT0}
            s_and_b32 s{sT0}, s{sRT}, 2
            s_lshl_b32 s{sT0}, s{sT0}, 7
            s_add_u32 s{sT3}, s{sT3}, s{sT0}
            s_add_u32 s{sT3}, s{sT3}, {CSO}""")
        k.srd(SWS, 22, WS_BYTES)
        k.srd(SWD, 16, 1792 * 896)
        s.gen_F(role)
        D1, RSR, E, PA, D2S = ACC2, ACC2 + 16, WD1, WD1 + 16, WD1 + 24
        D2C = RSR
        if role == 0:
            k.e(f"""v_and_b32 v{T}, 31, v1
            v_cvt_f32_u32 v{T}, v{T}
            v_lshrrev_b32 v{T+1}, 5, v1
            v_lshlrev_b32 v{T+1}, 8, v{T+1}
            v_add_u32 v{T+1}, s{sS2}, v{T+1}
            v_cvt_f32_u32 v{T+1}, v{T+1}
            v_mul_f32 v{T+1}, {fh(1/2048)}, v{T+1}
            v_mul_f32 v{T+1}, v{T+1}, v{T}
            v_mul_f32 v{T}, {fh(1/32)}, v{T}""")
            C_, S_ = ACC1, ACC1 + 8
            for q in range(2):
                for j in range(8):
                    c = 16 * q + 8 * (j >> 2) + (j & 3)
                    k.e(f"v_fmamk_f32 v{C_+j}, v{T}, {fh(c)}, v{T+1}\nv_sin_f32 v{S_+j}, v{C_+j}\nv_cos_f32 v{C_+j}, v{C_+j}")
                for j in range(4):
                    k.e(f"v_cvt_pk_bf16_f32 v{E+4*q+j}, v{C_+2*j}, v{C_+2*j+1}\nv_cvt_pk_bf16_f32 v{E+8+4*q+j}, v{S_+2*j}, v{S_+2*j+1}")
        s.addrs(role, XRD)
        k.e("s_waitcnt lgkmcnt(0)")
        s.get_tag()
        SQ, SM, ONE = ACC2, ACC2 + 8, ACC2 + 16
        if role == 0: k.e(f"v_add_u32 v{T}, {F_LDS}, v1\nv_lshrrev_b32 v{T+1}, 2, v1\nv_add_u32 v{T+1}, {FCS_L}, v{T+1}")
        else:
            k.e(f"v_mov_b32 v{ONE}, 0x3f803f80\nv_mov_b32 v{ONE+1}, 0x3f803f80")
            def colsum():
                for i in range(4): yield k.e(mf32(CD, CL + 4 * i, CI, i == 0))
                yield ("at", 2)
                for st in (8, 4, 2, 1):
                    for i in range(st): yield k.e(f"v_add_f32 v{CD+i}, v{CD+i}, v{CD+st+i}")
                yield k.e(f"v_mov_b32 v{CD+1}, v{CD}\nv_permlane32_swap_b32 v{CD}, v{CD+1}\nv_add_f32 v{CD}, v{CD}, v{CD+1}")
                yield k.e(s.split_hilo(CD, CD, CD + 1) + f"\nv_mov_b32 v{CD+1}, s{sTAG}")
                yield k.e(f"s_mov_b64 exec, 0xffff\nbuffer_store_dwordx2 {R(CD,2)}, v1, {S4(SWS)}, s{sT3} offen {SC1}\ns_mov_b64 exec, -1")
            F.add(colsum(), 1)
        def trr(n):
            it, kk = divmod(n, 4)
            return [f"ds_read_b64_tr_b16 {R(AB+8*(n&1)+4*j+2*hh, 2)}, v{TRB+j} offset:{(it&3)*16384 + kk*2048 + hh*512}" for j in range(2) for hh in range(2)]
        FB = ACC1
        for b in range(7):
            F.t = b
            k.wait(vm=("X", b) if role == 0 else (("W", 0) if b == 6 else None), lg="all")
            k.e("s_barrier")
            if b == 0: s.stamp(2)
            if b == 4:
                for r in range(4): k.e(f"v_add_u32 v{XRD+r}, 0x10000, v{XRD+r}")
            for r in range(4):
                kk = 4 * b + r
                k.e(f"ds_read_b128 {R(XF+4*kk)}, v{XRD+r} offset:{(b&3)*16384}")
                if role == 0: k.e(f"ds_read_b128 {R(FB+16*(b&1)+4*r)}, v{T} offset:{kk*1024}")
            if role == 0 and b == 0:
                for w in range(8): k.e(f"ds_read_b32 v{D2S+w}, v{T+1} offset:{w*256}")
            if role == 0 and b == 1:
                for st in (4, 2, 1):
                    for i in range(st): k.e(f"v_add_f32 v{D2S+i}, v{D2S+i}, v{D2S+st+i}")
                k.e(s.split_hilo(D2S, D2S, D2S + 1))
                k.e(f"v_mov_b32 v{D2S+1}, 0\nv_mov_b32 v{D2S+2}, 0\nv_mov_b32 v{D2S+3}, 0")
            if b == 6:
                for l in trr(0): k.e(l)
            if role == 1 and 1 <= b <= 3:
                for _ in s.w_dma(b): pass
            for r in range(4):
                kk = 4 * b + r; x = XF + 4 * kk
                if role == 0: k.e(mf32(D1, x, FB + 16 * (b & 1) + 4 * r, kk == 0))
                else:
                    k.e(mf4(SQ, x, x, kk == 0)); k.e(mf4(SM, ONE, x, kk == 0)); k.e(mf4(SQ + 4, x + 2, x + 2, kk == 0)); k.e(mf4(SM + 4, ONE, x + 2, kk == 0))
            F.run(1000)
        s.stamp(3)
        at = lambda n: ("at", n)
        if role == 1:
            def stats():
                S1, S2, U = SM, SQ, SM + 2
                yield from s.seq(f"""s_mov_b32 s{sM}, 0x22222222
                s_mov_b32 s{sM+1}, 0x22222222
                s_mov_b32 s{sM+2}, 0x44444444
                s_mov_b32 s{sM+3}, 0x44444444
                s_mov_b32 s{sM+4}, 0x88888888
                s_mov_b32 s{sM+5}, 0x88888888
                v_add_f32 v{S1}, v{SM}, v{SM+4}
                v_add_f32 v{SQ}, v{SQ}, v{SQ+4}
                v_add_f32 v{SQ+1}, v{SQ+1}, v{SQ+5}
                v_add_f32 v{SQ+2}, v{SQ+2}, v{SQ+6}
                v_add_f32 v{SQ+3}, v{SQ+3}, v{SQ+7}
                v_mov_b32 v{S1+1}, v{S1}
                v_cndmask_b32 v{SQ}, v{SQ}, v{SQ+1}, s[{sM}:{sM+1}]
                v_cndmask_b32 v{SQ}, v{SQ}, v{SQ+2}, s[{sM+2}:{sM+3}]
                v_cndmask_b32 v{SQ}, v{SQ}, v{SQ+3}, s[{sM+4}:{sM+5}]
                v_permlane32_swap_b32 v{S1}, v{S1+1}
                v_mov_b32 v{S2+1}, v{S2}
                v_add_f32 v{S1}, v{S1}, v{S1+1}
                v_mul_f32 v{S1}, {fh(1/448)}, v{S1}
                v_permlane32_swap_b32 v{S2}, v{S2+1}
                v_cvt_pk_bf16_f32 v{M4}, -v{S1}, -v{S1}
                v_add_f32 v{S2}, v{S2}, v{S2+1}
                v_mul_f32 v{S2}, {fh(1/448)}, v{S2}
                v_fma_f32 v{S2}, -v{S1}, v{S1}, v{S2}
                v_max_f32 v{S2}, 0, v{S2}
                v_cvt_pk_bf16_f32 v{S2}, v{S2}, v{S2}
                v_and_b32 v{S2}, 0xffff0000, v{S2}
                v_add_f32 v{S2}, {fh(1e-5)}, v{S2}
                v_cvt_pk_bf16_f32 v{S2}, v{S2}, v{S2}
                v_and_b32 v{S2}, 0xffff0000, v{S2}
                v_sqrt_f32 v{S2}, v{S2}
                v_bfe_u32 v{U}, v1, 4, 5
                v_cvt_pk_bf16_f32 v{S2}, v{S2}, v{S2}
                v_and_b32 v{S2}, 0xffff0000, v{S2}
                v_rcp_f32 v{S2}, v{S2}
                v_lshlrev_b32 v{U}, 2, v{U}
                s_lshl_b32 s{sT0}, s{sSG}, 7
                s_add_u32 s{sT0}, s{sT0}, {ST_L}
                v_add_u32 v{U}, s{sT0}, v{U}
                ds_write_b32 v{U}, v{M4}
                ds_write_b32 v{U}, v{S2} offset:512
                v_mul_f32 v{RS2}, v{S2}, v{S2}
                v_mov_b32 v{M4+2}, v{M4}""")
            gs = stats(); F.add(gs, 0)
        else:
            def qepi():
                U = T
                yield from s.seq(f"""v_bfe_u32 v{U}, v1, 4, 5
                v_lshlrev_b32 v{U}, 2, v{U}
                s_lshl_b32 s{sT0}, s{sSG}, 7
                s_add_u32 s{sT0}, s{sT0}, {ST_L}
                v_add_u32 v{U}, s{sT0}, v{U}
                v_lshrrev_b32 v{U+1}, 9, v1
                v_lshlrev_b32 v{U+1}, 4, v{U+1}
                v_add_u32 v{U+1}, s{sT0}, v{U+1}
                v_lshrrev_b32 v{U+2}, 9, v1
                v_lshl_add_u32 v{U+3}, v{U+2}, 9, v1
                s_lshl_b32 s{sT0}, s{sSG}, 2
                s_add_u32 s{sT0}, s{sT0}, {QX}
                v_add_u32 v{U+3}, s{sT0}, v{U+3}
                v_mul_u32_u24 v{U+2}, {8192-512}, v{U+2}
                v_add_u32 v{U+2}, v{U+2}, v1
                s_lshl_b32 s{sT0}, s{sSG}, 11
                s_add_u32 s{sT0}, s{sT0}, {QX}
                v_add_u32 v{U+4}, s{sT0}, v1""")
                yield at(3.5)
                yield from s.seq(f"ds_read_b32 v{M4}, v{U}\nds_read_b32 v{M4+2}, v{U}\nds_read_b32 v{RS2}, v{U} offset:512")
                for q in range(4): yield k.e(f"ds_read_b128 {R(RSR+4*q)}, v{U+1} offset:{512 + 32*q}")
                yield at(4.5)
                yield 24 + k.e(mf32(D1, M4, D2S))
                yield k.e(f"v_mul_f32 v{RS2}, v{RS2}, v{RS2}")
                yield at(5.5)
                for p in range(8):
                    yield from s.seq(f"v_mul_f32 v{D1+2*p}, v{D1+2*p}, v{RSR+2*p}\nv_mul_f32 v{D1+2*p+1}, v{D1+2*p+1}, v{RSR+2*p+1}\nv_cvt_pk_bf16_f32 v{PA+p}, v{D1+2*p}, v{D1+2*p+1}")
                yield at(F.t + 0.5)
                yield 24 + k.e(mf32(D2C, PA, E, True)) + k.e(mf32(D2S, PA, E + 8, True))
                yield 24 + k.e(mf32(D2C, PA + 4, E + 4)) + k.e(mf32(D2S, PA + 4, E + 12))
                yield at(F.t + 1)
                for p in range(8):
                    yield from s.seq(f"v_add_f32 v{D1+2*p}, v{D2C+2*p}, v{D2S+2*p+1}\nv_sub_f32 v{D1+2*p+1}, v{D2C+2*p+1}, v{D2S+2*p}\nv_cvt_pk_bf16_f32 v{PA+p}, v{D1+2*p}, v{D1+2*p+1}")
                    if p == 0:
                        L = k.label("nonyq")
                        k.e(f"s_cmp_lg_u32 s{sFT}, 0\ns_cbranch_scc1 {L}")
                        k.cond_begin()
                        k.e(f"""s_mov_b32 exec_hi, 0
                        v_cvt_pk_bf16_f32 v{PA}, v{D2C}, -v{D2S}
                        v_cvt_pk_bf16_f32 v{D1}, v{D2C+1}, -v{D2S+1}
                        ds_write_b32 v{U+3}, v{D1} offset:8192
                        s_mov_b32 exec_hi, -1""")
                        k.cond_end()
                        k.e(f"{L}:")
                    yield k.e(f"ds_write_b32 v{U+3}, v{PA+p} offset:{(4*(p>>1) + (p&1))*512}")
                nb = 3
                while nb < F.t: nb += 4
                nb += 0.5
                print("Q written at", F.t, "stored after", nb)
                yield at(nb)
                yield from s.seq(f"ds_read_b128 {R(D1)}, v{U+4}\nds_read_b128 {R(D1+4)}, v{U+4} offset:1024\nds_read_b128 {R(D1+8)}, v{U+4} offset:8192")
                yield k.e(f"""s_lshl_b32 s{sT2}, s{sFT}, 2
                s_add_u32 s{sT2}, s{sT2}, s{sSG}
                s_lshl_b32 s{sT0}, s{sT2}, 15
                s_lshl_b32 s{sT1}, s{sRT}, 9
                s_add_u32 s{sT0}, s{sT0}, s{sT1}
                s_add_u32 s{sT3}, s{sT0}, 16384""")
                yield at(F.t + 0.5)
                k.e(f"buffer_store_dwordx4 {R(D1)}, v{U+2}, {S4(SWS)}, s{sT0} offen {SC1}", "Q")
                k.e(f"buffer_store_dwordx4 {R(D1+4)}, v{U+2}, {S4(SWS)}, s{sT3} offen {SC1}", "Q")
                L = k.label("nonyq")
                k.e(f"s_cmp_lg_u32 s{sT2}, 0\ns_cbranch_scc1 {L}")
                k.cond_begin()
                k.e(f"s_add_u32 s{sT1}, s{sT1}, {224*8192}\nbuffer_store_dwordx4 {R(D1+8)}, v{U+2}, {S4(SWS)}, s{sT1} offen {SC1}", "Q")
                k.cond_end()
                k.e(f"{L}:")
                s.stamp(4)
                yield 12
                yield at(F.t + 6)
                k.wait(vm="Q")
                yield k.e(f"""s_lshl_b32 s{sT0}, s{sFT}, 2
                s_add_u32 s{sT0}, s{sT0}, s{sSG}
                s_lshl_b32 s{sT0}, s{sT0}, 4
                s_add_u32 s{sT0}, s{sT0}, s{sRT}
                s_lshl_b32 s{sT0}, s{sT0}, 2
                s_add_u32 s{sT0}, s{sT0}, {FQ}""") + s.flag(sT0)
                print("Q flag at", F.t)
            F.add(qepi(), 0)
        def wd():
            yield at(3.5)
            for q in range(5):
                yield from s.wd_dma(q, q); yield at(F.t + 1.5)
            yield at(19)
            for q in range(5): yield from s.wd_rd(q, q, WD1 + 8 * q)
            yield at(F.t + 1)
            k.wait(lg="wdr")
            for q in range(5, 9):
                yield from s.wd_dma(q, q - 5); yield at(F.t + 1.5)
            yield at(36)
            for q in range(5, 9): yield from s.wd_rd(q, q - 5, ACC1 + 8 * (q - 5))
            yield from s.wd_dma(13, 4)
            yield at(F.t + 1)
            k.wait(lg="wdr")
            for q in range(9, 13):
                yield from s.wd_dma(q, q - 9); yield at(F.t + 1.5)
            print("Wd done at", F.t)
        CSR = (ACC2 + 24, XF)
        def cs(P):
            r = CSR[P]
            rl = "\n".join(f"buffer_load_dwordx4 {R(r+4*j)}, v1, {S4(SWS)}, s{sT5} offen offset:{1024*j} {SC1}" for j in range(2))
            so = f"s_lshl_b32 s{sT5}, s{sFT}, 12\ns_add_u32 s{sT5}, s{sT5}, {CSO + (56*P + 2*role)*1024}"
            yield at(28 * P + 20)
            yield 8 + k.e(so + "\n" + rl)
            yield at(28 * P + 26)
            yield s.check([r + 1, r + 3, r + 5, r + 7], so + "\n" + rl)
        def hepi(P):
            acc = (ACC1, ACC2)[P]
            for j in range(2):
                c = acc + 16 * j
                for i in range(8): yield k.e(f"v_mul_f32 v{c+i}, v{c+i}, v{RS2}")
                for i in range(4):
                    yield from s.seq(f"v_mul_f32 v{c+2*i}, v{c+2*i}, v{c+8+2*i}\nv_mul_f32 v{c+2*i+1}, v{c+2*i+1}, v{c+9+2*i}\nv_cvt_pk_bf16_f32 v{c+8+i}, v{c+2*i}, v{c+2*i+1}")
                yield 6 + k.e(f"""s_mul_i32 s{sT4}, s{sS2}, 28
                s_add_u32 s{sT4}, s{sT4}, s{sFT}
                s_lshl_b32 s{sT4}, s{sT4}, 12
                s_add_u32 s{sT4}, s{sT4}, {HO + (56*P + 2*role)*1024}
                buffer_store_dwordx4 {R(c+8)}, v1, {S4(SWS)}, s{sT4} offen offset:{1024*j} {SC1}""", ("H", P))
        def hflag(P):
            k.wait(vm=("H", P))
            return k.e(f"""s_lshl_b32 s{sT4}, s{sRT}, 4
            s_add_u32 s{sT4}, s{sT4}, s{sFT}
            s_lshl_b32 s{sT4}, s{sT4}, 3
            s_add_u32 s{sT4}, s{sT4}, s{sW}
            s_lshl_b32 s{sT4}, s{sT4}, 2
            s_add_u32 s{sT4}, s{sT4}, {FH + P*8192}""") + s.flag(sT4)
        def h0():
            yield at(29)
            yield from hepi(0)
            s.stamp(5)
            yield at(F.t + 8)
            yield hflag(0)
            print("H0 flag at", F.t)
        at2 = lambda n: ("at", 28 + n + 1)
        F.add(cs(0)); F.add(h0()); F.add(cs(1)); F.add(wd())
        F.add(s.fft_loads(at2, XF, XF + 1), 30)
        F.add(s.fft_tables(at2), 30)
        BUD = 24
        for n in range(56):
            P, nn = divmod(n, 28)
            acc = (ACC1, ACC2)[P]; buf = AB + 8 * (n & 1); x = XF + 4 * nn
            k.e(mf32(acc, buf, x, nn == 0))
            if (n + 1) % 4 == 0 and n + 1 < 56:
                it = (n + 1) // 4
                if role == 1 and it == 1:
                    for _ in gs: pass
                k.wait(vm=("W", it) if role else None, lg="all")
                k.e("s_barrier")
                if role and it + 3 <= 13: F.g.insert(0, [s.w_dma(it + 3), 0])
            rd = trr(n + 1) if n + 1 < 56 else []
            for l in rd: k.e(l)
            F.t = n + 0.5; F.run(BUD - 4)
            k.e(mf32(acc + 16, buf + 4, x, nn == 0))
            if nn == 27:
                for j in range(2): k.e(mf32(acc + 16 * j, CSR[P] + 4 * j, M4))
            F.t = n + 1; F.run(BUD)
        print("role", role, "fillers left", len(F.g), "nops", k.nops)
        F.drain()
        s.stamp(6)
        VP, PD = s.VP, 2
        k.e(f"""v_lshrrev_b32 v{T}, 5, v1
        v_min_u32 v{T}, 6, v{T}
        s_mul_i32 s{sT0}, s{sW}, 7
        v_add_u32 v{T}, s{sT0}, v{T}
        v_lshrrev_b32 v{T}, 1, v{T}
        v_lshlrev_b32 v{T}, 4, v{T}
        v_bfe_u32 v{T+1}, v1, 4, 1
        v_lshl_add_u32 v{VP}, v{T+1}, 2, v{T}
        s_lshl_b32 s{sU0}, s{sRT}, 9
        s_and_b32 s{sT1}, s{sST}, 1
        s_lshl_b32 s{sT1}, s{sT1}, 3
        s_add_u32 s{sU0}, s{sU0}, s{sT1}
        s_add_u32 s{sU0}, s{sU0}, {FH}""")
        rl0 = f"buffer_load_dword v{PD}, v{VP}, {S4(SWS)}, s{sU0} offen {SC1}"
        k.e(rl0)
        for _ in hepi(1): pass
        s.check([PD], rl0)
        BG = [ACC2 + 4 * i for i in (0, 1, 3, 4, 5, 7)] + [236 + 4 * i for i in range(5)] + [XF, XF + 4] + [ACC2 + 8, ACC2 + 24]
        k.e(f"""s_mul_i32 s{sU1}, s{sST}, 224
        s_add_u32 s{sU1}, s{sU1}, s{sT0}
        s_lshl_b32 s{sU1}, s{sU1}, 10
        s_add_u32 s{sU1}, s{sU1}, {HO}""")
        def hloads(P):
            for i in range(7):
                for S in range(2):
                    if i % 4 == 0: k.e(f"s_add_u32 s{sT4+S}, s{sU1}, {(56*P + 112*S + i)*1024}")
                    k.e(f"buffer_load_dwordx4 {R(BG[2*i+S])}, v1, {S4(SWS)}, s{sT4+S} offen offset:{(i%4)*1024} {SC1}")
        hloads(0)
        def mid(i):
            if i == 1: hflag(1)
        s.fft_run(mid)
        s.stamp(7)
        A2 = 152
        acc = lambda t, S: A2 + 16 * (2 * S + t)
        AQ = [WD1 + 8 * q for q in range(5)] + [ACC1 + 8 * q for q in range(4)] + [WD1 + 8 * q for q in range(5)]
        XRES, VO, VR = 4, 8, 3
        k.srd(SOUT, 18, 2048 * 896)
        if role: k.srd(SX, 4, 2048 * 896)
        k.e(f"""v_lshrrev_b32 v{T}, 7, v1
        v_mul_u32_u24 v{VO}, {64*896}, v{T}
        v_and_b32 v{T+1}, 0x70, v1
        v_add_u32 v{VO}, v{VO}, v{T+1}
        s_lshl_b32 s{sT0}, s{sSG}, 9
        s_lshl_b32 s{sT1}, s{sST}, 1
        s_add_u32 s{sT0}, s{sT0}, s{sT1}
        s_mul_i32 s{sT0}, s{sT0}, 896
        s_lshl_b32 s{sT1}, s{sDT}, 7
        s_add_u32 s{sT0}, s{sT0}, s{sT1}
        s_add_u32 s{sT0}, s{sT0}, {896*role}
        v_add_u32 v{VO}, s{sT0}, v{VO}
        buffer_load_dwordx4 {R(XRES)}, v{VO}, {S4(SX)}, 0 offen
        s_lshl_b32 s{sT0}, s{sSG}, 3
        v_add_u32 v{T}, s{sT0}, v{T}
        v_lshlrev_b32 v{T}, 4, v{T}
        v_lshlrev_b32 v{T+2}, 1, v{T+1}
        v_xor_b32 v{T}, v{T}, v{T+2}
        v_lshl_add_u32 v{VR}, v{T+1}, 6, v{T}""")
        if role == 0: k.e(f"v_add_u32 v{VR}, {WDR}, v{VR}")
        for i in range(7):
            for S in range(2):
                for t in range(2): k.e(mf32(acc(t, S), AQ[i] + 4 * t, BG[2 * i + S], i == 0))
            if i == 3:
                k.wait(vm="Z"); s.flag(sT3)
        s.stamp(8)
        rl1 = f"buffer_load_dword v{PD}, v{VP}, {S4(SWS)}, s{sU0} offen {SC1}"
        k.e(f"s_add_u32 s{sU0}, s{sU0}, 8192\n" + rl1)
        for q in range(9, 14):
            for _ in s.wd_rd(q, q - 9, AQ[q]): pass
        FI = [216 + 4 * i for i in range(5)] + [BG[14], T, T + 4]
        ZG = [ACC1 + 4 * i for i in range(4)] + [AB + 4 * i for i in range(4)]
        U = AB
        k.e(f"""v_bfe_u32 v{U+8}, v1, 4, 5
        s_lshl_b32 s{sT0}, s{sDT}, 6
        v_add_u32 v{U+8}, s{sT0}, v{U+8}
        v_cvt_f32_u32 v{U+8}, v{U+8}
        v_mul_f32 v{U+8}, {fh(1/448)}, v{U+8}
        v_add_f32 v{U+9}, {fh(32/448)}, v{U+8}
        v_lshrrev_b32 v{U+10}, 9, v1
        v_lshlrev_b32 v{U+10}, 2, v{U+10}
        s_lshl_b32 s{sT0}, s{sW}, 3
        v_add_u32 v{U+10}, s{sT0}, v{U+10}
        v_cvt_f32_u32 v{U+10}, v{U+10}
        v_mul_f32 v{U+11}, v{U+10}, v{U+9}
        v_mul_f32 v{U+10}, v{U+10}, v{U+8}""")
        def finv(i):
            for t in range(2):
                for jj in range(4): k.e(f"v_fmamk_f32 v{U+jj}, v{U+8+t}, {fh(64*i+jj)}, v{U+10+t}\nv_sin_f32 v{U+4+jj}, v{U+jj}\nv_cos_f32 v{U+jj}, v{U+jj}")
                for jj in range(4): k.e(f"v_cvt_pk_bf16_f32 v{FI[2*i+t]+jj}, v{U+jj}, v{U+4+jj}")
        finv(0); finv(1)
        s.check([PD], rl1)
        hloads(1)
        k.e(f"""v_lshrrev_b32 v{VP}, 8, v1
        v_lshlrev_b32 v{VP}, 6, v{VP}
        v_bfe_u32 v{U}, v1, 5, 3
        v_add3_u32 v{VP}, v{VP}, v{U}, s{sT0}
        v_min_u32 v{VP}, 224, v{VP}
        v_bfe_u32 v{U}, v1, 4, 1
        v_lshl_add_u32 v{VP}, v{VP}, 1, v{U}
        v_lshlrev_b32 v{VP}, 2, v{VP}
        s_lshr_b32 s{sU0}, s{sST}, 3
        s_lshl_b32 s{sU0}, s{sU0}, 11
        s_add_u32 s{sU0}, s{sU0}, {FZ}
        v_lshrrev_b32 v{s.VZ}, 9, v1
        v_lshlrev_b32 v{s.VZ}, 15, v{s.VZ}
        v_bfe_u32 v{U}, v1, 4, 5
        v_lshl_add_u32 v{s.VZ}, v{U}, 2, v{s.VZ}
        s_lshl_b32 s{sU1}, s{sW}, 16
        s_lshl_b32 s{sT1}, s{sST}, 8
        s_add_u32 s{sU1}, s{sU1}, s{sT1}
        s_add_u32 s{sU1}, s{sU1}, {ZT}""")
        k.e(rl1)
        finv(2); finv(3)
        for i in range(7):
            for S in range(2):
                for t in range(2): k.e(mf32(acc(t, S), AQ[7 + i] + 4 * t, BG[2 * i + S]))
        s.check([PD], rl1)
        s.stamp(9)
        for S in range(2):
            for i in range(4):
                for jj in range(4):
                    k.e(f"s_add_u32 s{sT4}, s{sU1}, {(64*i + jj)*8192}\nbuffer_load_dword v{ZG[2*i+S]+jj}, v{s.VZ}, {S4(SWS)}, s{sT4} offen offset:{128*S} {SC1}")
        WA = BG[0]
        k.e(f"s_lshl_b32 s{sT0}, s{sW}, 13")
        pend = []
        for S in range(2):
            for t in range(2):
                for i in range(4):
                    k.e(mf32(acc(t, S), FI[2 * i + t], ZG[2 * i + S]))
                    if i >= 2:
                        for l in pend[:4]: k.e(l)
                        pend = pend[4:]
                for l in pend: k.e(l)
                pend = []
                for q in range(4):
                    tq = 4 * t + q
                    pend += [f"v_xor_b32 v{WA+q}, {tq*32}, v1\nv_add_u32 v{WA+q}, s{sT0 if S else sLD}, v{WA+q}", f"ds_write_b128 v{WA+q}, {R(acc(t,S)+4*q)} offset:{tq*1024}"]
        pend = pend[0::2] + pend[1::2]
        for l in pend: k.e(l)
        X = BG[3]
        for e in range(4): k.e(f"v_lshlrev_b32 v{X+2*e}, 16, v{XRES+e}\nv_and_b32 v{X+2*e+1}, 0xffff0000, v{XRES+e}")
        k.e(f"v_add_u32 v{PD}, {4*10240}, v{VR}")
        k.e("s_waitcnt lgkmcnt(0)\ns_barrier")
        RR = A2
        for w in range(8):
            for hi in range(2):
                if role: k.e(f"ds_read_b128 {R(RR+8*w+4*hi)}, v{VR} offset:{w*8192 + hi*512}")
                else: k.e(f"ds_read_b128 {R(RR+8*w+4*hi)}, v{VR if w < 4 else PD} offset:{(w&3)*10240 + hi*512}")
        for w in range(8):
            for e in range(4): k.e(f"v_pk_add_f32 {R(X+2*e,2)}, {R(X+2*e,2)}, {R(RR+8*w+2*e,2)}")
        for e in range(4): k.e(f"v_cvt_pk_bf16_f32 v{XRES+e}, v{X+2*e}, v{X+2*e+1}")
        k.e(f"buffer_store_dwordx4 {R(XRES)}, v{VO}, {S4(SOUT)}, 0 offen")
        if role == 0:
            L = k.label("noep")
            k.e(f"s_add_u32 s{sT0}, s{sCOL}, s{sW}\ns_cmp_lg_u32 s{sT0}, 0\ns_cbranch_scc1 {L}\ns_mov_b32 s{sT0}, {EPOCH}")
            k.cond_begin(); s.flag(sT0); k.cond_end()
            k.e(f"{L}:")
        if s.tson: k.e("s_waitcnt vmcnt(0)"); s.stamp(4 if role else 1)
        s.ts_store()
        k.e("s_endpgm")

    def t_wg(s):
        k = s.k; T = TMP
        k.e(f"""s_getpc_b64 s[{sT2}:{sT3}]
        PCREF:
        s_sub_u32 s{sT2}, s{sT2}, PCREF-{NAME}_kernel
        s_subb_u32 s{sT3}, s{sT3}, 0
        v_lshlrev_b32 v{T}, 7, v0
        v_min_u32 v{T}, CODE_END-{NAME}_kernel-4, v{T}
        global_load_dword v{T+1}, v{T}, s[{sT2}:{sT3}]
        v_lshlrev_b32 v1, 4, v1
        s_lshr_b32 s{sT0}, s2, 1
        s_lshl_b32 s{sT0}, s{sT0}, 2
        s_and_b32 s{sT1}, s{sW}, 3
        s_add_u32 s{sT0}, s{sT0}, s{sT1}
        s_lshl_b32 s{sT0}, s{sT0}, 1
        s_and_b32 s{sT1}, s2, 1
        s_add_u32 s{sT0}, s{sT0}, s{sT1}
        s_mul_i32 s{sT0}, s{sT0}, 7200
        s_add_u32 s{sT1}, s{sT0}, 4096
        s_lshl_b32 s{sLW}, s{sW}, 13
        s_cmp_ge_u32 s{sW}, 4
        s_waitcnt lgkmcnt(0)
        s_cselect_b32 s{SC}, s8, s6
        s_cselect_b32 s{SC+1}, s9, s7
        s_mov_b32 s{SC+2}, {2048*450}
        s_mov_b32 s{SC+3}, 0x20000""")
        for h in range(2):
            k.e(f"s_add_u32 m0, s{sLW}, {4096*h}")
            for i in range(4): k.e(f"buffer_load_dwordx4 v1, {S4(SC)}, s{sT0+h} offen offset:{1024*i} lds", "T")
        s.load_epoch()
        k.srd(SWD, 16, 1792 * 896)
        k.srd(SWS, 22, WS_BYTES)
        k.srd(SWG, 22, 225 * 8192, WT)
        s.stamp(1)
        k.e(f"""s_lshr_b32 s{sT0}, s2, 3
        s_lshl_b32 s{sT0}, s{sT0}, 16
        v_lshlrev_b32 v{T}, 7, v0""")
        for it in range(7):
            k.e(f"s_add_u32 s{sT1}, s{sT0}, {it*32*8192}\nbuffer_load_dword v{T+2}, v{T}, {S4(SWD)}, s{sT1} offen")
        k.e(f"""v_bfe_u32 v{T+3}, v1, 4, 4
        v_mul_u32_u24 v{T+4}, 450, v{T+3}
        v_lshrrev_b32 v{T+5}, 4, v0
        v_lshl_add_u32 v{T+4}, v{T+5}, 1, v{T+4}
        v_lshlrev_b32 v{T+5}, 13, v{T+5}
        v_lshl_add_u32 v{T+5}, v{T+3}, 4, v{T+5}
        s_lshl_b32 s{sT0}, s2, 8
        s_waitcnt lgkmcnt(0)""")
        s.get_tag()
        k.wait(vm="T")
        k.e("s_barrier")
        s.stamp(2)
        def rd(it):
            for i in range(4):
                for m in range(2): k.e(f"ds_read_u16 v{32+8*it+4*m+i}, v{T+4} offset:{(4*m+i)*8192 + 64*it}")
        rd(0)
        for it in range(8):
            if it < 7: rd(it + 1)
            r = 32 + 8 * it
            for i in range(4): k.e(f"v_lshl_or_b32 v{r+i}, v{r+4+i}, 16, v{r+i}")
            k.e(f"s_add_u32 s{sT1}, s{sT0}, {it*32*8192}\nbuffer_store_dwordx4 {R(r)}, v{T+5}, {S4(SWG)}, s{sT1} offen {SC1}")
        s.stamp(3)
        k.e(f"""s_lshl_b32 s{sT0}, s{sW}, 5
        s_add_u32 s{sT0}, s{sT0}, s2
        s_lshl_b32 s{sT0}, s{sT0}, 2
        s_add_u32 s{sT0}, s{sT0}, {FW}
        s_waitcnt vmcnt(0)""")
        s.flag(sT0)
        s.stamp(4)
        k.e(f"s_cmp_lg_u32 s2, 0\ns_cbranch_scc1 T_FIN\ns_movk_i32 s{sCOL}, 224")
        st = k.snap()
        nat = lambda n: 0
        for _ in s.fft_tables(nat): pass
        for _ in s.fft_loads(nat, XF, XF + 1): pass
        s.fft_run()
        k.e("s_waitcnt vmcnt(0)")
        s.flag(sT3)
        s.stamp(7)
        k.e("T_FIN:")
        s.ts_store()
        k.e("s_endpgm")

    def build(s):
        k = s.k
        k.raw(f".globl {NAME}_kernel\n.p2align 8\n.type {NAME}_kernel,@function\n{NAME}_kernel:")
        s.stamp(0)
        k.e(f"""s_load_dwordx16 s[4:19], s[0:1], 0
        s_load_dwordx4 s[20:23], s[0:1], 64
        v_readfirstlane_b32 s{sW}, v0
        v_and_b32 v1, 63, v0
        s_cmp_ge_u32 s2, 256
        s_cbranch_scc1 K_END
        s_lshr_b32 s{sW}, s{sW}, 6
        s_and_b32 s{sW}, s{sW}, 7
        s_sub_u32 s{sCOL}, s2, 32
        s_cbranch_scc1 T_WG
        s_lshr_b32 s{sT0}, s{sCOL}, 3
        s_and_b32 s{sRT}, s2, 6
        s_lshl_b32 s{sRT}, s{sRT}, 1
        s_and_b32 s{sT1}, s{sT0}, 3
        s_add_u32 s{sRT}, s{sRT}, s{sT1}
        s_and_b32 s{sT1}, s2, 1
        s_lshr_b32 s{sDT}, s{sT0}, 2
        s_mul_i32 s{sFT}, s{sT1}, 7
        s_add_u32 s{sFT}, s{sFT}, s{sDT}
        s_lshl_b32 s{sST}, s{sRT}, 1
        s_add_u32 s{sST}, s{sST}, s{sT1}
        s_and_b32 s{sSG}, s{sW}, 3
        s_lshl_b32 s{sS2}, s{sRT}, 2
        s_add_u32 s{sS2}, s{sS2}, s{sSG}
        s_cmp_ge_u32 s{sW}, 4
        s_cbranch_scc1 G_R1""")
        st = k.snap()
        s.g_role(0)
        k.restore(st); k.e("G_R1:")
        s.g_role(1)
        k.restore(st); k.e("T_WG:")
        s.t_wg()
        k.e("K_END:\ns_endpgm\nCODE_END:")
        ref = open(f"cdna_kernels/{NAME}.s.ref").read().split("\n")
        head = [l for l in ref if l.startswith(";") and "@launch" not in l]
        out = head + [f"; @launch grid=(256,1,1) block=(512,1,1) lds={LDS_BYTES}", '.amdgcn_target "amdgcn-amd-amdhsa--gfx950"', ".text"] + k.lines
        out += ['.section .rodata,"a"', ".p2align 6", f""".amdhsa_kernel {NAME}_kernel
  .amdhsa_next_free_vgpr 256
  .amdhsa_next_free_sgpr 102
  .amdhsa_accum_offset 256
  .amdhsa_group_segment_fixed_size 0
  .amdhsa_kernarg_size 80
  .amdhsa_user_sgpr_count 2
  .amdhsa_user_sgpr_kernarg_segment_ptr 1
  .amdhsa_system_sgpr_workgroup_id_x 1
  .amdhsa_float_denorm_mode_32 3
  .amdhsa_float_denorm_mode_16_64 3
.end_amdhsa_kernel"""]
        return "\n".join(out) + "\n"

if __name__ == "__main__":
    open("t/v2.s", "w").write(G(False).build())
    open("t/v2ts.s", "w").write(G(True).build())
    for o in sys.argv[1:]:
        OPT.clear(); OPT.update(o.split("+"))
        open(f"t/y_{o}.s", "w").write(G(True).build())
```

```python
import re, copy
MODRE = re.compile(r"\b(op_sel|op_sel_hi|neg_lo|neg_hi|quad_perm):\[[^\]]*\]")
TRANS = ("v_exp_", "v_log_", "v_rcp_", "v_rsq_", "v_sqrt_", "v_sin_", "v_cos_")
def regs(op):
    op = op.strip().lstrip("-").strip("|")
    m = re.fullmatch(r"v\[(\d+):(\d+)\]", op)
    if m: return set(range(int(m[1]), int(m[2]) + 1)), set()
    m = re.fullmatch(r"v(\d+)", op)
    if m: return {int(m[1])}, set()
    m = re.fullmatch(r"s\[(\d+):(\d+)\]", op)
    if m: return set(), {f"s{i}" for i in range(int(m[1]), int(m[2]) + 1)}
    if re.fullmatch(r"s\d+", op): return set(), {op}
    if op in ("vcc", "vcc_lo", "vcc_hi"): return set(), {"vcc"}
    if op in ("exec", "exec_lo", "exec_hi"): return set(), {"exec"}
    if op == "m0": return set(), {"m0"}
    return set(), set()

class Ins:
    def __init__(s, text):
        s.text = text
        t = MODRE.sub("", text.split(";")[0]).strip()
        p = t.split(None, 1)
        s.mn = mn = p[0]
        ops = [o.strip() for o in p[1].split(",")] if len(p) > 1 else []
        mods = []
        if ops:
            q = ops[-1].split()
            ops[-1] = q[0] if q else ""
            mods = q[1:]
        s.ops, s.mods = ops, mods
        R = [regs(o) for o in ops]
        s.vw, s.vr, s.sw, s.sr = set(), set(), set(), set()
        def rd(lst):
            for v, g in lst: s.vr |= v; s.sr |= g
        def wr(x): s.vw |= x[0]; s.sw |= x[1]
        s.passes = 0
        if mn.startswith("v_mfma"):
            s.kind = "mfma"
            s.passes = 8 if "32x32x16" in mn else 4 if "16x16x32" in mn else 2 if "4x4x4" in mn else None
            wr(R[0]); rd(R[1:]); s.ab = R[1][0] | R[2][0]; s.c = R[3][0]
        elif mn.startswith("v_"):
            s.kind = "valu"
            if mn == "v_nop": pass
            elif "permlane" in mn and "swap" in mn: wr(R[0]); wr(R[1]); rd(R)
            else:
                wr(R[0]); rd(R[1:])
                if mn.startswith(("v_fmac", "v_dot2c", "v_mac")) or "_dpp" in mn or "_sdwa" in mn or "writelane" in mn: rd(R[:1])
        elif mn.startswith("ds_"):
            s.kind = "ds"
            if mn.startswith("ds_read"): wr(R[0]); rd(R[1:])
            else: rd(R)
        elif mn.startswith(("buffer_", "global_")):
            s.kind = "vm"
            if "load" in mn and "lds" not in mods: wr(R[0]); rd(R[1:])
            else: rd(R)
        elif mn.startswith("s_"):
            s.kind = "salu"
            if mn.startswith(("s_cmp", "s_waitcnt", "s_barrier", "s_branch", "s_cbranch", "s_nop", "s_sleep", "s_setprio", "s_endpgm", "s_bitcmp")): rd(R)
            else: wr(R[0]); rd(R[1:])
            if mn.startswith("s_cbranch_vcc"): s.sr.add("vcc")
        else: raise ValueError(text)
        s.trans = mn.startswith(TRANS)
        s.dot = mn.startswith("v_dot")
        s.dma = s.kind == "vm" and "lds" in mods
        if s.dma: s.sr.add("m0")
        s.wide = s.kind == "vm" and "store" in mn and ("x4" in mn or "x3" in mn)
        if s.wide: s.data = R[0][0]
    def cost(s):
        if s.kind == "valu": return 8 if s.trans else 14 if s.dot else 4
        if s.kind == "mfma": return 8
        return 2

P3 = {2: 0, 4: 1, 8: 2}
PADS = True
def need(p, c):
    n = 0
    if p.kind == "valu":
        if c.kind == "mfma" and p.vw & c.vr: n = max(n, 3 if p.dot else 2)
        if c.kind == "valu":
            if p.trans and not c.trans and p.vw & c.vr: n = max(n, 1)
            if p.dot and p.vw & (c.vr | c.vw) and not (c.mn == p.mn and not (p.vw & (regs(c.ops[1])[0] | regs(c.ops[2])[0]))): n = max(n, 3)
            if p.vw & c.vr:
                if "permlane" in c.mn or "_dpp" in c.mn: n = max(n, 2)
                if "readfirstlane" in c.mn or "readlane" in c.mn: n = max(n, 1)
                if "_sdwa" in p.mn: n = max(n, 1)
            if p.sw & c.sr: n = max(n, 4 if "lane" in c.mn else 2)
        if c.kind in ("vm", "ds"):
            if p.sw & c.sr: n = max(n, 5)
            if (p.trans or p.dot) and p.vw & c.vr: n = max(n, 3 if p.dot else 1)
        if c.kind == "salu" and p.sw & c.sr and PADS: n = max(n, 4 if c.mn.startswith("s_cbranch") else 2)
    elif p.kind == "mfma":
        i = P3[p.passes]
        if c.kind == "mfma":
            if p.vw & c.ab: n = max(n, (5, 8, 12)[i])
            if p.vw & c.c:
                if p.vw == c.c and p.passes == c.passes: n = max(n, (2, 0, 0)[i])
                else: n = max(n, (4, 6, 10)[i])
            if p.vw & c.vw and not (p.vw & c.c): n = max(n, (5, 8, 12)[i])
        elif p.vw & (c.vr | c.vw): n = max(n, (5, 8, 12)[i])
        if c.kind != "mfma" and p.c & c.vw: n = max(n, (1, 3, 7)[i])
    elif p.kind == "salu":
        if "m0" in p.sw and (c.dma or "addtid" in c.mn): n = max(n, 1)
    elif p.kind == "vm":
        if p.wide and p.data & c.vw: n = max(n, 2)
    return n

class K:
    def __init__(s):
        s.lines = []; s.vm = []; s.lg = []; s.hist = []; s._lab = 0; s.nops = 0; s.lvl = 0; s.lognop = False
        s.stream = "main"; s.lw = {}; s.flows = {}; s.issued = set(); s.drop = set()
    def snap(s): return (list(s.vm), list(s.lg), list(s.hist))
    def restore(s, st): s.vm, s.lg, s.hist = list(st[0]), list(st[1]), list(st[2])
    def label(s, b="L"):
        s._lab += 1; return f"{b}_{s._lab}"
    def raw(s, l): s.lines.append(l)
    def _age(s, n): s.hist = [(p, a + n) for p, a in s.hist if a + n < 13]
    def _cnt(s, q, idx):
        return sum(1 for e in q[idx + 1:] if not e["opt"])
    def _emit_wait(s, nv, nl):
        parts = []
        if nv is not None: parts.append(f"vmcnt({min(nv, 63)})")
        if nl is not None: parts.append(f"lgkmcnt({min(nl, 15)})")
        if parts: s.lines.append("    s_waitcnt " + " ".join(parts)); s._age(1)
    def _wait_idx(s, iv, il):
        nv = nl = None
        if iv is not None: nv = s._cnt(s.vm, iv); s.vm = s.vm[iv + 1:]
        if il is not None: nl = s._cnt(s.lg, il); s.lg = s.lg[il + 1:]
        s._emit_wait(nv, nl)
    def wait(s, vm=None, lg=None):
        def find(q, t):
            if t is None or not q: return None
            if t == "all": return len(q) - 1
            idx = [i for i, e in enumerate(q) if e["tag"] == t]
            return idx[-1] if idx else None
        s._wait_idx(find(s.vm, vm), find(s.lg, lg))
    def e(s, text, tag=None):
        c = 0
        for l in text.split("\n"):
            l = l.strip()
            if not l: continue
            if l.endswith(":") or l.startswith((";", ".")): s.lines.append(l); continue
            c += s._ins(l, tag)
        return c
    def _ins(s, l, tag):
        c = Ins(l)
        if s.drop and (s.stream in s.drop or c.kind in s.drop or (c.kind in ("vm", "ds") and tag is not None and (tag if isinstance(tag, str) else tag[0]) in s.drop)):
            s.issued.add(tag); return c.cost()
        if c.mn == "s_waitcnt":
            m = re.search(r"vmcnt\((\d+)\)", l)
            if m: assert m[1] == "0"; s.vm = []
            m = re.search(r"lgkmcnt\((\d+)\)", l)
            if m: assert m[1] == "0"; s.lg = []
        for r in [f"v{x}" for x in c.vr] + list(c.sr):
            w = s.lw.get(r)
            if w is not None and w != s.stream: s.flows.setdefault((w, s.stream), set()).add(r)
        for r in [f"v{x}" for x in c.vw] + list(c.sw): s.lw[r] = s.stream
        if tag is not None and c.kind in ("vm", "ds"): s.issued.add(tag)
        touched = c.vr | c.vw
        def last(q, same):
            idx = [i for i, e in enumerate(q) if e["regs"] & (c.vr if same else touched)]
            return idx[-1] if idx else None
        s._wait_idx(last(s.vm, c.kind == "vm"), last(s.lg, c.kind == "ds"))
        n = max([need(p, c) - a for p, a in s.hist] + [0])
        if n > 0:
            s.lines.append(f"    s_nop {n-1}"); s._age(n); s.nops += n
            if s.lognop: print("  nop", n, "before", l)
        s.lines.append("    " + l)
        s._age(int(c.ops[0]) + 1 if c.mn == "s_nop" else 1)
        s.hist.append((c, 0))
        if c.kind == "vm": s.vm.append(dict(tag=tag, regs=set(c.vw), opt=False))
        if c.kind == "ds": s.lg.append(dict(tag=tag, regs=set(c.vw), opt=False))
        return c.cost()
    def cond_begin(s):
        s._cs = s.snap(); s._cv = {id(e) for e in s.vm + s.lg}
    def cond_end(s):
        vm0, lg0, h0 = s._cs
        nv = [dict(e, opt=True) for e in s.vm if id(e) not in s._cv]
        nl = [dict(e, opt=True) for e in s.lg if id(e) not in s._cv]
        s.vm, s.lg = vm0 + nv, lg0 + nl
        s.hist = s.hist + h0
    def show_flows(s):
        def fmt(rs):
            out = []
            for p in "vs":
                n = sorted(int(r[1:]) for r in rs if re.fullmatch(p + r"\d+", r))
                i = 0
                while i < len(n):
                    j = i
                    while j + 1 < len(n) and n[j + 1] == n[j] + 1: j += 1
                    out.append(f"{p}{n[i]}" + (f"-{n[j]}" if j > i else "")); i = j + 1
            return " ".join(out + sorted(r for r in rs if not re.fullmatch(r"[vs]\d+", r)))
        for (w, r), rs in sorted(s.flows.items()): print(f"    {w} -> {r}: {fmt(rs)}")
        s.flows = {}
    def srd(s, d, base, nbytes, off=0):
        if off: s.e(f"s_add_u32 s{d}, s{base}, {off:#x}\ns_addc_u32 s{d+1}, s{base+1}, 0")
        else: s.e(f"s_mov_b64 s[{d}:{d+1}], s[{base}:{base+1}]")
        s.e(f"s_mov_b32 s{d+2}, {nbytes:#x}\ns_mov_b32 s{d+3}, 0x20000")

class Fill:
    def __init__(s, k=None): s.g = []; s.t = 0; s.k = k
    def add(s, gen, at=0): s.g.append([gen, at])
    def run(s, budget):
        while budget > 0:
            act = [x for x in s.g if x[1] <= s.t]
            if not act: return
            x = act[0]
            if s.k: s.k.stream = x[0].__name__
            try: r = next(x[0])
            except StopIteration: s.g.remove(x); continue
            finally:
                if s.k: s.k.stream = "main"
            if isinstance(r, tuple): x[1] = r[1]
            else: budget -= r
    def drain(s):
        s.t = 1 << 30
        while s.g: s.run(1000)
```

```python
import struct, sys
import asm2
from asm2 import K, Fill
asm2.PADS = False
NAME = "parallel_sum__spectral_gfnet__glu_gated_bilinear__prompt"
def fh(x): return "0x%08x" % struct.unpack("<I", struct.pack("<f", x))[0]
MB = 1 << 20
QT, WT, CSO, FL, HO, ZT = 0, 2 * MB, 4 * MB, 4 * MB + MB // 2, 5 * MB, 12 * MB
WS_BYTES = ZT + 29 * 65536
FQ, FW, FH, EPOCH = FL, FL + 4096, FL + 8192, FL + 65536
TS_OFF = 200 * MB
LDS_BYTES = 160 * 1024
SL = 16384
F_LDS, MISC = 8 * SL, 159744
FCS_L, ST_L = MISC, MISC + 2048
SX, SWG, SWU, SWD, SWS, SOUT, SC = 24, 28, 32, 36, 40, 44, 48
sW, sSG, sRT, sFT, sHF, sDT, sPK, sTAG, sS2, sTL, sA, sCNT, sLW, sLD, sT0, sT1, sT2, sT3, sT4, sT5, sU0, sU1 = range(52, 74)
sM = 74
sPC, sQB, sFP, sO0, sO1, sZB, sXM, sHS = 6, 3, 8, 9, 10, 11, 20, 51
sTS = 82
OPT = set()
PAR = {}
def par(n, d): return PAR.get(n, d)
VTAG = 14
SC1 = "sc1"
class _L:
    def __format__(s, f): return "" if "plain" in OPT else "sc1"
LSC = _L()

def R(b, n=4): return f"v[{b}:{b+n-1}]"
def S4(b): return f"s[{b}:{b+3}]"
def mf32(d, A, B, c=None): return f"v_mfma_f32_32x32x16_bf16 {R(d,16)}, {R(A)}, {R(B)}, {'0' if c is True else R(d if c in (None, False) else c,16)}"
def mf4(d, A, B, c0=False): return f"v_mfma_f32_4x4x4_16b_bf16 {R(d)}, {R(A,2)}, {R(B,2)}, {'0' if c0 else R(d)}"
def rot(dst, i): return f"s_bfe_u32 s{dst}, s{sPK}, {(4 << 16) | (4 * i):#x}"
at = lambda n: ("at", n)

class G:
    def __init__(s, tson):
        s.k = K(); s.tson = tson; s.cold = []; s.k.drop = {o[2:] for o in OPT if o.startswith('x_')}; s.inG = True; s.k.lognop = "nops" in OPT
    def nstamp(s, n):
        if "ta" in PAR:
            i, r = divmod(n - PAR["ta"], PAR.get("tb", 4))
            if r == 0 and 0 <= i < 9: s.stamp(int(i) + 1, True)
    def stamp(s, i, force=False):
        if "ta" in PAR and s.inG and i and not force: return
        if s.tson: s.k.e(f"{'s_memtime' if 'cyc' in OPT else 's_memrealtime'} s[{sTS+2*i}:{sTS+2*i+1}]")
    def ts_store(s):
        if not s.tson: return
        k = s.k
        k.e("s_waitcnt vmcnt(0) lgkmcnt(0)")
        k.srd(SC, 22, MB, TS_OFF)
        for i in range(10): k.e(f"v_mov_b32 v{8+i}, s{sTS+2*i}")
        k.e(f"v_mov_b32 v18, s{sCNT}")
        k.e(f"s_lshl_b32 s{sT0}, s2, 3\ns_add_u32 s{sT0}, s{sT0}, s{sW}\ns_lshl_b32 s{sT0}, s{sT0}, 6\ns_mov_b64 exec, 1")
        for i in range(3): k.e(f"buffer_store_dwordx4 {R(8+4*i)}, off, {S4(SC)}, s{sT0} offset:{16*i}")
    def seq(s, text, tag=None):
        for l in text.split("\n"):
            if l.strip(): yield s.k.e(l, tag)
    def flag(s, soff):
        return s.k.e(f"s_mov_b64 exec, 1\nbuffer_store_dword v{VTAG}, off, {S4(SWS)}, s{soff} {SC1}\ns_mov_b64 exec, -1", "flag")
    def cmp(s, regs, sent):
        k = s.k
        for i, r in enumerate(regs):
            d = "vcc" if len(regs) == 1 else f"s[{sM+2*i}:{sM+2*i+1}]"
            k.e(f"v_cmp_eq_u32 {d}, -1, v{r}" if sent else f"v_cmp_ne_u32 {d}, s{sTAG}, v{r}")
        return 4 * len(regs)
    def fin(s, n, lab):
        k = s.k
        for i in range(1, n): k.e(f"s_or_b64 s[{sM}:{sM+1}], s[{sM}:{sM+1}], s[{sM+2*i}:{sM+2*i+1}]")
        k.e(f"s_cbranch_vccnz {lab}" if n == 1 else f"s_cbranch_scc1 {lab}")
    def check(s, regs, reload, sent=False, pre=True, sleep=1):
        k = s.k
        ok, lp = k.label("ok"), k.label("spin")
        if pre: s.cmp(regs, sent)
        if "nochk" in OPT and s.inG:
            s.fin(len(regs), ok); k.e(f"{ok}:")
            return 2 + 6 * len(regs)
        s.fin(len(regs), lp)
        k.cond_begin()
        hot, k.lines = k.lines, s.cold
        k.e(f"{lp}:\ns_sleep {sleep}\n{reload}\ns_waitcnt vmcnt(0)\ns_add_u32 s{sCNT}, s{sCNT}, 1\ns_cmp_ge_u32 s{sCNT}, 0x4000\ns_cbranch_scc1 {ok}")
        s.cmp(regs, sent); s.fin(len(regs), lp)
        k.e(f"s_branch {ok}")
        k.lines = hot
        k.cond_end()
        k.e(f"{ok}:")
        return 2 + 6 * len(regs)
    def get_tag(s):
        s.k.e(f"s_or_b32 s{sTAG}, s{sTAG}, 0x40004000\ns_add_u32 s{sTAG}, s{sTAG}, 1\ns_and_b32 s{sTAG}, s{sTAG}, 0xbfffbfff\nv_mov_b32 v{VTAG}, s{sTAG}\ns_mov_b32 s{sCNT}, 0")
    def load_epoch(s):
        s.k.e(f"s_add_u32 s{sT4}, s22, {EPOCH:#x}\ns_addc_u32 s{sT5}, s23, 0\ns_load_dword s{sTAG}, s[{sT4}:{sT5}], 0")
    def split_hilo(s, dst, src, t):
        return f"""v_cvt_pk_bf16_f32 v{t}, v{src}, v{src}
        v_and_b32 v{t}, 0xffff0000, v{t}
        v_sub_f32 v{t}, v{src}, v{t}
        v_cvt_pk_bf16_f32 v{dst}, v{src}, v{t}"""

    def checkm(s, regs, reload, t):
        mx = f"v_max3_u32 v{t}, v{regs[0]}, v{regs[1]}, v{regs[2]}\nv_max_u32 v{t}, v{t}, v{regs[3]}" if len(regs) == 4 else f"v_max_u32 v{t}, v{regs[0]}, v{regs[1]}"
        return s.k.e(mx) + s.check([t], reload + "\n" + mx, sent=True)
    def x_dma(s, b, VX):
        k = s.k
        k.e(f"s_lshl1_add_u32 m0, s{sLW}, {SL*(b+1)}\n{rot(sT0, b)}\ns_lshl_b32 s{sT0}, s{sT0}, 7\ns_add_u32 s{sU0}, s{sT0}, s{sU1}")
        for i in range(4): yield k.e(f"buffer_load_dwordx4 v{VX+i}, {S4(SX)}, s{sU0} offen offset:{i*1024} lds", ("X", b))
    def w_dma(s, i, VW):
        k = s.k; P, ii = divmod(i, 7); slot = i % 6
        k.e(f"{rot(sT4, ii)}\ns_mul_i32 s{sT4}, s{sT4}, {64*3584}\ns_add_u32 s{sT5}, s{sT4}, {1792*P + 8*3584 - 1024}")
        if P: k.e(f"s_add_u32 s{sT4}, s{sT4}, 1792")
        for u in range(2):
            k.e(f"s_add_u32 m0, s{sLW}, {slot*SL + u*8192}")
            for h in range(2): yield k.e(f"buffer_load_dwordx4 v{VW+u}, {S4(SWU if u else SWG)}, s{sT4+h} offen offset:{1024*h} lds", ("W", i))
    def w_addr(s, T, VW):
        s.k.e(f"""v_lshrrev_b32 v{T}, 7, v1
        v_mul_u32_u24 v{VW}, 3584, v{T}
        v_and_b32 v{T}, 2, v{T}
        v_bfe_u32 v{T+1}, v1, 5, 2
        v_xor_b32 v{T}, v{T}, v{T+1}
        v_lshl_add_u32 v{VW}, v{T}, 5, v{VW}
        v_and_b32 v{T}, 16, v1
        s_mul_i32 s{sT0}, s{sSG}, {16*3584}
        s_lshl_b32 s{sT1}, s{sFT}, 7
        s_add_u32 s{sT0}, s{sT0}, s{sT1}
        v_add3_u32 v{VW}, v{VW}, v{T}, s{sT0}
        v_xor_b32 v{VW+1}, 32, v{VW}""")
        s.k.srd(SWG, 12, 448 * 3584); s.k.srd(SWU, 14, 448 * 3584)
    def unit(s, d, P, i):
        if P: return f"s_bfe_u32 s{d}, s{sPC + (i >> 2)}, {(8 << 16) | (8 * (i & 3)):#x}"
        return f"{rot(d, i)}\ns_add_u32 s{d}, s{d}, s{sLD}"
    def wd_dma(s, P, i, slot, VD):
        k = s.k
        k.e(f"{s.unit(sT4, P, i)}\ns_mul_i32 s{sT4}, s{sT4}, {32*896}\ns_lshl1_add_u32 m0, s{sLW}, {slot*SL}")
        for e in range(4):
            d = 896 * 896 * P if e == 0 else 8 * 896 - 1024
            if d: k.e(f"s_add_u32 s{sT4}, s{sT4}, {d}")
            yield k.e(f"buffer_load_dwordx4 v{VD}, {S4(SWD)}, s{sT4} offen offset:{1024*e} lds", ("D", P, i))
    def wd_addr(s, T, VD, TB, base):
        s.k.e(f"""v_bfe_u32 v{T}, v1, 8, 1
        v_bfe_u32 v{T+1}, v1, 6, 2
        v_lshrrev_b32 v{T+2}, 9, v1
        v_lshl_add_u32 v{TB}, v{T+2}, 2, v{T+1}
        v_lshlrev_b32 v{TB}, 7, v{TB}
        v_bfe_u32 v{T+3}, v1, 7, 1
        v_lshl_add_u32 v{TB}, v{T+3}, 6, v{TB}
        v_lshl_add_u32 v{TB}, v{T}, 5, v{TB}
        v_bfe_u32 v{T+3}, v1, 4, 2
        v_lshl_add_u32 v{TB}, v{T+3}, 3, v{TB}
        s_lshl1_add_u32 s{sT0}, s{sLW}, {base}
        v_add_u32 v{TB}, s{sT0}, v{TB}
        v_xor_b32 v{TB+1}, 64, v{TB}
        v_lshrrev_b32 v{T+1}, 7, v1
        v_mul_u32_u24 v{VD}, 896, v{T+1}
        v_lshlrev_b32 v{T}, 6, v{T}
        v_and_b32 v{T+3}, 0x70, v1
        v_xor_b32 v{T}, v{T}, v{T+3}
        s_lshl_b32 s{sT1}, s{sDT}, 7
        v_add3_u32 v{VD}, v{VD}, v{T}, s{sT1}""")
        s.k.srd(SWD, 16, 1792 * 896)
    def scal(s):
        k = s.k
        k.e(f"""s_lshl1_add_u32 s{sZB}, s{sRT}, s{sHF}
        s_mul_i32 s{sA}, s{sZB}, {224*1024}
        s_add_u32 s{sA}, s{sA}, {HO}
        s_lshl_b32 s{sFP}, s{sZB}, 7
        s_add_u32 s{sFP}, s{sFP}, {FH}
        s_lshl_b32 s{sZB}, s{sZB}, 11
        s_add_u32 s{sZB}, s{sZB}, {ZT}
        s_mul_i32 s{sHS}, s{sTL}, 28
        s_add_u32 s{sHS}, s{sHS}, s{sFT}
        s_lshl_b32 s{sHS}, s{sHS}, 12
        s_add_u32 s{sHS}, s{sHS}, {HO}
        s_mul_i32 s{sLD}, s{sSG}, 7
        {rot(sT0, 0)}
        s_lshl1_add_u32 s{sT0}, s{sT0}, s{sSG}
        s_lshr_b32 s{sT3}, s{sSG}, 1
        s_lshl_b32 s{sPC}, s{sT3}, 24
        s_mov_b32 s{sPC+1}, 0x010101
        s_mul_i32 s{sT3}, s{sT3}, 14""")
        for i in range(7):
            k.e(f"s_add_u32 s{sT1}, s{sT0}, {4*i - (14 if i > 3 else 0)}")
            if i == 3: k.e(f"s_sub_u32 s{sT1}, s{sT1}, s{sT3}")
            k.e(f"""s_sub_u32 s{sT2}, s{sT1}, 14
            s_cselect_b32 s{sT1}, s{sT1}, s{sT2}
            s_lshl_b32 s{sT1}, s{sT1}, {8*(i&3)+1}
            s_or_b32 s{sPC+(i>>2)}, s{sPC+(i>>2)}, s{sT1}""")
    def hld(s, P, i, r, sc=SC1):
        o = []
        for S in range(2):
            p = f"{s.unit(sT4, P, i)}\ns_lshl_b32 s{sT4}, s{sT4}, 11\ns_add_u32 s{sT4}, s{sT4}, s{sA}\n" + (f"s_add_u32 s{sT4}, s{sT4}, {56*1024}\n" if P else "") if S == 0 else f"s_add_u32 s{sT4}, s{sT4}, {112*1024}\n"
            for kk in range(2):
                o.append(p + f"buffer_load_dwordx4 {R(r+8*kk+4*S)}, v1, {S4(SWS)}, s{sT4} offen offset:{1024*kk} {sc}"); p = ""
        return o
    def gen_F(s, n, T, B):
        k = s.k
        k.e(f"""v_bfe_u32 v{T}, v1, 5, 4
        s_lshl_b32 s{sT0}, s{sFT}, 4
        v_add_u32 v{T}, s{sT0}, v{T}
        v_bfe_u32 v{T+1}, v1, 4, 1
        v_lshl_add_u32 v{T+2}, v{T}, 1, v{T+1}
        v_cmp_eq_u32 vcc, 1, v{T+2}
        v_mov_b32 v{T+3}, 224
        v_cvt_f32_u32 v{T+1}, v{T+1}
        v_cndmask_b32 v{T}, v{T}, v{T+3}, vcc
        v_mul_f32 v{T+1}, 0x3e800000, v{T+1}
        v_cvt_f32_u32 v{T}, v{T}
        v_cndmask_b32 v{T+1}, v{T+1}, 0, vcc
        v_mul_f32 v{T}, {fh(1/448)}, v{T}
        v_lshrrev_b32 v{T+2}, 9, v1
        v_lshlrev_b32 v{T+2}, 3, v{T+2}
        s_xor_b32 s{sT1}, s{sW}, {4*par("fsw", 0)}
        {rot(sT0, 0)}
        s_lshl_b32 s{sT0}, s{sT0}, 2
        s_add_u32 s{sT0}, s{sT0}, s{sT1}
        s_lshl_b32 s{sT0}, s{sT0}, 4
        s_sub_u32 s{sT0}, s{sT0}, 448
        v_add_u32 v{T+2}, s{sT0}, v{T+2}
        v_cvt_f32_i32 v{T+2}, v{T+2}
        v_fmac_f32 v{T+1}, v{T}, v{T+2}
        s_lshl_b32 s{sT1}, s{sT1}, 10
        s_add_u32 s{sT1}, s{sT1}, {F_LDS}
        v_add_u32 v{T+3}, s{sT1}, v1
        v_mov_b32 v{T+2}, 0
        s_mov_b32 s{sT0}, 0x3f803f80""")
        for i in range(n):
            r = B + 8 * (i & 1)
            for j in range(8):
                if 128 * i + j: k.e(f"v_fmamk_f32 v{r+j}, v{T}, {fh(128*i+j)}, v{T+1}")
            for j in range(8): k.e(f"v_cos_f32 v{r+j}, v{r+j if 128*i+j else T+1}")
            o = B + 16 + 4 * (i & 1)
            for j in range(4): k.e(f"v_cvt_pk_bf16_f32 v{o+j}, v{r+2*j}, v{r+2*j+1}")
            k.e(f"ds_write_b128 v{T+3}, {R(o)} offset:{i*8192}")
            for j in range(4): k.e(f"v_dot2c_f32_bf16 v{T+2}, s{sT0}, v{o+j}")
        k.e(f"""s_lshl_b32 s{sT1}, s{sW}, 8
        s_add_u32 s{sT1}, s{sT1}, {FCS_L}
        v_lshrrev_b32 v{T+3}, 2, v1
        v_add_u32 v{T+3}, s{sT1}, v{T+3}
        ds_write_b32 v{T+3}, v{T+2}""")
    def x_addr(s, T, XRD):
        s.k.e(f"""v_bfe_u32 v{T}, v1, 4, 5
        v_bfe_u32 v{T+1}, v1, 5, 3
        v_lshrrev_b32 v{T+2}, 9, v1
        v_xor_b32 v{T+1}, v{T+1}, v{T+2}
        v_lshlrev_b32 v{T+1}, 4, v{T+1}
        v_lshl_add_u32 v{XRD}, v{T}, 7, v{T+1}
        s_lshl1_add_u32 s{sT0}, s{sLW}, {SL}
        v_add_u32 v{XRD}, s{sT0}, v{XRD}
        v_xor_b32 v{XRD+1}, 32, v{XRD}
        v_xor_b32 v{XRD+2}, 64, v{XRD}
        v_xor_b32 v{XRD+3}, 96, v{XRD}""")
    def xrd(s, b, XRD, r):
        if b == 4:
            for i in range(4): s.k.e(f"v_add_u32 v{XRD+i}, {4*SL}, v{XRD+i}")
        for i in range(4): s.k.e(f"ds_read_b128 {R(r+4*i)}, v{XRD+i} offset:{(b&3)*SL}")
    def bar(s, *tags):
        k = s.k; idx = []
        for v in tags:
            assert v in k.issued, v
            idx += [(i, v) for i, e in enumerate(k.vm) if e["tag"] == v]
        k.wait(vm=max(idx, key=lambda x: x[0])[1] if idx else None, lg="all")
        k.e("s_barrier")
    def wa_addr(s, WA, base):
        s.k.e(f"""v_lshrrev_b32 v{WA}, 5, v1
        v_and_b32 v{WA}, 16, v{WA}
        v_xor_b32 v{WA}, v{WA}, v1
        s_lshl1_add_u32 s{sT0}, s{sLW}, {base}
        v_add_u32 v{WA}, s{sT0}, v{WA}""")
        for q in range(1, 4): s.k.e(f"v_xor_b32 v{WA+q}, {q*32}, v{WA}")
    def wr(s, WA, acc, t, S):
        for q in range(4): yield 8 + s.k.e(f"ds_write_b128 v{WA+q}, {R(acc+4*q)} offset:{(2*S+t)*SL + q*1024}")
    def finish(s):
        k = s.k
        s.ts_store()
        k.e("s_endpgm")
        if "flows" in OPT: k.show_flows()
        if "log" in OPT: print("  nops", k.nops)
        k.issued = set(); k.lw = {}
    CSL = [9, 2, 3, 4, 5, 0, 1]

    def c_role(s):
        k = s.k; F = Fill(k)
        TRL, TRH, XRD, AR, ACC, XF = 2, 6, 10, 16, 48, 112
        VX, VW, VD, NR, NM, TB, NT, VO, VN, VR, TMP = 224, 228, 230, 231, 232, 234, 240, 248, 249, 250, 15
        WA, XRES, ZN = 2, 224, 236
        T = ACC
        done = {}
        def mark(n):
            done[n] = F.t
            if "log" in OPT: print("  C", n, "at", F.t)
        def force(n):
            while n not in done: F.run(40); F.t += (n not in done)
        k.e(f"""v_lshrrev_b32 v{T}, 7, v1
        v_mul_u32_u24 v{VX}, {64*896}, v{T}
        v_lshrrev_b32 v{T}, 4, v1
        v_xor_b32 v{T}, v{T}, v1
        v_and_b32 v{T}, 0x70, v{T}
        v_add_u32 v{VX}, v{T}, v{VX}
        v_xor_b32 v{VX+1}, 64, v{VX}
        v_add_u32 v{VX+2}, {2*(8*64*896-1024)}, v{VX}
        v_add_u32 v{VX+1}, {8*64*896-1024}, v{VX+1}
        v_add_u32 v{VX+3}, {2*(8*64*896-1024)}, v{VX+1}
        s_mul_i32 s{sU1}, s{sS2}, 896
        s_waitcnt lgkmcnt(0)""")
        k.srd(SX, 4, 2048 * 896)
        NWC = par("nwc", 4)
        def ldq():
            for b in range(7): yield from s.x_dma(b, VX)
            for i in range(NWC): yield from s.w_dma(i, VW)
        lq = ldq()
        def issue(n):
            for _ in range(n): next(lq, None)
        issue(par("x0n", 8))
        s.stamp(1)
        s.gen_F(4 - par("fsw", 0), T, T + 8)
        issue(par("ahead", 12) - par("x0n", 8))
        s.x_addr(T, XRD)
        s.w_addr(T, VW)
        k.e(f"""v_bfe_u32 v{T}, v1, 8, 1
        v_bfe_u32 v{T+1}, v1, 6, 2
        v_lshrrev_b32 v{T+2}, 9, v1
        v_lshl_add_u32 v{T+3}, v{T+2}, 3, v{T+1}
        v_lshlrev_b32 v{T+3}, 7, v{T+3}
        v_lshl_add_u32 v{TRL}, v{T}, 13, v{T+3}
        v_and_or_b32 v{T+4}, v{T+1}, 2, v{T}
        v_lshl_add_u32 v{TRL}, v{T+4}, 5, v{TRL}
        v_bfe_u32 v{T+4}, v1, 4, 2
        v_lshl_add_u32 v{TRL}, v{T+4}, 3, v{TRL}""")
        for j in range(1, 4): k.e(f"v_xor_b32 v{TRL+j}, {32*j}, v{TRL}")
        for j in range(4): k.e(f"v_add_u32 v{TRH+j}, {4*SL}, v{TRL+j}")
        k.e(f"""v_bfe_u32 v{TMP}, v1, 4, 5
        s_lshl_b32 s{sT0}, s{sSG}, 7
        s_add_u32 s{sT0}, s{sT0}, {ST_L}
        v_lshl_add_u32 v{TMP}, v{TMP}, 2, s{sT0}
        s_mov_b32 s{sCNT}, 0""")
        k.srd(SWS, 22, WS_BYTES)
        s.stamp(9)
        for b in range(7):
            s.bar(("X", b))
            if b == 0: s.stamp(2)
            if b == 6: s.stamp(3)
            s.xrd(b, XRD, XF + 16 * b)
            issue(4)
            if b == 0: s.scal()
            if b == 1: s.wd_addr(T, VD, TB, 0)
        issue(99)
        for i in range(2): k.e(f"v_add_u32 v{TB+2+i}, {4*SL}, v{TB+i}\nv_add_u32 v{TB+4+i}, {8*SL}, v{TB+i}")
        s.bar(("W", 0))
        k.e(f"ds_read_b32 v{NM}, v{TMP}\nds_read_b32 v{NR}, v{TMP} offset:512")
        if par("prio", 1): k.e("s_setprio 1")
        kmaj = lambda its: [(i, kk, j) for i in its for kk in range(4) for j in range(4)]
        tmaj = lambda its: [(i, kk, j) for j in range(4) for i in its for kk in range(4)]
        nt = par("nt", 3)
        M = kmaj(range(6)) + tmaj([6]) + tmaj([7]) + kmaj(range(8, 14 - nt)) + tmaj(range(14 - nt, 14))
        last = {}
        for m, (i, kk, j) in enumerate(M): last[i // 7, j] = m
        def norm():
            for kk in range(28):
                for h in range(2):
                    x = XF + 4 * kk + 2 * h; t = NT + 4 * h
                    yield from s.seq(f"""v_lshlrev_b32 v{t}, 16, v{x}
                    v_and_b32 v{t+1}, 0xffff0000, v{x}
                    v_lshlrev_b32 v{t+2}, 16, v{x+1}
                    v_and_b32 v{t+3}, 0xffff0000, v{x+1}
                    v_fma_f32 v{t}, v{t}, v{NR}, v{NM}
                    v_fma_f32 v{t+1}, v{t+1}, v{NR}, v{NM}
                    v_fma_f32 v{t+2}, v{t+2}, v{NR}, v{NM}
                    v_fma_f32 v{t+3}, v{t+3}, v{NR}, v{NM}
                    v_cvt_pk_bf16_f32 v{x}, v{t}, v{t+1}""")
                    if h: done["n", kk] = F.t
                    yield k.e(f"v_cvt_pk_bf16_f32 v{x+1}, v{t+2}, v{t+3}")
            mark("norm")
        def hepi():
            for P in range(2):
                if P: yield k.e(f"s_add_u32 s{sHS}, s{sHS}, {56*1024}")
                for j in range(4):
                    c = ACC + 16 * j; o = NT + 4 * (j & 1)
                    yield at(last[P, j] + 2)
                    assert "norm" in done
                    for i in range(4):
                        yield from s.seq(f"v_mul_f32 v{c+2*i}, v{c+2*i}, v{c+8+2*i}\nv_mul_f32 v{c+2*i+1}, v{c+2*i+1}, v{c+9+2*i}")
                    for i in range(4):
                        if i == 3: done["e", P, j] = F.t
                        yield k.e(f"v_cvt_pk_bf16_f32 v{o+i}, v{c+2*i}, v{c+2*i+1}")
                    yield 10 + k.e(f"buffer_store_dwordx4 {R(o)}, v1, {S4(SWS)}, s{sHS} offen offset:{1024*j} {SC1}", "H")
                    mark(("H", P, j))
                s.stamp(5 + 2 * P)
        F.add(norm(), -99); F.add(hepi(), -99)
        rp = [0]; pub = [0]
        def reads(upto):
            c = 0
            while rp[0] <= min(upto, 223) and M[rp[0]][0] <= pub[0]:
                i, kk, j = M[rp[0]]; slot = i % 6
                for hh in range(2): c += 2 + k.e(f"ds_read_b64_tr_b16 {R(AR+4*(rp[0]%8)+2*hh, 2)}, v{(TRH if slot >= 4 else TRL)+j} offset:{(slot&3)*SL + kk*2048 + hh*512}")
                rp[0] += 1
            return c
        DIST, DB = par("dist", 6), par("db", 4)
        F.t = -1
        reads(DIST - 1)
        force(("n", par("n0", 1)))
        s.stamp(4)
        for m, (i, kk, j) in enumerate(M):
            P, ii = divmod(i, 7)
            F.t = m
            if P == 0: force(("n", 4 * ii + kk))
            if i == 7 and kk == 0: force(("e", 0, j))
            F.t = m
            k.e(mf32(ACC + 16 * j, AR + 4 * (m % 8), XF + 16 * ii + 4 * kk, ii + kk == 0))
            s.nstamp(m)
            if m % 32 == 16 - DB and m < 192:
                kb = m // 32
                assert rp[0] == 32 * kb + 16
                pub[0] = 2 * kb + 2 + (kb == 5)
                s.bar(*[("W", w) for w in range(NWC) if w <= pub[0]])
            c = reads(m + DIST)
            F.run(max(4, (par("nb", 30) if "norm" not in done else par("bud", 24)) - c))
        s.stamp(6)
        F.drain()
        if par("prio", 1) == 1: k.e("s_setprio 0")
        s.bar()
        NH = par("nh", 4)
        k.srd(SOUT, 18, 2048 * 896)
        def hl(i):
            for l in s.hld(1, i, XF + 16 * i): k.e(l, ("h", i))
        def dl(i):
            for _ in s.wd_dma(1, i, s.CSL[i], VD): pass
        for i in range(NH, 7): dl(i)
        k.e(f"""s_and_b32 s{sO0}, s{sS2}, 0x39
        s_lshl2_add_u32 s{sO0}, s{sHF}, s{sO0}
        s_lshl_b32 s{sT1}, s{sSG}, 9
        s_add_u32 s{sO0}, s{sO0}, s{sT1}
        s_mul_i32 s{sO0}, s{sO0}, 896
        s_lshl_b32 s{sT1}, s{sDT}, 7
        s_add_u32 s{sO0}, s{sO0}, s{sT1}
        s_add_u32 s{sO1}, s{sO0}, {256*896}
        v_lshrrev_b32 v{VN}, 8, v1
        v_mul_u32_u24 v{VO}, {64*896}, v{VN}
        v_bfe_u32 v{VR}, v1, 4, 4
        v_lshl_add_u32 v{VO}, v{VR}, 3, v{VO}
        s_lshl_b32 s{sT0}, s{sSG}, 3
        v_add_u32 v{VN}, s{sT0}, v{VN}
        v_lshlrev_b32 v{VN}, 4, v{VN}
        v_bfe_u32 v{VR}, v1, 7, 1
        v_lshlrev_b32 v{VR}, 14, v{VR}
        v_and_b32 v{TMP}, 0x70, v1
        v_lshl_add_u32 v{VR}, v{TMP}, 5, v{VR}
        v_xor_b32 v{TMP}, v{TMP}, v{VN}
        v_add3_u32 v{VR}, v{VR}, v{TMP}, {2*SL}
        v_xor_b32 v{VR+1}, 64, v{VR}
        v_add_u32 v{VR+2}, {4*SL}, v{VR}
        v_add_u32 v{VR+3}, {4*SL}, v{VR+1}
        s_add_u32 s{sZB}, s{sZB}, {28*65536}""".replace(f"v_add3_u32 v{VR}, v{VR}, v{TMP}, {2*SL}", f"v_add_u32 v{VR}, v{VR}, v{TMP}\nv_add_u32 v{VR}, {2*SL}, v{VR}"))
        s.wa_addr(WA, 2 * SL)
        if par("hw", 0): k.wait(vm="H")
        for i in range(7): hl(i)
        for S in range(2):
            for g in range(2): k.e(f"buffer_load_dwordx2 {R(XRES+4*S+2*g, 2)}, v{VO}, {S4(SX)}, s{sO0+g} offen offset:{1792*S}")
        s.stamp(8)
        def ard(f):
            i, kk, t = f >> 2, (f >> 1) & 1, f & 1; slot = s.CSL[i]
            if i >= NH: k.wait(vm=("D", 1, i))
            for hh in range(2): k.e(f"ds_read_b64_tr_b16 {R(AR+4*(f%8)+2*hh, 2)}, v{TB+2*(slot>>2)+t} offset:{(slot&3)*SL + kk*2048 + hh*1024}")
        for f in range(8): ard(f)
        acc = lambda t, S: ACC + 16 * (2 * S + t)
        m = 224 + 56
        for i in range(7):
            r = XF + 16 * i
            s.checkm([r + 3, r + 7, r + 11, r + 15], "\n".join(s.hld(1, i, r)), TMP)
            o = [(kk, t, S) for kk in range(2) for t in range(2) for S in range(2)]
            if i == 6: o = [(kk, t, S) for S in range(2) for t in range(2) for kk in range(2)]
            for n, (kk, t, S) in enumerate(o):
                f = 4 * i + 2 * kk + t
                k.e(mf32(acc(t, S), AR + 4 * (f % 8), r + 8 * kk + 4 * S, i + kk == 0))
                s.nstamp(m); m += 1
                if S == 1 and f + 8 < 28: ard(f + 8)
                if i == 6 and n in (3, 5, 7):
                    for _ in s.wr(WA, acc((n - 3) >> 1 & 1, (n - 3) >> 2), (n - 3) >> 1 & 1, (n - 3) >> 2): pass
        for _ in s.wr(WA, acc(1, 1), 1, 1): pass
        zl = [f"buffer_load_dword v{ZN+2*S+g}, v{VN}, {S4(SWS)}, s{sZB} offen offset:{1024*S + 64*g} {SC1}" for S in range(2) for g in range(2)]
        k.e("\n".join(zl))
        s.bar()
        s.nstamp(340)
        RB, SUM = XF, ACC
        def rd(role, S):
            for g in range(2):
                for w in range(4): k.e(f"ds_read_b128 {R(RB+32*S+16*g+4*w)}, v{VR+2*role+g} offset:{2*S*SL + w*4096}")
        rd(0, 0); rd(0, 1)
        for S in range(2):
            for g in range(2):
                d = SUM + 8 * S + 4 * g; b = RB + 32 * S + 16 * g
                for e in range(4):
                    x = XRES + 4 * S + 2 * g + (e >> 1)
                    k.e(f"v_and_b32 v{d+e}, 0xffff0000, v{x}" if e & 1 else f"v_lshlrev_b32 v{d+e}, 16, v{x}")
                for w in range(4):
                    for e in range(4): k.e(f"v_add_f32 v{d+e}, v{d+e}, v{b+4*w+e}")
        s.checkm([ZN, ZN + 1, ZN + 2, ZN + 3], "\n".join(zl), TMP)
        for i in range(4): k.e(f"v_lshlrev_b32 v{ZN+i}, 16, v{ZN+i}")
        for i in range(4):
            for e in range(4): k.e(f"v_fma_f32 v{SUM+4*i+e}, v{ZN+i}, {'-0.5' if e & 1 else '0.5'}, v{SUM+4*i+e}")
        for S in range(2):
            s.bar()
            s.nstamp(341 + S)
            rd(1, S)
            for g in range(2):
                d = SUM + 8 * S + 4 * g; b = RB + 32 * S + 16 * g
                for w in range(4):
                    for e in range(4): k.e(f"v_add_f32 v{d+e}, v{d+e}, v{b+4*w+e}")
                k.e(f"v_cvt_pk_bf16_f32 v{d}, v{d}, v{d+1}\nv_cvt_pk_bf16_f32 v{d+1}, v{d+2}, v{d+3}")
                k.e(f"buffer_store_dwordx2 {R(d,2)}, v{VO}, {S4(SOUT)}, s{sO0+g} offen offset:{1792*S}")
        if s.tson: k.e("s_waitcnt vmcnt(0)"); s.stamp(1); s.nstamp(343)
        s.finish()

    def h_role(s):
        k = s.k; F = Fill(k)
        XRD, FA, VW, VD, TB, VQ, SGN, TMP = 2, 6, 7, 9, 10, 12, 13, 15
        WA, VP, PD, MS = 2, 6, 12, 0
        ACC, WDR, HB = 16, 80, 144
        D1, D2C, D2S, CLR, SQ, SM, ONE, M4, FC = 16, 32, 48, 76, 80, 88, 64, 68, 72
        E, RSR, PA, PB = 96, 112, 128, 136
        XB, FB, T = HB, HB + 48, HB + 96
        done = {}
        def force(n):
            while n not in done: F.run(40)
        def run(g):
            for _ in g: pass
        for i in range(4): k.e(f"v_mov_b32 v{CLR+i}, -1")
        k.e(f"s_lshl_b32 s{sQB}, s{sFT}, 7\ns_add_u32 s{sQB}, s{sQB}, s{sTL}\ns_lshl_b32 s{sQB}, s{sQB}, 10\ns_waitcnt lgkmcnt(0)")
        k.srd(SWS, 22, WS_BYTES)
        s.load_epoch()
        def clrb(base):
            for i in range(2): k.e(f"s_add_u32 s{sT4}, s{sQB}, {base + 65536*i}\nbuffer_store_dwordx4 {R(CLR)}, v1, {S4(SWS)}, s{sT4} offen {SC1}", "C")
            L = k.label("nonyq")
            k.e(f"s_cmp_lg_u32 s{sFT}, 0\ns_cbranch_scc1 {L}")
            k.cond_begin()
            k.e(f"s_add_u32 s{sT4}, s{sQB}, {base + 28*65536}\nbuffer_store_dwordx4 {R(CLR)}, v1, {S4(SWS)}, s{sT4} offen {SC1}", "C")
            k.cond_end()
            k.e(f"{L}:")
        k.e("s_waitcnt lgkmcnt(0)")
        clrb(QT)
        s.stamp(1)
        s.gen_F(3 + par("fsw", 0), T, XB)
        clrb(ZT)
        s.get_tag()
        s.x_addr(T, XRD)
        k.e(f"""v_add_u32 v{FA}, {F_LDS}, v1
        v_lshrrev_b32 v{TMP}, 2, v1
        v_add_u32 v{TMP}, {FCS_L}, v{TMP}
        v_mov_b32 v{ONE}, 0x3f803f80
        v_mov_b32 v{ONE+1}, 0x3f803f80""")
        def etab():
            C_ = T + 4
            yield from s.seq(f"""v_bfe_u32 v{T}, v1, 4, 5
            v_cvt_f32_u32 v{T}, v{T}
            v_lshrrev_b32 v{T+1}, 9, v1
            v_lshlrev_b32 v{T+1}, 8, v{T+1}
            v_add_u32 v{T+1}, s{sS2}, v{T+1}
            v_cvt_f32_u32 v{T+1}, v{T+1}
            v_mul_f32 v{T+1}, {fh(1/2048)}, v{T+1}
            v_mul_f32 v{T+1}, v{T+1}, v{T}
            v_mul_f32 v{T}, {fh(1/32)}, v{T}""")
            for q in range(2):
                for jp in range(4):
                    c = C_ + 4 * (jp & 1)
                    for e in range(2):
                        j = 2 * jp + e
                        yield from s.seq(f"v_fmamk_f32 v{c+e}, v{T}, {fh(16*q + 8*(j>>2) + (j&3))}, v{T+1}\nv_sin_f32 v{c+2+e}, v{c+e}\nv_cos_f32 v{c+e}, v{c+e}")
                    yield from s.seq(f"v_cvt_pk_bf16_f32 v{E+8+4*q+jp}, v{c+2}, v{c+3}\nv_cvt_pk_bf16_f32 v{E+4*q+jp}, v{c}, v{c+1}")
            done["E"] = 1
        U0, U1 = PB, PB + 1
        def misc():
            for st in (4, 2, 1):
                for i in range(st): yield k.e(f"v_add_f32 v{D2C+i}, v{D2C+i}, v{D2C+st+i}")
            yield from s.seq(s.split_hilo(FC, D2C, D2C + 1))
            for i in range(1, 4): yield k.e(f"v_mov_b32 v{FC+i}, 0\nv_mov_b32 v{M4+i}, 0")
            yield k.e(f"""s_cmp_eq_u32 s{sFT}, 0
            s_cselect_b32 s{sXM}, 3, 0
            s_mov_b32 s{sXM+1}, s{sXM}
            s_and_b32 s{sM+6}, s{sXM}, 2
            s_mov_b32 s{sM+7}, s{sM+6}""")
            yield from s.seq(f"""v_and_b32 v{VQ}, 0xf0, v1
            v_bfe_u32 v{SGN}, v1, 8, 1
            v_lshl_add_u32 v{VQ}, v{SGN}, 16, v{VQ}
            v_mov_b32 v{SGN}, {28*65536}
            v_cndmask_b32 v{VQ}, v{VQ}, v{SGN}, s[{sM+6}:{sM+7}]
            v_lshrrev_b32 v{SGN}, 9, v1
            v_lshl_add_u32 v{VQ}, v{SGN}, 8, v{VQ}
            v_cndmask_b32 v{MS}, 1.0, 0, s[{sXM}:{sXM+1}]
            v_bfe_i32 v{U0}, v1, 4, 1
            v_lshlrev_b32 v{U1}, 4, v{SGN}
            v_and_b32 v{SGN}, 0x80008000, v{U0}
            v_bfe_u32 v{U0}, v1, 4, 5""")
            yield k.e(f"""s_lshl_b32 s{sT0}, s{sSG}, 7
            s_add_u32 s{sT0}, s{sT0}, {ST_L}
            v_lshl_add_u32 v{U0}, v{U0}, 2, s{sT0}
            v_add_u32 v{U1}, s{sT0}, v{U1}""")
            yield k.e(f"""s_mov_b32 s{sM}, 0x22222222
            s_mov_b32 s{sM+1}, 0x22222222
            s_mov_b32 s{sM+2}, 0x44444444
            s_mov_b32 s{sM+3}, 0x44444444
            s_mov_b32 s{sM+4}, 0x88888888
            s_mov_b32 s{sM+5}, 0x88888888""")
            done["misc"] = 1
        ge = etab()
        for _ in range(par("epre", 40)): next(ge)
        s.stamp(9)
        def stats():
            S1, S2 = SM, SQ
            yield from s.seq(f"""v_add_f32 v{S1}, v{SM}, v{SM+4}
            v_add_f32 v{SQ}, v{SQ}, v{SQ+4}
            v_add_f32 v{SQ+1}, v{SQ+1}, v{SQ+5}
            v_add_f32 v{SQ+2}, v{SQ+2}, v{SQ+6}
            v_add_f32 v{SQ+3}, v{SQ+3}, v{SQ+7}
            v_mov_b32 v{S1+1}, v{S1}
            v_cndmask_b32 v{SQ}, v{SQ}, v{SQ+1}, s[{sM}:{sM+1}]
            v_cndmask_b32 v{SQ}, v{SQ}, v{SQ+2}, s[{sM+2}:{sM+3}]
            v_cndmask_b32 v{SQ}, v{SQ}, v{SQ+3}, s[{sM+4}:{sM+5}]
            v_permlane32_swap_b32 v{S1}, v{S1+1}
            v_mov_b32 v{S2+1}, v{S2}
            v_add_f32 v{S1}, v{S1}, v{S1+1}
            v_mul_f32 v{S1}, {fh(1/448)}, v{S1}
            v_permlane32_swap_b32 v{S2}, v{S2+1}
            v_cvt_pk_bf16_f32 v{M4}, -v{S1}, -v{S1}
            v_add_f32 v{S2}, v{S2}, v{S2+1}
            v_mul_f32 v{S2}, {fh(1/448)}, v{S2}
            v_fma_f32 v{S2}, -v{S1}, v{S1}, v{S2}
            v_max_f32 v{S2}, 0, v{S2}
            v_cvt_pk_bf16_f32 v{S2}, v{S2}, v{S2}
            v_and_b32 v{S2}, 0xffff0000, v{S2}
            v_add_f32 v{S2}, {fh(1e-5)}, v{S2}
            v_cvt_pk_bf16_f32 v{S2}, v{S2}, v{S2}
            v_and_b32 v{S2}, 0xffff0000, v{S2}
            v_sqrt_f32 v{S2}, v{S2}
            v_and_b32 v{S1}, 0xffff0000, v{M4}
            v_cvt_pk_bf16_f32 v{S2}, v{S2}, v{S2}
            v_and_b32 v{S2}, 0xffff0000, v{S2}
            v_rcp_f32 v{S2}, v{S2}
            s_nop 0
            ds_write_b32 v{U0}, v{S2} offset:512
            v_mul_f32 v{S1}, v{S1}, v{S2}
            ds_write_b32 v{U0}, v{S1}""")
            done["stats"] = 1
        for b in range(7):
            s.bar()
            if b == 0: s.stamp(2)
            if b == 6: s.stamp(3)
            x, f = XB + 16 * (b % 3), FB + 16 * (b % 3)
            s.xrd(b, XRD, x)
            for r in range(4): k.e(f"ds_read_b128 {R(f+4*r)}, v{FA} offset:{(4*b+r)*1024}")
            if b == 0:
                for w in range(8): k.e(f"ds_read_b32 v{D2C+w}, v{TMP} offset:{w*256}")
                F.add(misc()); F.add(ge)
            if b == par("fq", 2):
                k.wait(vm="C")
                k.e(f"s_lshl_b32 s{sT4}, s{sFT}, 6\ns_add_u32 s{sT4}, s{sT4}, s{sTL}\ns_lshl_b32 s{sT4}, s{sT4}, 2\ns_add_u32 s{sT4}, s{sT4}, {FQ}"); s.flag(sT4)
            F.run(par("xb", 40))
            for r in range(4):
                y = x + 4 * r; z = b + r == 0
                k.e(mf4(SQ, y, y, z)); k.e(mf4(SM, ONE, y, z)); k.e(mf4(SQ + 4, y + 2, y + 2, z)); k.e(mf4(SM + 4, ONE, y + 2, z))
            if b == 6: force("misc"); F.g.insert(0, [stats(), 0])
            for r in range(4):
                k.e(mf32(D1, x + 4 * r, f + 4 * r, b + r == 0)); F.run(24 if b < 6 else 32)
        force("stats")
        k.e(mf32(D1, M4, FC))
        k.wait(lg="all")
        for q in range(4): k.e(f"ds_read_b128 {R(RSR+4*q)}, v{U1} offset:{512 + 32*q}")
        k.e("s_barrier")
        force("E")
        for h in range(2):
            for p in range(4 * h, 4 * h + 4):
                k.e(f"v_mul_f32 v{D1+2*p}, v{D1+2*p}, v{RSR+2*p}\nv_mul_f32 v{D1+2*p+1}, v{D1+2*p+1}, v{RSR+2*p+1}")
            for p in range(4 * h, 4 * h + 4): k.e(f"v_cvt_pk_bf16_f32 v{PA+p}, v{D1+2*p}, v{D1+2*p+1}")
            for p in range(4 * h, 4 * h + 4): k.e(f"v_xor_b32_dpp v{PB+p}, v{PA+p}, v{SGN} quad_perm:[1,0,3,2] row_mask:0xf bank_mask:0xf")
            k.e(mf32(D2C, E + 4 * h, PA + 4 * h, h == 0))
            k.e(f"s_mov_b64 exec, s[{sXM}:{sXM+1}]")
            for p in range(4 * h, 4 * h + 4): k.e(f"v_xor_b32 v{PB+p}, 0x80008000, v{PA+p}")
            k.e("s_mov_b64 exec, -1")
            k.e(mf32(D2S, E + 8 + 4 * h, PB + 4 * h, h == 0))
        s.w_addr(T, VW)
        for h in range(2):
            for r in range(8 * h, 8 * h + 8): k.e(f"v_fmac_f32 v{D2C+r}, v{D2S+r}, v{MS}")
            for p in range(4 * h, 4 * h + 4): k.e(f"v_cvt_pk_bf16_f32 v{PA+p}, v{D2C+2*p}, v{D2C+2*p+1}")
            k.e(f"buffer_store_dwordx4 {R(PA+4*h)}, v{VQ}, {S4(SWS)}, s{sQB} offen offset:{QT+512*h} {SC1}", "Q")
        L = k.label("nonyq")
        k.e(f"s_cmp_lg_u32 s{sFT}, 0\ns_cbranch_scc1 {L}")
        k.cond_begin()
        for p in range(8): k.e(f"v_cvt_pk_bf16_f32 v{PB+p}, v{D2S+2*p}, v{D2S+2*p+1}")
        k.e(f"s_mov_b64 exec, s[{sXM}:{sXM+1}]")
        for h in range(2): k.e(f"buffer_store_dwordx4 {R(PB+4*h)}, v{VQ}, {S4(SWS)}, s{sQB} offen offset:{QT+512*h+16} {SC1}", "Q")
        k.e("s_mov_b64 exec, -1")
        k.cond_end()
        k.e(f"{L}:")
        s.stamp(4)
        NWC, NH = par("nwc", 4), par("nh", 4)
        ASL = [6, 7, 8, 9, 6, 7, 8]
        W = lambda *a: [run(s.w_dma(i, VW)) for i in a]
        def A(*a):
            for i in a:
                if i >= 4: k.wait(lg=("ar", i - 4))
                run(s.wd_dma(0, i, ASL[i], VD))
        def Cq(*a):
            for i in a:
                if i >= NH: continue
                if i == 0: k.wait(lg=("ar", 3))
                run(s.wd_dma(1, i, s.CSL[i], VD))
        def ard(i, fs=range(4)):
            k.wait(vm=("D", 0, i))
            for f in fs:
                for hh in range(2): k.e(f"ds_read_b64_tr_b16 {R(WDR+16*(i&3)+4*f+2*hh, 2)}, v{TB+(f&1)} offset:{(ASL[i]-6)*SL + (f>>1)*2048 + hh*1024}", ("ar", i))
        def clr(P):
            if P: k.e(f"s_add_u32 s{sHS}, s{sHS}, {56*1024}")
            for j in range(4): k.e(f"buffer_store_dwordx4 {R(CLR)}, v1, {S4(SWS)}, s{sHS} offen offset:{1024*j} {SC1}", ("CH", P))
        def kb(i, *tags):
            s.bar(*[("W", w) for w in (2 * i + 1, 2 * i + 2) + ((13,) if i == 5 else ()) if w >= NWC], *tags)
            s.nstamp(32 * i + 16)
        if par("kb0", 0) == 0: kb(0)
        W(*range(NWC, 6))
        if par("kb0", 0) == 1: kb(0)
        s.scal(); s.wd_addr(T, VD, TB, 6 * SL)
        W(6); A(0); clr(0); A(1)
        kb(1)
        W(7, 8); clr(1); A(2); ard(0); ard(1)
        kb(2, ("CH", 0))
        W(9, 10); A(3, 4); ard(2)
        kb(3, ("CH", 1))
        k.e(f"s_lshl_b32 s{sT4}, s{sTL}, 4\ns_add_u32 s{sT4}, s{sT4}, s{sFT}\ns_lshl_b32 s{sT4}, s{sT4}, 2\ns_add_u32 s{sT4}, s{sT4}, {FH}"); s.flag(sT4)
        W(11, 12); A(5, 6); ard(3)
        k.e(f"""v_bfe_u32 v{VP}, v1, 4, 4
        v_min_u32 v{VP}, 13, v{VP}
        v_bfe_u32 v{PD}, v1, 8, 1
        v_lshl_add_u32 v{VP}, v{PD}, 4, v{VP}
        v_lshlrev_b32 v{VP}, 2, v{VP}""")
        kb(4)
        rl = f"buffer_load_dword v{PD}, v{VP}, {S4(SWS)}, s{sFP} offen {SC1}"
        W(13); k.e(rl); Cq(0, 1)
        kb(5)
        s.stamp(5)
        s.check([PD], rl)
        for i in range(7):
            for l in s.hld(0, i, HB + 16 * i): k.e(l, ("h", i))
        Cq(2, 3)
        s.wa_addr(WA, 6 * SL)
        s.stamp(6)
        acc = lambda t, S: ACC + 16 * (2 * S + t)
        m = 224
        for i in range(7):
            r = HB + 16 * i
            s.checkm([r + 3, r + 7, r + 11, r + 15], "\n".join(s.hld(0, i, r)), TMP)
            for kk in range(2):
                for t in range(2):
                    for S in range(2):
                        k.e(mf32(acc(t, S), WDR + 16 * (i & 3) + 8 * kk + 4 * t, r + 8 * kk + 4 * S, i + kk == 0))
                        s.nstamp(m); m += 1
                    if i < 3: ard(i + 4, [2 * kk + t])
            if i == par("ge", 0):
                s.bar(*[("D", 1, c) for c in range(NH)])
                if par("prio", 1) == 1: k.e("s_setprio 1")
        if par("prio", 1) == 1: k.e("s_setprio 0")
        s.stamp(7)
        ZG = lambda S, i: HB + 8 * i + 4 * S
        FI = lambda i, t: WDR + 8 * i + 4 * t
        k.e(f"s_lshl_b32 s{sT0}, s{sSG}, 16\ns_add_u32 s{sZB}, s{sZB}, s{sT0}")
        def zld(S, i): return f"s_add_u32 s{sT4}, s{sZB}, {i << 18}\nbuffer_load_dwordx4 {R(ZG(S, i))}, v1, {S4(SWS)}, s{sT4} offen offset:{1024*S} {SC1}"
        A_, B_, CI_, CF, X = HB + 64, HB + 66, HB + 68, HB + 69, HB + 72
        k.e(f"""v_bfe_u32 v{A_}, v1, 4, 5
        s_lshl_b32 s{sT0}, s{sDT}, 6
        v_add_u32 v{A_}, s{sT0}, v{A_}
        v_cvt_f32_u32 v{A_}, v{A_}
        v_add_f32 v{A_+1}, {fh(32)}, v{A_}
        v_mul_f32 v{A_}, {fh(1/448)}, v{A_}
        v_mul_f32 v{A_+1}, {fh(1/448)}, v{A_+1}
        v_lshrrev_b32 v{B_}, 9, v1
        s_lshl_b32 s{sT0}, s{sSG}, 3
        v_lshl_add_u32 v{B_}, v{B_}, 2, s{sT0}
        v_cmp_eq_u32 vcc, 0, v{B_}
        v_cvt_f32_u32 v{B_}, v{B_}
        v_mul_f32 v{B_+1}, v{B_}, v{A_+1}
        v_mul_f32 v{B_}, v{B_}, v{A_}
        v_cndmask_b32 v{CF}, 1.0, 0.5, vcc""")
        for t in range(2):
            k.e(f"v_mul_f32 v{CI_}, {fh(32)}, v{A_+t}\nv_cos_f32 v{CI_}, v{CI_}")
            for jp in range(2):
                if 2 * t + jp == par("zl", 2):
                    for S in range(2):
                        for i in range(7): k.e(zld(S, i), ("z", S, i))
                    s.stamp(8)
                Y = lambda e, i: X + 14 * e + 2 * i
                for e in range(2):
                    for i in (2, 3): k.e(f"v_fmamk_f32 v{Y(e,i)}, v{A_+t}, {fh(32*i+2*jp+e)}, v{B_+t}\nv_sin_f32 v{Y(e,i)+1}, v{Y(e,i)}\nv_cos_f32 v{Y(e,i)}, v{Y(e,i)}")
                if jp == 0: k.e(f"v_add_f32 v{CI_}, v{CI_}, v{CI_}")
                for i, a, b in ((1, 2, 3), (4, 3, 2), (0, 1, 2), (5, 4, 3), (6, 5, 4)):
                    for e in range(2):
                        for c in range(2): k.e(f"v_fma_f32 v{Y(e,i)+c}, v{CI_}, v{Y(e,a)+c}, -v{Y(e,b)+c}")
                if jp == 0: k.e(f"v_mul_f32 v{Y(0,0)}, v{Y(0,0)}, v{CF}")
                for i in range(7):
                    for e in range(2): k.e(f"v_cvt_pk_bf16_f32 v{FI(i,t)+2*jp+e}, v{Y(e,i)}, v{Y(e,i)+1}")
        m = 400
        for S in range(2):
            for t in range(2):
                for i in range(7):
                    if t == 0 and i in (0, 4):
                        g = range(i, min(i + 4, 7))
                        s.checkm([ZG(S, z) + 3 for z in g] + ([ZG(S, 6) + 3] if i else []), "\n".join(zld(S, z) for z in g), TMP)
                    k.e(mf32(acc(t, S), FI(i, t), ZG(S, i)))
                    s.nstamp(m); m += 1
                    n = 2 * S + t
                    if n == 0 and i == par("r1", 3): s.bar()
                    if n and i == 1: F.add(s.wr(WA, acc((n - 1) & 1, (n - 1) >> 1), (n - 1) & 1, (n - 1) >> 1))
                    if n == 2 and i == 6: F.drain(); F.t = 0; s.bar()
                    F.run(10)
        F.drain()
        run(s.wr(WA, acc(1, 1), 1, 1))
        s.bar()
        L = k.label("noep")
        k.e(f"s_add_u32 s{sT0}, s2, s{sW}\ns_cmp_lg_u32 s{sT0}, 36\ns_cbranch_scc1 {L}\ns_mov_b32 s{sT0}, {EPOCH}")
        k.cond_begin(); s.flag(sT0); k.cond_end()
        k.e(f"{L}:")
        if s.tson: s.stamp(9 if par("s9", 0) else 1)
        s.finish()

    def t_wg(s):
        k = s.k; T = 2; s.inG = False
        if "not" in OPT: k.e("s_endpgm")
        TAB, ZL = 64 * 1024, 96 * 1024
        O_TOI, O_TW, O_TE = 0, 8192, 24576
        QR, WR, TE, TO, EV, XP, SP = 16, 48, 80, 112, 144, 176, 208
        sK = sFT
        k.e(f"""s_lshr_b32 s{sT0}, s2, 1
        s_lshl_b32 s{sT0}, s{sT0}, 2
        s_and_b32 s{sSG}, s{sW}, 3
        s_add_u32 s{sT0}, s{sT0}, s{sSG}
        s_lshl_b32 s{sT0}, s{sT0}, 1
        s_and_b32 s{sT1}, s2, 1
        s_add_u32 s{sT0}, s{sT0}, s{sT1}
        s_mul_i32 s{sT0}, s{sT0}, 7200
        s_add_u32 s{sT1}, s{sT0}, 4096
        s_lshl_b32 s{sLW}, s{sW}, 13
        s_cmp_ge_u32 s{sW}, 4
        s_waitcnt lgkmcnt(0)
        s_cselect_b32 s{SC}, s8, s6
        s_cselect_b32 s{SC+1}, s9, s7
        s_mov_b32 s{SC+2}, {2048*450}
        s_mov_b32 s{SC+3}, 0x20000""")
        for h in range(2):
            k.e(f"s_add_u32 m0, s{sLW}, {4096*h}")
            for i in range(4):
                if h == 1 and i == 3: k.e("s_mov_b64 exec, 3")
                k.e(f"buffer_load_dwordx4 v1, {S4(SC)}, s{sT0+h} offen offset:{1024*i} lds", "T")
        k.e("s_mov_b64 exec, -1")
        s.load_epoch()
        k.srd(SWS, 22, WS_BYTES)
        k.srd(SWG, 22, 225 * 8192, WT)
        s.stamp(1)
        def pair(step, base, off):
            d = QR
            for i in range(4): k.e(f"v_fmamk_f32 v{d+8+i}, v{step}, {fh(i)}, v{base}\nv_sin_f32 v{d+12+i}, v{d+8+i}\nv_cos_f32 v{d+8+i}, v{d+8+i}")
            for i in range(4): k.e(f"v_cvt_pk_bf16_f32 v{d+i}, v{d+8+i}, v{d+12+i}\nv_cvt_pk_bf16_f32 v{d+4+i}, -v{d+12+i}, v{d+8+i}")
            k.e(f"ds_write_b128 v{T+5}, {R(d)} offset:{off}\nds_write_b128 v{T+5}, {R(d+4)} offset:{off+1024}")
        k.e(f"""v_bfe_u32 v{T}, v1, 4, 5
        v_cvt_f32_u32 v{T}, v{T}
        v_lshrrev_b32 v{T+1}, 9, v1
        v_lshlrev_b32 v{T+1}, 2, v{T+1}
        s_lshl_b32 s{sT0}, s{sSG}, 3
        v_add_u32 v{T+1}, s{sT0}, v{T+1}
        v_cvt_f32_u32 v{T+1}, v{T+1}
        s_lshr_b32 s{sT0}, s{sW}, 2
        v_cvt_f32_u32 v{T+2}, s{sT0}
        v_mul_f32 v{T+3}, {fh(1/32)}, v{T}
        v_fma_f32 v{T+4}, 0.5, v{T+2}, v{T+1}
        v_mul_f32 v{T+4}, v{T+4}, v{T+3}
        s_lshl_b32 s{sT0}, s{sW}, 11
        s_add_u32 s{sT0}, s{sT0}, {TAB}
        v_add_u32 v{T+5}, s{sT0}, v1""")
        pair(T + 3, T + 4, O_TE)
        NINV = 2.0 / (2048 * 448)
        k.e(f"""v_fma_f32 v{T+6}, 0.5, v{T+2}, v{T}
        v_mul_f32 v{T+6}, {fh(1/1024)}, v{T+6}
        v_mul_f32 v{T+7}, v{T+6}, v{T+1}""")
        d = WR
        for i in range(4): k.e(f"v_fmamk_f32 v{d+i}, v{T+6}, {fh(i)}, v{T+7}\nv_sin_f32 v{d+4+i}, v{d+i}\nv_cos_f32 v{d+i}, v{d+i}")
        for i in range(8): k.e(f"v_mul_f32 v{d+i}, {fh(NINV)}, v{d+i}")
        k.e(f"ds_write_b128 v{T+5}, {R(d)} offset:{O_TW}\nds_write_b128 v{T+5}, {R(d+4)} offset:{O_TW+1024}")
        k.e(f"s_cmp_ge_u32 s{sW}, 4\ns_cbranch_scc1 T_A")
        k.cond_begin()
        k.e(f"v_add_f32 v{T+3}, {fh(1/64)}, v{T+3}\nv_mul_f32 v{T+4}, v{T+1}, v{T+3}")
        pair(T + 3, T + 4, O_TOI)
        k.cond_end()
        k.e("T_A:")
        k.e(f"""s_lshl_b32 s{sLD}, s2, 16
        s_add_u32 s{sLD}, s{sLD}, s{sLW}
        s_add_u32 s{sU1}, s{sLD}, 4096""")
        k.e(f"""v_bfe_u32 v{T+3}, v1, 4, 4
        v_mul_u32_u24 v{T+4}, 450, v{T+3}
        v_lshrrev_b32 v{T+5}, 4, v0
        v_lshl_add_u32 v{T+4}, v{T+5}, 1, v{T+4}
        v_lshlrev_b32 v{T+5}, 13, v{T+5}
        v_lshl_add_u32 v{T+5}, v{T+3}, 4, v{T+5}
        s_lshl_b32 s{sT0}, s2, 8
        s_waitcnt lgkmcnt(0)""")
        s.get_tag()
        k.wait(vm="T")
        k.e("s_barrier")
        s.stamp(2)
        GR = 16
        def rd(it):
            for i in range(4):
                for m in range(2): k.e(f"ds_read_u16 v{GR+8*it+4*m+i}, v{T+4} offset:{(4*m+i)*8192 + 64*it}")
        rd(0)
        for it in range(8):
            if it < 7: rd(it + 1)
            r = GR + 8 * it
            for i in range(4): k.e(f"v_lshl_or_b32 v{r+i}, v{r+4+i}, 16, v{r+i}")
            k.e(f"s_add_u32 s{sT1}, s{sT0}, {it*32*8192}\nbuffer_store_dwordx4 {R(r)}, v{T+5}, {S4(SWG)}, s{sT1} offen {SC1}", "WT")
        s.stamp(3)
        k.e("s_barrier")
        k.e(f"v_add_u32 v{T+9}, {TAB}, v1")
        for i in range(8): k.e(f"ds_read_b128 {R(TE+4*i)}, v{T+9} offset:{O_TE+1024*i}\nds_read_b128 {R(TO+4*i)}, v{T+9} offset:{O_TE+8192+1024*i}")
        k.e(f"""s_lshl_b32 s{sA}, s{sW}, 5
        s_add_u32 s{sA}, s{sA}, s2
        s_lshl_b32 s{sA}, s{sA}, 2
        s_add_u32 s{sA}, s{sA}, {FW}
        s_cmp_lt_u32 s2, 29
        s_cbranch_scc1 T_M""")
        st = k.snap()
        k.wait(vm="WT"); s.flag(sA); k.e("s_branch T_FIN")
        k.restore(st)
        k.e("T_M:")
        k.e(f"""s_lshl_b32 s{sK}, s2, 3
        s_add_u32 s{sK}, s{sK}, s{sW}""")
        ZW, ZR = T, T + 4
        k.e(f"""v_bfe_u32 v{T+8}, v1, 6, 3
        v_lshlrev_b32 v{ZW}, 10, v{T+8}
        v_bfe_u32 v{T+8}, v1, 4, 2
        v_lshl_add_u32 v{ZW}, v{T+8}, 7, v{ZW}
        v_lshrrev_b32 v{T+8}, 5, v1
        v_and_b32 v{T+8}, 16, v{T+8}
        v_and_b32 v{T+10}, 0x70, v1
        v_xor_b32 v{T+8}, v{T+8}, v{T+10}
        s_add_u32 s{sT0}, s{sLW}, {ZL}
        v_add3_u32 v{ZW}, v{ZW}, v{T+8}, s{sT0}
        v_xor_b32 v{ZW+1}, 32, v{ZW}
        v_xor_b32 v{ZW+2}, 64, v{ZW}
        v_xor_b32 v{ZW+3}, 96, v{ZW}
        v_bfe_u32 v{ZR}, v1, 4, 5
        v_lshlrev_b32 v{ZR}, 2, v{ZR}
        v_lshrrev_b32 v{T+8}, 9, v1
        v_lshl_add_u32 v{ZR}, v{T+8}, 15, v{ZR}
        s_and_b32 s{sT0}, s{sW}, 1
        s_lshl_b32 s{sT0}, s{sT0}, 6
        v_xor_b32 v{ZR}, s{sT0}, v{ZR}
        s_lshl_b32 s{sT0}, s{sW}, 10
        s_add_u32 s{sT0}, s{sT0}, {ZL}
        v_add_u32 v{ZR}, s{sT0}, v{ZR}
        v_xor_b32 v{ZR+1}, {128+16}, v{ZR}
        v_xor_b32 v{ZR+2}, {256+32}, v{ZR}
        v_xor_b32 v{ZR+3}, {384+48}, v{ZR}
        """)
        PF, PD_, PW, QA, QM, QW = T + 8, T + 10, T + 11, 15, 0, 240
        sWD = sHF
        k.e(f"""s_lshr_b32 s{sT0}, s{sK}, 2
        s_and_b32 s{sT1}, s{sT0}, 7
        s_lshl_b32 s{sT1}, s{sT1}, 7
        s_add_u32 s{sU0}, s{sT1}, {FW}
        s_lshr_b32 s{sT0}, s2, 1
        s_cmp_eq_u32 s2, 28
        s_cselect_b32 s{sT0}, 0, s{sT0}
        s_lshl_b32 s{sT0}, s{sT0}, 8
        s_lshl_b32 s{sT1}, s{sW}, 5
        s_add_u32 s{sT0}, s{sT0}, s{sT1}
        s_add_u32 s{sT0}, s{sT0}, {FQ}
        v_bfe_u32 v{PF}, v1, 4, 3
        v_lshlrev_b32 v{PF}, 2, v{PF}""")
        rl = f"buffer_load_dword v{PD_}, v{PF}, {S4(SWS)}, s{sT0} offen {SC1}"
        k.e(f"""v_bfe_u32 v{PW}, v1, 4, 5
        v_lshlrev_b32 v{PW}, 2, v{PW}
        v_bfe_u32 v{QM}, v1, 7, 1
        v_bfe_u32 v{QA}, v1, 8, 1
        v_lshl_add_u32 v{QM}, v{QM}, 1, v{QA}
        v_bfe_u32 v{QA}, v1, 4, 1
        v_lshl_add_u32 v{QM}, v{QM}, 1, v{QA}
        v_xor_b32 v{QA}, s{sW}, v{QM}
        v_lshlrev_b32 v{QA}, 5, v{QA}
        v_lshl_add_u32 v{QA}, v{QM}, 8, v{QA}
        v_bfe_u32 v{QM}, v1, 5, 2
        v_lshl_add_u32 v{QA}, v{QM}, 3, v{QA}
        v_lshrrev_b32 v{QM}, 9, v1
        v_lshl_add_u32 v{QA}, v{QM}, 13, v{QA}
        v_lshrrev_b32 v{QW}, 3, v1
        v_and_b32 v{QW}, 0x60, v{QW}
        v_xor_b32 v{QW}, v{QW}, v1
        v_add_u32 v{QW}, s{sLW}, v{QW}
        v_xor_b32 v{QW+1}, 128, v{QW}
        v_and_b32 v{QM}, 0xe0, v1
        s_cmp_eq_u32 s2, 28
        s_cselect_b32 s{sT1}, 0, 0xe0
        v_cmp_ge_u32 s[{sM}:{sM+1}], s{sT1}, v{QM}
        s_lshl_b32 s{sT2}, s{sK}, 13
        s_add_u32 s{sT3}, s{sT2}, 4096
        s_cmp_gt_u32 s{sK}, 224
        s_cselect_b32 s{sWD}, 1, 0""")
        k.wait(vm="WT"); s.flag(sA)
        s.stamp(5)
        k.e(rl)
        s.check([PD_], rl, sleep=2)
        s.stamp(6)
        rw = f"buffer_load_dword v{PD_}, v{PW}, {S4(SWS)}, s{sU0} offen {SC1}"
        wl = "\n".join(f"buffer_load_dwordx4 {R(WR+4*i)}, v1, {S4(SWG)}, s{sT3 if i >= 4 else sT2} offen offset:{1024*(i&3)} {SC1}" for i in range(8))
        QL = EV
        k.e("s_waitcnt vmcnt(0) lgkmcnt(0)\nT_P:")
        k.e(rw)
        for i in range(8): k.e(f"buffer_load_dwordx4 {R(QL+4*i)}, v1, {S4(SWS)}, s{sU1 if i >= 4 else sLD} offen offset:{(QT + 1024*(i&3))} {SC1}")
        k.e(f"v_cmp_ne_u32 vcc, s{sTAG}, v{PD_}\ns_cmp_lg_u32 s{sWD}, 0\ns_cbranch_scc1 T_P1\ns_cbranch_vccnz T_P1\ns_mov_b32 s{sWD}, 1")
        k.cond_begin(); k.e(wl, "wl"); k.cond_end()
        k.raw("    s_waitcnt vmcnt(8)\n    s_branch T_P2\nT_P1:\n    s_waitcnt vmcnt(0)\nT_P2:")
        k.vm = [e for e in k.vm if e["tag"] == "wl"]
        k.e(f"v_max3_u32 v{QM}, v{QL+3}, v{QL+7}, v{QL+11}\nv_max3_u32 v{QM}, v{QM}, v{QL+15}, v{QL+19}\nv_max3_u32 v{QM}, v{QM}, v{QL+23}, v{QL+27}\nv_max_u32 v{QM}, v{QM}, v{QL+31}")
        k.e(f"""v_cmp_eq_u32 vcc, -1, v{QM}
        s_add_u32 s{sCNT}, s{sCNT}, 1
        s_cmp_ge_u32 s{sCNT}, 0x4000
        s_cbranch_scc1 T_P3
        s_and_b64 vcc, vcc, s[{sM}:{sM+1}]
        s_cbranch_scc1 T_P
        T_P3:""")
        for i in range(8): k.e(f"ds_write_b128 v{QW+(i&1)}, {R(QL+4*i)} offset:{1024*i}")
        k.e(f"s_waitcnt lgkmcnt(0)\ns_barrier\ns_cmp_le_u32 s{sK}, 224\ns_cbranch_scc1 T_I")
        st = k.snap()
        for i in range(4): k.e(f"v_mov_b32 v{QR+i}, 0")
        for p in range(2):
            for q in range(4): k.e(f"ds_write_b128 v{ZW+q}, {R(QR)} offset:{512*p}")
        k.e("s_branch T_X")
        k.restore(st)
        k.e("T_I:")
        s.stamp(7)
        def qg(pp, j):
            for h in range(2): k.e(f"ds_read_b64_tr_b16 {R(QR+16*pp+4*j+2*h,2)}, v{QA} offset:{16384*j + 4096*pp + 2048*h}")
        for j in range(4): qg(0, j)
        for j in range(3): qg(1, j)
        for j in range(4):
            for c in range(2): k.e(mf32(EV + 16 * c, TE + 8 * j + 4 * c, QR + 4 * j, j == 0))
            if j == 0: qg(1, 3)
        k.e(f"s_cmp_lg_u32 s{sWD}, 0\ns_cbranch_scc1 T_W")
        k.cond_begin()
        c0 = (k._cs, k._cv)
        k.e(rw); s.check([PD_], rw); k.e(wl, "wl")
        k._cs, k._cv = c0
        k.cond_end()
        k.e("T_W:")
        for j in range(4):
            for c in range(2): k.e(mf32(XP + 16 * c, TO + 8 * j + 4 * c, QR + 16 + 4 * j, EV + 16 * c if j == 0 else None))
        for i in range(8): k.e(f"ds_read_b128 {R(TO+4*i)}, v{T+9} offset:{O_TOI+1024*i}")
        for i in range(32): k.e(f"v_lshlrev_b32 v{SP+i}, 16, v{WR+i}\nv_and_b32 v{WR+i}, 0xffff0000, v{WR+i}")
        A_, B_ = 240, 244
        for e0 in range(0, 16, 4):
            for L in (lambda e, a, b: f"v_fma_f32 v{EV+e}, 2.0, v{EV+e}, -v{XP+e}",
                      lambda e, a, b: f"v_fma_f32 v{EV+16+e}, 2.0, v{EV+16+e}, -v{XP+16+e}",
                      lambda e, a, b: f"v_mul_f32 v{a}, v{XP+e}, v{SP+e}",
                      lambda e, a, b: f"v_mul_f32 v{b}, v{XP+e}, v{WR+e}",
                      lambda e, a, b: f"v_fma_f32 v{a}, -v{XP+16+e}, v{WR+e}, v{a}",
                      lambda e, a, b: f"v_fmac_f32 v{b}, v{XP+16+e}, v{SP+e}",
                      lambda e, a, b: f"v_fma_f32 v{XP+e}, v{EV+e}, v{SP+16+e}, v{a}",
                      lambda e, a, b: f"v_fma_f32 v{XP+16+e}, v{EV+e}, v{WR+16+e}, v{b}",
                      lambda e, a, b: f"v_fma_f32 v{XP+e}, -v{EV+16+e}, v{WR+16+e}, v{XP+e}",
                      lambda e, a, b: f"v_fmac_f32 v{XP+16+e}, v{EV+16+e}, v{SP+16+e}",
                      lambda e, a, b: f"v_fma_f32 v{a}, 2.0, v{a}, -v{XP+e}",
                      lambda e, a, b: f"v_fma_f32 v{b}, 2.0, v{b}, -v{XP+16+e}",
                      lambda e, a, b: f"v_cvt_pk_bf16_f32 v{QR+e}, v{XP+e}, -v{XP+16+e}",
                      lambda e, a, b: f"v_cvt_pk_bf16_f32 v{QR+16+e}, v{a}, -v{b}"):
                for i in range(4): k.e(L(e0 + i, A_ + i, B_ + i))
        for p in range(2):
            for i in range(8): k.e(f"ds_read_b128 {R((WR, SP)[p]+4*i)}, v{T+9} offset:{O_TW + 8192*p + 1024*i}")
        for p in range(2):
            for q in range(4):
                for c in range(2): k.e(mf32((EV, XP)[p] + 16 * c, QR + 16 * p + 4 * q, (TE, TO)[p] + 8 * q + 4 * c, q == 0))
        for p in range(2):
            Y = (EV, XP)[p]; TWr = (WR, SP)[p]
            for q in range(4):
                for L in (lambda e, a, b, c_, s_: f"v_mul_f32 v{a}, v{Y+e}, v{c_}",
                          lambda e, a, b, c_, s_: f"v_mul_f32 v{b}, v{Y+16+e}, v{c_}",
                          lambda e, a, b, c_, s_: f"v_fmac_f32 v{a}, v{Y+16+e}, v{s_}",
                          lambda e, a, b, c_, s_: f"v_fma_f32 v{b}, -v{Y+e}, v{s_}, v{b}",
                          lambda e, a, b, c_, s_: f"v_cvt_pk_bf16_f32 v{QR+16*p+e}, v{a}, v{b}"):
                    for i in range(4): k.e(L(4 * q + i, A_ + i, B_ + i, TWr + 8 * q + i, TWr + 8 * q + 4 + i))
            for q in range(4):
                for c in range(2): k.e(mf32(Y + 16 * c, TE + 8 * q + 4 * c, QR + 16 * p + 4 * q, q == 0))
        for p in range(2):
            Y = (EV, XP)[p]
            for q in range(4):
                for i in range(4): k.e(f"v_cvt_pk_bf16_f32 v{Y+4*q+i}, v{Y+4*q+i}, v{Y+16+4*q+i}")
                k.e(f"ds_write_b128 v{ZW+q}, {R(Y+4*q)} offset:{512*p}")
        s.stamp(8)
        k.e("T_X:\ns_waitcnt lgkmcnt(0)\ns_barrier")
        for tt in range(8):
            for h in range(2): k.e(f"ds_read2st64_b32 {R(QR+4*tt+2*h,2)}, v{ZR+(tt&3)} offset0:{64*h + 2*(tt>>2)} offset1:{64*h + 32 + 2*(tt>>2)}")
        k.e(f"s_add_u32 s{sLD}, s{sLD}, {ZT}\ns_add_u32 s{sU1}, s{sU1}, {ZT}")
        for tt in range(8): k.e(f"buffer_store_dwordx4 {R(QR+4*tt)}, v1, {S4(SWS)}, s{sU1 if tt >= 4 else sLD} offen offset:{1024*(tt&3)} {SC1}")
        s.stamp(9)
        k.e("T_FIN:")
        s.ts_store()
        k.e("s_endpgm")

    def build(s):
        k = s.k
        k.raw(f".globl {NAME}_kernel\n.p2align 8\n.type {NAME}_kernel,@function\n{NAME}_kernel:")
        s.stamp(0)
        k.e(f"""s_load_dwordx16 s[4:19], s[0:1], 0
        s_load_dwordx4 s[20:23], s[0:1], 64
        v_readfirstlane_b32 s{sW}, v0
        v_and_b32 v1, 63, v0
        s_cmp_ge_u32 s2, 256
        s_cbranch_scc1 K_END
        v_lshlrev_b32 v1, 4, v1
        s_lshr_b32 s{sW}, s{sW}, 6
        s_and_b32 s{sW}, s{sW}, 7
        s_sub_u32 s{sT0}, s2, 32
        s_cbranch_scc0 G_WG
        s_getpc_b64 s[{sT2}:{sT3}]
        PCREF:
        s_lshr_b32 s{sT0}, s2, 3
        s_lshl_b32 s{sT0}, s{sT0}, 7
        v_lshlrev_b32 v2, 9, v0
        v_add_u32 v2, s{sT0}, v2
        v_cmp_gt_u32 vcc, CODE_END-PCREF-4, v2
        s_cbranch_vccz T_WG
        v_min_u32 v2, CODE_END-PCREF-4, v2
        global_load_dword v255, v2, s[{sT2}:{sT3}]
        s_branch T_WG
        G_WG:""")
        stT = k.snap()
        k.vm = []
        k.e(f"""s_lshr_b32 s{sT0}, s{sT0}, 3
        s_and_b32 s{sRT}, s2, 6
        s_lshr_b32 s{sT2}, s{sRT}, 1
        s_lshl_b32 s{sRT}, s{sRT}, 1
        s_and_b32 s{sT1}, s{sT0}, 3
        s_add_u32 s{sRT}, s{sRT}, s{sT1}
        s_lshr_b32 s{sDT}, s{sT0}, 2
        s_lshl_b32 s{sT1}, s{sT1}, 1
        s_add_u32 s{sT1}, s{sT1}, s{sT2}
        s_add_u32 s{sT1}, s{sT1}, s{sDT}
        s_mul_i32 s{sT2}, s{sT1}, 37
        s_lshr_b32 s{sT2}, s{sT2}, 8
        s_mul_i32 s{sT2}, s{sT2}, 7
        s_sub_u32 s{sT1}, s{sT1}, s{sT2}
        s_lshl_b32 s{sT1}, s{sT1}, {0 if 'norot' in OPT else 2}
        s_and_b32 s{sT1}, s{sT1}, {0 if 'norot' in OPT else 31}
        s_mov_b32 s{sT2}, 0x06543210
        s_mov_b32 s{sT3}, 0x00654321
        s_lshr_b64 s[{sT2}:{sT3}], s[{sT2}:{sT3}], s{sT1}
        s_mov_b32 s{sPK}, s{sT2}
        s_and_b32 s{sHF}, s2, 1
        s_mul_i32 s{sFT}, s{sHF}, 7
        s_add_u32 s{sFT}, s{sFT}, s{sDT}
        s_and_b32 s{sSG}, s{sW}, 3
        s_lshl_b32 s{sTL}, s{sRT}, 2
        s_add_u32 s{sTL}, s{sTL}, s{sSG}
        s_and_b32 s{sS2}, s{sTL}, 0x38
        s_and_b32 s{sT1}, s{sRT}, 1
        s_add_u32 s{sS2}, s{sS2}, s{sT1}
        s_lshl_b32 s{sT1}, s{sSG}, 1
        s_add_u32 s{sS2}, s{sS2}, s{sT1}""")
        k.e(f"s_lshl_b32 s{sLW}, s{sSG}, 11\ns_cmp_ge_u32 s{sW}, 4\ns_cbranch_scc1 G_R1")
        st = k.snap()
        s.c_role()
        k.restore(st); k.e("G_R1:")
        s.h_role()
        k.restore(stT); k.vm = [dict(e, opt=True) for e in k.vm]; k.e("T_WG:")
        s.t_wg()
        k.e("K_END:\ns_endpgm\nCODE_END:")
        k.lines += s.cold
        ref = open(f"cdna_kernels/{NAME}.s.ref").read().split("\n")
        head = [l for l in ref if l.startswith(";") and "@launch" not in l]
        out = head + [f"; @launch grid=(256,1,1) block=(512,1,1) lds={LDS_BYTES}", '.amdgcn_target "amdgcn-amd-amdhsa--gfx950"', ".text"] + k.lines
        out += ['.section .rodata,"a"', ".p2align 6", f""".amdhsa_kernel {NAME}_kernel
  .amdhsa_next_free_vgpr 256
  .amdhsa_next_free_sgpr 102
  .amdhsa_accum_offset 256
  .amdhsa_group_segment_fixed_size 0
  .amdhsa_kernarg_size 80
  .amdhsa_user_sgpr_count 2
  .amdhsa_user_sgpr_kernarg_segment_ptr 1
  .amdhsa_system_sgpr_workgroup_id_x 1
  .amdhsa_float_denorm_mode_32 3
  .amdhsa_float_denorm_mode_16_64 3
.end_amdhsa_kernel"""]
        return "\n".join(out) + "\n"

if __name__ == "__main__":
    if len(sys.argv) == 1:
        open("t/v5.s", "w").write(G(False).build())
        open("t/v5ts.s", "w").write(G(True).build())
    for o in sys.argv[1:]:
        OPT.clear(); PAR.clear()
        for x in o.split("+"):
            if "=" in x: a, b = x.split("="); PAR[a] = float(b) if "." in b else int(b)
            else: OPT.add(x)
        open(f"t/y_{o}.s", "w").write(G(True).build())
```

```python
import struct, sys
import asm2
from asm2 import K, Fill
asm2.PADS = False
NAME = "parallel_sum__spectral_gfnet__glu_gated_bilinear__prompt"
def fh(x): return "0x%08x" % struct.unpack("<I", struct.pack("<f", x))[0]
MB = 1 << 20
QT, WT, CSO, FL, HO, ZT = 0, 2 * MB, 4 * MB, 4 * MB + MB // 2, 5 * MB, 12 * MB
WS_BYTES = ZT + 29 * 65536
FQ, FW, FH, EPOCH = FL, FL + 4096, FL + 8192, FL + 65536
TS_OFF = 200 * MB
LDS_BYTES = 160 * 1024
SL = 16384
F_LDS, MISC = 8 * SL, 159744
FCS_L, ST_L = MISC, MISC + 2048
SX, SWG, SWU, SWD, SWS, SOUT, SC = 24, 28, 32, 36, 40, 44, 48
sW, sSG, sRT, sFT, sHF, sDT, sPK, sTAG, sS2, sTL, sA, sCNT, sLW, sLD, sT0, sT1, sT2, sT3, sT4, sT5, sU0, sU1 = range(52, 74)
sM = 74
sPC, sQB, sFP, sO0, sO1, sZB, sXM, sHS = 6, 3, 8, 9, 10, 11, 20, 51
sTS = 82
OPT = set()
PAR = {}
def par(n, d): return PAR.get(n, d)
VTAG = 14
SC1 = "sc1"
class _L:
    def __format__(s, f): return "" if "plain" in OPT else "sc1"
LSC = _L()

def R(b, n=4): return f"v[{b}:{b+n-1}]"
def S4(b): return f"s[{b}:{b+3}]"
def mf32(d, A, B, c=None): return f"v_mfma_f32_32x32x16_bf16 {R(d,16)}, {R(A)}, {R(B)}, {'0' if c is True else R(d if c in (None, False) else c,16)}"
def mf4(d, A, B, c0=False): return f"v_mfma_f32_4x4x4_16b_bf16 {R(d)}, {R(A,2)}, {R(B,2)}, {'0' if c0 else R(d)}"
def rot(dst, i): return f"s_bfe_u32 s{dst}, s{sPK}, {(4 << 16) | (4 * i):#x}"
at = lambda n: ("at", n)

class G:
    def __init__(s, tson):
        s.k = K(); s.tson = tson; s.cold = []; s.k.drop = {o[2:] for o in OPT if o.startswith('x_')}; s.inG = True; s.k.lognop = "nops" in OPT
    def nstamp(s, n):
        if "ta" in PAR:
            i, r = divmod(n - PAR["ta"], PAR.get("tb", 4))
            if r == 0 and 0 <= i < 9: s.stamp(int(i) + 1, True)
    def stamp(s, i, force=False):
        if "ta" in PAR and s.inG and i and not force: return
        if s.tson: s.k.e(f"{'s_memtime' if 'cyc' in OPT else 's_memrealtime'} s[{sTS+2*i}:{sTS+2*i+1}]")
    def ts_store(s):
        if not s.tson: return
        k = s.k
        k.e("s_waitcnt vmcnt(0) lgkmcnt(0)")
        if "dbg" in OPT:
            k.e(f"s_load_dwordx2 s[{SC}:{SC+1}], s[0:1], 64\ns_mov_b32 s{SC+2}, 256\ns_mov_b32 s{SC+3}, 0x20000\ns_mov_b64 exec, 1\ns_not_b32 s{sT0}, s{sTS}\nv_mov_b32 v8, s{sT0}\ns_waitcnt lgkmcnt(0)")
            k.e(f"buffer_atomic_umax v8, off, {S4(SC)}, 0")
            for slot, i in s.dbg:
                k.e(f"v_mov_b32 v9, s{sTS+2*i}\nbuffer_atomic_umax v9, off, {S4(SC)}, 0 offset:{4*slot}")
            return
        k.srd(SC, 22, MB, TS_OFF)
        for i in range(10): k.e(f"v_mov_b32 v{8+i}, s{sTS+2*i}")
        k.e(f"v_mov_b32 v18, s{sCNT}")
        k.e(f"s_lshl_b32 s{sT0}, s2, 3\ns_add_u32 s{sT0}, s{sT0}, s{sW}\ns_lshl_b32 s{sT0}, s{sT0}, 6\ns_mov_b64 exec, 1")
        for i in range(3): k.e(f"buffer_store_dwordx4 {R(8+4*i)}, off, {S4(SC)}, s{sT0} offset:{16*i}")
    def seq(s, text, tag=None):
        for l in text.split("\n"):
            if l.strip(): yield s.k.e(l, tag)
    def flag(s, soff):
        return s.k.e(f"s_mov_b64 exec, 1\nbuffer_store_dword v{VTAG}, off, {S4(SWS)}, s{soff} {SC1}\ns_mov_b64 exec, -1", "flag")
    def cmp(s, regs, sent):
        k = s.k
        for i, r in enumerate(regs):
            d = "vcc" if len(regs) == 1 else f"s[{sM+2*i}:{sM+2*i+1}]"
            k.e(f"v_cmp_eq_u32 {d}, -1, v{r}" if sent else f"v_cmp_ne_u32 {d}, s{sTAG}, v{r}")
        return 4 * len(regs)
    def fin(s, n, lab):
        k = s.k
        for i in range(1, n): k.e(f"s_or_b64 s[{sM}:{sM+1}], s[{sM}:{sM+1}], s[{sM+2*i}:{sM+2*i+1}]")
        k.e(f"s_cbranch_vccnz {lab}" if n == 1 else f"s_cbranch_scc1 {lab}")
    def check(s, regs, reload, sent=False, pre=True, sleep=1):
        k = s.k
        ok, lp = k.label("ok"), k.label("spin")
        if pre: s.cmp(regs, sent)
        if "nochk" in OPT and s.inG:
            s.fin(len(regs), ok); k.e(f"{ok}:")
            return 2 + 6 * len(regs)
        s.fin(len(regs), lp)
        k.cond_begin()
        hot, k.lines = k.lines, s.cold
        k.e(f"{lp}:\ns_sleep {sleep}\n{reload}\ns_waitcnt vmcnt(0)\ns_add_u32 s{sCNT}, s{sCNT}, 1\ns_cmp_ge_u32 s{sCNT}, 0x4000\ns_cbranch_scc1 {ok}")
        s.cmp(regs, sent); s.fin(len(regs), lp)
        k.e(f"s_branch {ok}")
        k.lines = hot
        k.cond_end()
        k.e(f"{ok}:")
        return 2 + 6 * len(regs)
    def get_tag(s):
        s.k.e(f"s_or_b32 s{sTAG}, s{sTAG}, 0x40004000\ns_add_u32 s{sTAG}, s{sTAG}, 1\ns_and_b32 s{sTAG}, s{sTAG}, 0xbfffbfff\nv_mov_b32 v{VTAG}, s{sTAG}\ns_mov_b32 s{sCNT}, 0")
    def load_epoch(s, a=sT4):
        s.k.e(f"s_add_u32 s{a}, s22, {EPOCH:#x}\ns_addc_u32 s{a+1}, s23, 0\ns_load_dword s{sTAG}, s[{a}:{a+1}], 0")
    def split_hilo(s, dst, src, t):
        return f"""v_cvt_pk_bf16_f32 v{t}, v{src}, v{src}
        v_and_b32 v{t}, 0xffff0000, v{t}
        v_sub_f32 v{t}, v{src}, v{t}
        v_cvt_pk_bf16_f32 v{dst}, v{src}, v{t}"""

    def checkm(s, regs, reload, t):
        mx = f"v_max3_u32 v{t}, v{regs[0]}, v{regs[1]}, v{regs[2]}\nv_max_u32 v{t}, v{t}, v{regs[3]}" if len(regs) == 4 else f"v_max_u32 v{t}, v{regs[0]}, v{regs[1]}"
        return s.k.e(mx) + s.check([t], reload + "\n" + mx, sent=True)
    def x_dma(s, b, VX):
        k = s.k
        k.e(f"s_lshl1_add_u32 m0, s{sLW}, {SL*(b+1)}\n{rot(sT0, b)}\ns_lshl_b32 s{sT0}, s{sT0}, 7\ns_add_u32 s{sU0}, s{sT0}, s{sU1}")
        for i in range(4): yield k.e(f"buffer_load_dwordx4 v{VX+i}, {S4(SX)}, s{sU0} offen offset:{i*1024} lds", ("X", b))
    def w_dma(s, i, VW):
        k = s.k; P, ii = divmod(i, 7); slot = i % 6
        k.e(f"{rot(sT4, ii)}\ns_mul_i32 s{sT4}, s{sT4}, {64*3584}\ns_add_u32 s{sT5}, s{sT4}, {1792*P + 8*3584 - 1024}")
        if P: k.e(f"s_add_u32 s{sT4}, s{sT4}, 1792")
        for u in range(2):
            k.e(f"s_add_u32 m0, s{sLW}, {slot*SL + u*8192}")
            for h in range(2): yield k.e(f"buffer_load_dwordx4 v{VW+u}, {S4(SWU if u else SWG)}, s{sT4+h} offen offset:{1024*h} lds", ("W", i))
    def w_addr(s, T, VW):
        s.k.e(f"""v_lshrrev_b32 v{T}, 7, v1
        v_mul_u32_u24 v{VW}, 3584, v{T}
        v_and_b32 v{T}, 2, v{T}
        v_bfe_u32 v{T+1}, v1, 5, 2
        v_xor_b32 v{T}, v{T}, v{T+1}
        v_lshl_add_u32 v{VW}, v{T}, 5, v{VW}
        v_and_b32 v{T}, 16, v1
        s_mul_i32 s{sT0}, s{sSG}, {16*3584}
        s_lshl_b32 s{sT1}, s{sFT}, 7
        s_add_u32 s{sT0}, s{sT0}, s{sT1}
        v_add3_u32 v{VW}, v{VW}, v{T}, s{sT0}
        v_xor_b32 v{VW+1}, 32, v{VW}""")
        s.k.srd(SWG, 12, 448 * 3584); s.k.srd(SWU, 14, 448 * 3584)
    def unit(s, d, P, i):
        if P: return f"s_bfe_u32 s{d}, s{sPC + (i >> 2)}, {(8 << 16) | (8 * (i & 3)):#x}"
        return f"{rot(d, i)}\ns_add_u32 s{d}, s{d}, s{sLD}"
    def wd_dma(s, P, i, slot, VD):
        k = s.k
        k.e(f"{s.unit(sT4, P, i)}\ns_mul_i32 s{sT4}, s{sT4}, {32*896}\ns_lshl1_add_u32 m0, s{sLW}, {slot*SL}")
        for e in range(4):
            d = 896 * 896 * P if e == 0 else 8 * 896 - 1024
            if d: k.e(f"s_add_u32 s{sT4}, s{sT4}, {d}")
            yield k.e(f"buffer_load_dwordx4 v{VD}, {S4(SWD)}, s{sT4} offen offset:{1024*e} lds", ("D", P, i))
    def wd_addr(s, T, VD, TB, base):
        s.k.e(f"""v_bfe_u32 v{T}, v1, 8, 1
        v_bfe_u32 v{T+1}, v1, 6, 2
        v_lshrrev_b32 v{T+2}, 9, v1
        v_lshl_add_u32 v{TB}, v{T+2}, 2, v{T+1}
        v_lshlrev_b32 v{TB}, 7, v{TB}
        v_bfe_u32 v{T+3}, v1, 7, 1
        v_lshl_add_u32 v{TB}, v{T+3}, 6, v{TB}
        v_lshl_add_u32 v{TB}, v{T}, 5, v{TB}
        v_bfe_u32 v{T+3}, v1, 4, 2
        v_lshl_add_u32 v{TB}, v{T+3}, 3, v{TB}
        s_lshl1_add_u32 s{sT0}, s{sLW}, {base}
        v_add_u32 v{TB}, s{sT0}, v{TB}
        v_xor_b32 v{TB+1}, 64, v{TB}
        v_lshrrev_b32 v{T+1}, 7, v1
        v_mul_u32_u24 v{VD}, 896, v{T+1}
        v_lshlrev_b32 v{T}, 6, v{T}
        v_and_b32 v{T+3}, 0x70, v1
        v_xor_b32 v{T}, v{T}, v{T+3}
        s_lshl_b32 s{sT1}, s{sDT}, 7
        v_add3_u32 v{VD}, v{VD}, v{T}, s{sT1}""")
        s.k.srd(SWD, 16, 1792 * 896)
    def scal(s):
        k = s.k
        k.e(f"""s_lshl1_add_u32 s{sZB}, s{sRT}, s{sHF}
        s_mul_i32 s{sA}, s{sZB}, {224*1024}
        s_add_u32 s{sA}, s{sA}, {HO}
        s_lshl_b32 s{sFP}, s{sZB}, 7
        s_add_u32 s{sFP}, s{sFP}, {FH}
        s_lshl_b32 s{sZB}, s{sZB}, 11
        s_add_u32 s{sZB}, s{sZB}, {ZT}
        s_mul_i32 s{sHS}, s{sTL}, 28
        s_add_u32 s{sHS}, s{sHS}, s{sFT}
        s_lshl_b32 s{sHS}, s{sHS}, 12
        s_add_u32 s{sHS}, s{sHS}, {HO}
        s_mul_i32 s{sLD}, s{sSG}, 7
        {rot(sT0, 0)}
        s_lshl1_add_u32 s{sT0}, s{sT0}, s{sSG}
        s_lshr_b32 s{sT3}, s{sSG}, 1
        s_lshl_b32 s{sPC}, s{sT3}, 24
        s_mov_b32 s{sPC+1}, 0x010101
        s_mul_i32 s{sT3}, s{sT3}, 14""")
        for i in range(7):
            k.e(f"s_add_u32 s{sT1}, s{sT0}, {4*i - (14 if i > 3 else 0)}")
            if i == 3: k.e(f"s_sub_u32 s{sT1}, s{sT1}, s{sT3}")
            k.e(f"""s_sub_u32 s{sT2}, s{sT1}, 14
            s_cselect_b32 s{sT1}, s{sT1}, s{sT2}
            s_lshl_b32 s{sT1}, s{sT1}, {8*(i&3)+1}
            s_or_b32 s{sPC+(i>>2)}, s{sPC+(i>>2)}, s{sT1}""")
    def hld(s, P, i, r, sc=SC1):
        o = []
        for S in range(2):
            p = f"{s.unit(sT4, P, i)}\ns_lshl_b32 s{sT4}, s{sT4}, 11\ns_add_u32 s{sT4}, s{sT4}, s{sA}\n" + (f"s_add_u32 s{sT4}, s{sT4}, {56*1024}\n" if P else "") if S == 0 else f"s_add_u32 s{sT4}, s{sT4}, {112*1024}\n"
            for kk in range(2):
                o.append(p + f"buffer_load_dwordx4 {R(r+8*kk+4*S)}, v1, {S4(SWS)}, s{sT4} offen offset:{1024*kk} {sc}"); p = ""
        return o
    def gen_F(s, n, T, B):
        k = s.k
        k.e(f"""v_bfe_u32 v{T}, v1, 5, 4
        s_lshl_b32 s{sT0}, s{sFT}, 4
        v_add_u32 v{T}, s{sT0}, v{T}
        v_bfe_u32 v{T+1}, v1, 4, 1
        v_lshl_add_u32 v{T+2}, v{T}, 1, v{T+1}
        v_cmp_eq_u32 vcc, 1, v{T+2}
        v_mov_b32 v{T+3}, 224
        v_cvt_f32_u32 v{T+1}, v{T+1}
        v_cndmask_b32 v{T}, v{T}, v{T+3}, vcc
        v_mul_f32 v{T+1}, 0x3e800000, v{T+1}
        v_cvt_f32_u32 v{T}, v{T}
        v_cndmask_b32 v{T+1}, v{T+1}, 0, vcc
        v_mul_f32 v{T}, {fh(1/448)}, v{T}
        v_lshrrev_b32 v{T+2}, 9, v1
        v_lshlrev_b32 v{T+2}, 3, v{T+2}
        s_xor_b32 s{sT1}, s{sW}, {4*par("fsw", 0)}
        {rot(sT0, 0)}
        s_lshl_b32 s{sT0}, s{sT0}, 2
        s_add_u32 s{sT0}, s{sT0}, s{sT1}
        s_lshl_b32 s{sT0}, s{sT0}, 4
        s_sub_u32 s{sT0}, s{sT0}, 448
        v_add_u32 v{T+2}, s{sT0}, v{T+2}
        v_cvt_f32_i32 v{T+2}, v{T+2}
        v_fmac_f32 v{T+1}, v{T}, v{T+2}
        s_lshl_b32 s{sT1}, s{sT1}, 10
        s_add_u32 s{sT1}, s{sT1}, {F_LDS}
        v_add_u32 v{T+3}, s{sT1}, v1
        v_mov_b32 v{T+2}, 0
        s_mov_b32 s{sT0}, 0x3f803f80""")
        for i in range(n):
            r = B + 8 * (i & 1)
            for j in range(8):
                if 128 * i + j: k.e(f"v_fmamk_f32 v{r+j}, v{T}, {fh(128*i+j)}, v{T+1}")
            for j in range(8): k.e(f"v_cos_f32 v{r+j}, v{r+j if 128*i+j else T+1}")
            o = B + 16 + 4 * (i & 1)
            for j in range(4): k.e(f"v_cvt_pk_bf16_f32 v{o+j}, v{r+2*j}, v{r+2*j+1}")
            k.e(f"ds_write_b128 v{T+3}, {R(o)} offset:{i*8192}")
            for j in range(4): k.e(f"v_dot2c_f32_bf16 v{T+2}, s{sT0}, v{o+j}")
        k.e(f"""s_lshl_b32 s{sT1}, s{sW}, 8
        s_add_u32 s{sT1}, s{sT1}, {FCS_L}
        v_lshrrev_b32 v{T+3}, 2, v1
        v_add_u32 v{T+3}, s{sT1}, v{T+3}
        ds_write_b32 v{T+3}, v{T+2}""")
    def x_addr(s, T, XRD):
        s.k.e(f"""v_bfe_u32 v{T}, v1, 4, 5
        v_bfe_u32 v{T+1}, v1, 5, 3
        v_lshrrev_b32 v{T+2}, 9, v1
        v_xor_b32 v{T+1}, v{T+1}, v{T+2}
        v_lshlrev_b32 v{T+1}, 4, v{T+1}
        v_lshl_add_u32 v{XRD}, v{T}, 7, v{T+1}
        s_lshl1_add_u32 s{sT0}, s{sLW}, {SL}
        v_add_u32 v{XRD}, s{sT0}, v{XRD}
        v_xor_b32 v{XRD+1}, 32, v{XRD}
        v_xor_b32 v{XRD+2}, 64, v{XRD}
        v_xor_b32 v{XRD+3}, 96, v{XRD}""")
    def xrd(s, b, XRD, r):
        if b == 4:
            for i in range(4): s.k.e(f"v_add_u32 v{XRD+i}, {4*SL}, v{XRD+i}")
        for i in range(4): s.k.e(f"ds_read_b128 {R(r+4*i)}, v{XRD+i} offset:{(b&3)*SL}")
    def bar(s, *tags):
        k = s.k; idx = []
        for v in tags:
            assert v in k.issued, v
            idx += [(i, v) for i, e in enumerate(k.vm) if e["tag"] == v]
        k.wait(vm=max(idx, key=lambda x: x[0])[1] if idx else None, lg="all")
        k.e("s_barrier")
    def wa_addr(s, WA, base):
        s.k.e(f"""v_lshrrev_b32 v{WA}, 5, v1
        v_and_b32 v{WA}, 16, v{WA}
        v_xor_b32 v{WA}, v{WA}, v1
        s_lshl1_add_u32 s{sT0}, s{sLW}, {base}
        v_add_u32 v{WA}, s{sT0}, v{WA}""")
        for q in range(1, 4): s.k.e(f"v_xor_b32 v{WA+q}, {q*32}, v{WA}")
    def wr(s, WA, acc, t, S):
        for q in range(4): yield 8 + s.k.e(f"ds_write_b128 v{WA+q}, {R(acc+4*q)} offset:{(2*S+t)*SL + q*1024}")
    def finish(s):
        k = s.k
        s.ts_store()
        k.e("s_endpgm")
        if "flows" in OPT: k.show_flows()
        if "log" in OPT: print("  nops", k.nops)
        k.issued = set(); k.lw = {}
    CSL = [9, 2, 3, 4, 5, 0, 1]

    def c_role(s):
        k = s.k; F = Fill(k); s.dbg = [(1, 0), (2, 2), (3, 3), (4, 4), (5, 6), (6, 8), (7, 1)]
        TRL, TRH, XRD, AR, ACC, XF = 2, 6, 10, 16, 48, 112
        VX, VW, VD, NR, NM, TB, NT, VO, VN, VR, TMP = 224, 228, 230, 231, 232, 234, 240, 248, 249, 250, 15
        WA, XRES, ZN = 2, 224, 236
        T = ACC
        done = {}
        def mark(n):
            done[n] = F.t
            if "log" in OPT: print("  C", n, "at", F.t)
        def force(n):
            while n not in done: F.run(40); F.t += (n not in done)
        k.e(f"""v_lshrrev_b32 v{T}, 7, v1
        v_mul_u32_u24 v{VX}, {64*896}, v{T}
        v_lshrrev_b32 v{T}, 4, v1
        v_xor_b32 v{T}, v{T}, v1
        v_and_b32 v{T}, 0x70, v{T}
        v_add_u32 v{VX}, v{T}, v{VX}
        v_xor_b32 v{VX+1}, 64, v{VX}
        v_add_u32 v{VX+2}, {2*(8*64*896-1024)}, v{VX}
        v_add_u32 v{VX+1}, {8*64*896-1024}, v{VX+1}
        v_add_u32 v{VX+3}, {2*(8*64*896-1024)}, v{VX+1}
        s_mul_i32 s{sU1}, s{sS2}, 896
        s_waitcnt lgkmcnt(0)""")
        k.srd(SX, 4, 2048 * 896)
        NWC = par("nwc", 4)
        def ldq():
            for b in range(7): yield from s.x_dma(b, VX)
            for i in range(NWC): yield from s.w_dma(i, VW)
        lq = ldq()
        def issue(n):
            for _ in range(n): next(lq, None)
        issue(par("x0n", 8))
        s.stamp(1)
        s.gen_F(4 - par("fsw", 0), T, T + 8)
        issue(par("ahead", 12) - par("x0n", 8))
        s.x_addr(T, XRD)
        s.w_addr(T, VW)
        k.e(f"""v_bfe_u32 v{T}, v1, 8, 1
        v_bfe_u32 v{T+1}, v1, 6, 2
        v_lshrrev_b32 v{T+2}, 9, v1
        v_lshl_add_u32 v{T+3}, v{T+2}, 3, v{T+1}
        v_lshlrev_b32 v{T+3}, 7, v{T+3}
        v_lshl_add_u32 v{TRL}, v{T}, 13, v{T+3}
        v_and_or_b32 v{T+4}, v{T+1}, 2, v{T}
        v_lshl_add_u32 v{TRL}, v{T+4}, 5, v{TRL}
        v_bfe_u32 v{T+4}, v1, 4, 2
        v_lshl_add_u32 v{TRL}, v{T+4}, 3, v{TRL}""")
        for j in range(1, 4): k.e(f"v_xor_b32 v{TRL+j}, {32*j}, v{TRL}")
        for j in range(4): k.e(f"v_add_u32 v{TRH+j}, {4*SL}, v{TRL+j}")
        k.e(f"""v_bfe_u32 v{TMP}, v1, 4, 5
        s_lshl_b32 s{sT0}, s{sSG}, 7
        s_add_u32 s{sT0}, s{sT0}, {ST_L}
        v_lshl_add_u32 v{TMP}, v{TMP}, 2, s{sT0}
        s_mov_b32 s{sCNT}, 0""")
        k.srd(SWS, 22, WS_BYTES)
        s.stamp(9)
        for b in range(7):
            s.bar(("X", b))
            if b == 0: s.stamp(2)
            if b == 6: s.stamp(3)
            s.xrd(b, XRD, XF + 16 * b)
            issue(4)
            if b == 0: s.scal()
            if b == 1: s.wd_addr(T, VD, TB, 0)
        issue(99)
        for i in range(2): k.e(f"v_add_u32 v{TB+2+i}, {4*SL}, v{TB+i}\nv_add_u32 v{TB+4+i}, {8*SL}, v{TB+i}")
        s.bar(("W", 0))
        k.e(f"ds_read_b32 v{NM}, v{TMP}\nds_read_b32 v{NR}, v{TMP} offset:512")
        if par("prio", 1): k.e("s_setprio 1")
        kmaj = lambda its: [(i, kk, j) for i in its for kk in range(4) for j in range(4)]
        tmaj = lambda its: [(i, kk, j) for j in range(4) for i in its for kk in range(4)]
        nt = par("nt", 3)
        M = kmaj(range(6)) + tmaj([6]) + tmaj([7]) + kmaj(range(8, 14 - nt)) + tmaj(range(14 - nt, 14))
        last = {}
        for m, (i, kk, j) in enumerate(M): last[i // 7, j] = m
        def norm():
            for kk in range(28):
                for h in range(2):
                    x = XF + 4 * kk + 2 * h; t = NT + 4 * h
                    yield from s.seq(f"""v_lshlrev_b32 v{t}, 16, v{x}
                    v_and_b32 v{t+1}, 0xffff0000, v{x}
                    v_lshlrev_b32 v{t+2}, 16, v{x+1}
                    v_and_b32 v{t+3}, 0xffff0000, v{x+1}
                    v_fma_f32 v{t}, v{t}, v{NR}, v{NM}
                    v_fma_f32 v{t+1}, v{t+1}, v{NR}, v{NM}
                    v_fma_f32 v{t+2}, v{t+2}, v{NR}, v{NM}
                    v_fma_f32 v{t+3}, v{t+3}, v{NR}, v{NM}
                    v_cvt_pk_bf16_f32 v{x}, v{t}, v{t+1}""")
                    if h: done["n", kk] = F.t
                    yield k.e(f"v_cvt_pk_bf16_f32 v{x+1}, v{t+2}, v{t+3}")
            mark("norm")
        def hepi():
            for P in range(2):
                if P: yield k.e(f"s_add_u32 s{sHS}, s{sHS}, {56*1024}")
                for j in range(4):
                    c = ACC + 16 * j; o = NT + 4 * (j & 1)
                    yield at(last[P, j] + 2)
                    assert "norm" in done
                    for i in range(4):
                        yield from s.seq(f"v_mul_f32 v{c+2*i}, v{c+2*i}, v{c+8+2*i}\nv_mul_f32 v{c+2*i+1}, v{c+2*i+1}, v{c+9+2*i}")
                    for i in range(4):
                        if i == 3: done["e", P, j] = F.t
                        yield k.e(f"v_cvt_pk_bf16_f32 v{o+i}, v{c+2*i}, v{c+2*i+1}")
                    yield 10 + k.e(f"buffer_store_dwordx4 {R(o)}, v1, {S4(SWS)}, s{sHS} offen offset:{1024*j} {SC1}", "H")
                    mark(("H", P, j))
                s.stamp(5 + 2 * P)
        F.add(norm(), -99); F.add(hepi(), -99)
        rp = [0]; pub = [0]
        def reads(upto):
            c = 0
            while rp[0] <= min(upto, 223) and M[rp[0]][0] <= pub[0]:
                i, kk, j = M[rp[0]]; slot = i % 6
                for hh in range(2): c += 2 + k.e(f"ds_read_b64_tr_b16 {R(AR+4*(rp[0]%8)+2*hh, 2)}, v{(TRH if slot >= 4 else TRL)+j} offset:{(slot&3)*SL + kk*2048 + hh*512}")
                rp[0] += 1
            return c
        DIST, DB = par("dist", 6), par("db", 4)
        F.t = -1
        reads(DIST - 1)
        force(("n", par("n0", 1)))
        s.stamp(4)
        for m, (i, kk, j) in enumerate(M):
            P, ii = divmod(i, 7)
            F.t = m
            if P == 0: force(("n", 4 * ii + kk))
            if i == 7 and kk == 0: force(("e", 0, j))
            F.t = m
            k.e(mf32(ACC + 16 * j, AR + 4 * (m % 8), XF + 16 * ii + 4 * kk, ii + kk == 0))
            s.nstamp(m)
            if m % 32 == 16 - DB and m < 192:
                kb = m // 32
                assert rp[0] == 32 * kb + 16
                pub[0] = 2 * kb + 2 + (kb == 5)
                s.bar(*[("W", w) for w in range(NWC) if w <= pub[0]])
            c = reads(m + DIST)
            F.run(max(4, (par("nb", 30) if "norm" not in done else par("bud", 24)) - c))
        s.stamp(6)
        F.drain()
        if par("prio", 1) == 1: k.e("s_setprio 0")
        s.bar()
        NH = par("nh", 4)
        k.srd(SOUT, 18, 2048 * 896)
        def hl(i):
            for l in s.hld(1, i, XF + 16 * i): k.e(l, ("h", i))
        def dl(i):
            for _ in s.wd_dma(1, i, s.CSL[i], VD): pass
        for i in range(NH, 7): dl(i)
        k.e(f"""s_and_b32 s{sO0}, s{sS2}, 0x39
        s_lshl2_add_u32 s{sO0}, s{sHF}, s{sO0}
        s_lshl_b32 s{sT1}, s{sSG}, 9
        s_add_u32 s{sO0}, s{sO0}, s{sT1}
        s_mul_i32 s{sO0}, s{sO0}, 896
        s_lshl_b32 s{sT1}, s{sDT}, 7
        s_add_u32 s{sO0}, s{sO0}, s{sT1}
        s_add_u32 s{sO1}, s{sO0}, {256*896}
        v_lshrrev_b32 v{VN}, 8, v1
        v_mul_u32_u24 v{VO}, {64*896}, v{VN}
        v_bfe_u32 v{VR}, v1, 4, 4
        v_lshl_add_u32 v{VO}, v{VR}, 3, v{VO}
        s_lshl_b32 s{sT0}, s{sSG}, 3
        v_add_u32 v{VN}, s{sT0}, v{VN}
        v_lshlrev_b32 v{VN}, 4, v{VN}
        v_bfe_u32 v{VR}, v1, 7, 1
        v_lshlrev_b32 v{VR}, 14, v{VR}
        v_and_b32 v{TMP}, 0x70, v1
        v_lshl_add_u32 v{VR}, v{TMP}, 5, v{VR}
        v_xor_b32 v{TMP}, v{TMP}, v{VN}
        v_add3_u32 v{VR}, v{VR}, v{TMP}, {2*SL}
        v_xor_b32 v{VR+1}, 64, v{VR}
        v_add_u32 v{VR+2}, {4*SL}, v{VR}
        v_add_u32 v{VR+3}, {4*SL}, v{VR+1}
        s_add_u32 s{sZB}, s{sZB}, {28*65536}""".replace(f"v_add3_u32 v{VR}, v{VR}, v{TMP}, {2*SL}", f"v_add_u32 v{VR}, v{VR}, v{TMP}\nv_add_u32 v{VR}, {2*SL}, v{VR}"))
        s.wa_addr(WA, 2 * SL)
        if par("hw", 0): k.wait(vm="H")
        for i in range(7): hl(i)
        for S in range(2):
            for g in range(2): k.e(f"buffer_load_dwordx2 {R(XRES+4*S+2*g, 2)}, v{VO}, {S4(SX)}, s{sO0+g} offen offset:{1792*S}")
        s.stamp(8)
        def ard(f):
            i, kk, t = f >> 2, (f >> 1) & 1, f & 1; slot = s.CSL[i]
            if i >= NH: k.wait(vm=("D", 1, i))
            for hh in range(2): k.e(f"ds_read_b64_tr_b16 {R(AR+4*(f%8)+2*hh, 2)}, v{TB+2*(slot>>2)+t} offset:{(slot&3)*SL + kk*2048 + hh*1024}")
        for f in range(8): ard(f)
        acc = lambda t, S: ACC + 16 * (2 * S + t)
        m = 224 + 56
        for i in range(7):
            r = XF + 16 * i
            s.checkm([r + 3, r + 7, r + 11, r + 15], "\n".join(s.hld(1, i, r)), TMP)
            o = [(kk, t, S) for kk in range(2) for t in range(2) for S in range(2)]
            if i == 6: o = [(kk, t, S) for S in range(2) for t in range(2) for kk in range(2)]
            for n, (kk, t, S) in enumerate(o):
                f = 4 * i + 2 * kk + t
                k.e(mf32(acc(t, S), AR + 4 * (f % 8), r + 8 * kk + 4 * S, i + kk == 0))
                s.nstamp(m); m += 1
                if S == 1 and f + 8 < 28: ard(f + 8)
                if i == 6 and n in (3, 5, 7):
                    for _ in s.wr(WA, acc((n - 3) >> 1 & 1, (n - 3) >> 2), (n - 3) >> 1 & 1, (n - 3) >> 2): pass
        for _ in s.wr(WA, acc(1, 1), 1, 1): pass
        zl = [f"buffer_load_dword v{ZN+2*S+g}, v{VN}, {S4(SWS)}, s{sZB} offen offset:{1024*S + 64*g} {SC1}" for S in range(2) for g in range(2)]
        k.e("\n".join(zl))
        s.bar()
        s.nstamp(340)
        RB, SUM = XF, ACC
        def rd(role, S):
            for g in range(2):
                for w in range(4): k.e(f"ds_read_b128 {R(RB+32*S+16*g+4*w)}, v{VR+2*role+g} offset:{2*S*SL + w*4096}")
        rd(0, 0); rd(0, 1)
        for S in range(2):
            for g in range(2):
                d = SUM + 8 * S + 4 * g; b = RB + 32 * S + 16 * g
                for e in range(4):
                    x = XRES + 4 * S + 2 * g + (e >> 1)
                    k.e(f"v_and_b32 v{d+e}, 0xffff0000, v{x}" if e & 1 else f"v_lshlrev_b32 v{d+e}, 16, v{x}")
                for w in range(4):
                    for e in range(4): k.e(f"v_add_f32 v{d+e}, v{d+e}, v{b+4*w+e}")
        s.checkm([ZN, ZN + 1, ZN + 2, ZN + 3], "\n".join(zl), TMP)
        for i in range(4): k.e(f"v_lshlrev_b32 v{ZN+i}, 16, v{ZN+i}")
        for i in range(4):
            for e in range(4): k.e(f"v_fma_f32 v{SUM+4*i+e}, v{ZN+i}, {'-0.5' if e & 1 else '0.5'}, v{SUM+4*i+e}")
        for S in range(2):
            s.bar()
            s.nstamp(341 + S)
            rd(1, S)
            for g in range(2):
                d = SUM + 8 * S + 4 * g; b = RB + 32 * S + 16 * g
                for w in range(4):
                    for e in range(4): k.e(f"v_add_f32 v{d+e}, v{d+e}, v{b+4*w+e}")
                k.e(f"v_cvt_pk_bf16_f32 v{d}, v{d}, v{d+1}\nv_cvt_pk_bf16_f32 v{d+1}, v{d+2}, v{d+3}")
                k.e(f"buffer_store_dwordx2 {R(d,2)}, v{VO}, {S4(SOUT)}, s{sO0+g} offen offset:{1792*S}")
        if s.tson: k.e("s_waitcnt vmcnt(0)"); s.stamp(1); s.nstamp(343)
        s.finish()

    def h_role(s):
        k = s.k; F = Fill(k); s.dbg = [(8, 4), (9, 5), (10, 7), (11, 1)]
        XRD, FA, VW, VD, TB, VQ, SGN, TMP = 2, 6, 7, 9, 10, 12, 13, 15
        WA, VP, PD, MS = 2, 6, 12, 0
        ACC, WDR, HB = 16, 80, 144
        D1, D2C, D2S, CLR, SQ, SM, ONE, M4, FC = 16, 32, 48, 76, 80, 88, 64, 68, 72
        E, RSR, PA, PB = 96, 112, 128, 136
        XB, FB, T = HB, HB + 48, HB + 96
        done = {}
        def force(n):
            while n not in done: F.run(40)
        def run(g):
            for _ in g: pass
        for i in range(4): k.e(f"v_mov_b32 v{CLR+i}, -1")
        k.e(f"s_lshl_b32 s{sQB}, s{sFT}, 7\ns_add_u32 s{sQB}, s{sQB}, s{sTL}\ns_lshl_b32 s{sQB}, s{sQB}, 10\ns_waitcnt lgkmcnt(0)")
        k.srd(SWS, 22, WS_BYTES)
        s.load_epoch(sU0)
        def clrb(base):
            for i in range(2): k.e(f"s_add_u32 s{sT4}, s{sQB}, {base + 65536*i}\nbuffer_store_dwordx4 {R(CLR)}, v1, {S4(SWS)}, s{sT4} offen {SC1}", "C")
            L = k.label("nonyq")
            k.e(f"s_cmp_lg_u32 s{sFT}, 0\ns_cbranch_scc1 {L}")
            k.cond_begin()
            k.e(f"s_add_u32 s{sT4}, s{sQB}, {base + 28*65536}\nbuffer_store_dwordx4 {R(CLR)}, v1, {S4(SWS)}, s{sT4} offen {SC1}", "C")
            k.cond_end()
            k.e(f"{L}:")
        CHP = par("chp", 1)
        def clrh(P):
            k.e(f"s_mul_i32 s{sT4}, s{sTL}, 28\ns_add_u32 s{sT4}, s{sT4}, s{sFT}\ns_lshl_b32 s{sT4}, s{sT4}, 12\ns_add_u32 s{sT4}, s{sT4}, {HO + 56*1024*P}")
            for j in range(4): k.e(f"buffer_store_dwordx4 {R(CLR)}, v1, {S4(SWS)}, s{sT4} offen offset:{1024*j} {SC1}", "C")
        def fh_flag(): k.e(f"s_lshl_b32 s{sT4}, s{sTL}, 4\ns_add_u32 s{sT4}, s{sT4}, s{sFT}\ns_lshl_b32 s{sT4}, s{sT4}, 2\ns_add_u32 s{sT4}, s{sT4}, {FH}"); s.flag(sT4)
        clrb(QT)
        if CHP in (1, 3): clrh(0)
        if CHP == 1: clrh(1)
        s.stamp(1)
        s.gen_F(3 + par("fsw", 0), T, XB)
        clrb(ZT)
        if CHP == 2: clrh(0)
        if CHP in (2, 3): clrh(1)
        k.e("s_waitcnt lgkmcnt(0)")
        s.get_tag()
        s.x_addr(T, XRD)
        k.e(f"""v_add_u32 v{FA}, {F_LDS}, v1
        v_lshrrev_b32 v{TMP}, 2, v1
        v_add_u32 v{TMP}, {FCS_L}, v{TMP}
        v_mov_b32 v{ONE}, 0x3f803f80
        v_mov_b32 v{ONE+1}, 0x3f803f80""")
        def etab():
            C_ = T + 4
            yield from s.seq(f"""v_bfe_u32 v{T}, v1, 4, 5
            v_cvt_f32_u32 v{T}, v{T}
            v_lshrrev_b32 v{T+1}, 9, v1
            v_lshlrev_b32 v{T+1}, 8, v{T+1}
            v_add_u32 v{T+1}, s{sS2}, v{T+1}
            v_cvt_f32_u32 v{T+1}, v{T+1}
            v_mul_f32 v{T+1}, {fh(1/2048)}, v{T+1}
            v_mul_f32 v{T+1}, v{T+1}, v{T}
            v_mul_f32 v{T}, {fh(1/32)}, v{T}""")
            for q in range(2):
                for jp in range(4):
                    c = C_ + 4 * (jp & 1)
                    for e in range(2):
                        j = 2 * jp + e
                        yield from s.seq(f"v_fmamk_f32 v{c+e}, v{T}, {fh(16*q + 8*(j>>2) + (j&3))}, v{T+1}\nv_sin_f32 v{c+2+e}, v{c+e}\nv_cos_f32 v{c+e}, v{c+e}")
                    yield from s.seq(f"v_cvt_pk_bf16_f32 v{E+8+4*q+jp}, v{c+2}, v{c+3}\nv_cvt_pk_bf16_f32 v{E+4*q+jp}, v{c}, v{c+1}")
            done["E"] = 1
        U0, U1 = PB, PB + 1
        def misc():
            for st in (4, 2, 1):
                for i in range(st): yield k.e(f"v_add_f32 v{D2C+i}, v{D2C+i}, v{D2C+st+i}")
            yield from s.seq(s.split_hilo(FC, D2C, D2C + 1))
            for i in range(1, 4): yield k.e(f"v_mov_b32 v{FC+i}, 0\nv_mov_b32 v{M4+i}, 0")
            yield k.e(f"""s_cmp_eq_u32 s{sFT}, 0
            s_cselect_b32 s{sXM}, 3, 0
            s_mov_b32 s{sXM+1}, s{sXM}
            s_and_b32 s{sM+6}, s{sXM}, 2
            s_mov_b32 s{sM+7}, s{sM+6}""")
            yield from s.seq(f"""v_and_b32 v{VQ}, 0xf0, v1
            v_bfe_u32 v{SGN}, v1, 8, 1
            v_lshl_add_u32 v{VQ}, v{SGN}, 16, v{VQ}
            v_mov_b32 v{SGN}, {28*65536}
            v_cndmask_b32 v{VQ}, v{VQ}, v{SGN}, s[{sM+6}:{sM+7}]
            v_lshrrev_b32 v{SGN}, 9, v1
            v_lshl_add_u32 v{VQ}, v{SGN}, 8, v{VQ}
            v_cndmask_b32 v{MS}, 1.0, 0, s[{sXM}:{sXM+1}]
            v_bfe_i32 v{U0}, v1, 4, 1
            v_lshlrev_b32 v{U1}, 4, v{SGN}
            v_and_b32 v{SGN}, 0x80008000, v{U0}
            v_bfe_u32 v{U0}, v1, 4, 5""")
            yield k.e(f"""s_lshl_b32 s{sT0}, s{sSG}, 7
            s_add_u32 s{sT0}, s{sT0}, {ST_L}
            v_lshl_add_u32 v{U0}, v{U0}, 2, s{sT0}
            v_add_u32 v{U1}, s{sT0}, v{U1}""")
            yield k.e(f"""s_mov_b32 s{sM}, 0x22222222
            s_mov_b32 s{sM+1}, 0x22222222
            s_mov_b32 s{sM+2}, 0x44444444
            s_mov_b32 s{sM+3}, 0x44444444
            s_mov_b32 s{sM+4}, 0x88888888
            s_mov_b32 s{sM+5}, 0x88888888""")
            done["misc"] = 1
        ge = etab()
        for _ in range(par("epre", 40)): next(ge)
        s.stamp(9)
        def stats():
            S1, S2 = SM, SQ
            yield from s.seq(f"""v_add_f32 v{S1}, v{SM}, v{SM+4}
            v_add_f32 v{SQ}, v{SQ}, v{SQ+4}
            v_add_f32 v{SQ+1}, v{SQ+1}, v{SQ+5}
            v_add_f32 v{SQ+2}, v{SQ+2}, v{SQ+6}
            v_add_f32 v{SQ+3}, v{SQ+3}, v{SQ+7}
            v_mov_b32 v{S1+1}, v{S1}
            v_cndmask_b32 v{SQ}, v{SQ}, v{SQ+1}, s[{sM}:{sM+1}]
            v_cndmask_b32 v{SQ}, v{SQ}, v{SQ+2}, s[{sM+2}:{sM+3}]
            v_cndmask_b32 v{SQ}, v{SQ}, v{SQ+3}, s[{sM+4}:{sM+5}]
            v_permlane32_swap_b32 v{S1}, v{S1+1}
            v_mov_b32 v{S2+1}, v{S2}
            v_add_f32 v{S1}, v{S1}, v{S1+1}
            v_mul_f32 v{S1}, {fh(1/448)}, v{S1}
            v_permlane32_swap_b32 v{S2}, v{S2+1}
            v_cvt_pk_bf16_f32 v{M4}, -v{S1}, -v{S1}
            v_add_f32 v{S2}, v{S2}, v{S2+1}
            v_mul_f32 v{S2}, {fh(1/448)}, v{S2}
            v_fma_f32 v{S2}, -v{S1}, v{S1}, v{S2}
            v_max_f32 v{S2}, 0, v{S2}
            v_cvt_pk_bf16_f32 v{S2}, v{S2}, v{S2}
            v_and_b32 v{S2}, 0xffff0000, v{S2}
            v_add_f32 v{S2}, {fh(1e-5)}, v{S2}
            v_cvt_pk_bf16_f32 v{S2}, v{S2}, v{S2}
            v_and_b32 v{S2}, 0xffff0000, v{S2}
            v_sqrt_f32 v{S2}, v{S2}
            v_and_b32 v{S1}, 0xffff0000, v{M4}
            v_cvt_pk_bf16_f32 v{S2}, v{S2}, v{S2}
            v_and_b32 v{S2}, 0xffff0000, v{S2}
            v_rcp_f32 v{S2}, v{S2}
            s_nop 0
            ds_write_b32 v{U0}, v{S2} offset:512
            v_mul_f32 v{S1}, v{S1}, v{S2}
            ds_write_b32 v{U0}, v{S1}""")
            done["stats"] = 1
        for b in range(7):
            s.bar()
            if b == 0: s.stamp(2)
            if b == 6: s.stamp(3)
            x, f = XB + 16 * (b % 3), FB + 16 * (b % 3)
            s.xrd(b, XRD, x)
            for r in range(4): k.e(f"ds_read_b128 {R(f+4*r)}, v{FA} offset:{(4*b+r)*1024}")
            if b == 0:
                for w in range(8): k.e(f"ds_read_b32 v{D2C+w}, v{TMP} offset:{w*256}")
                F.add(misc()); F.add(ge)
            if b == par("fq", 2):
                k.wait(vm="C")
                k.e(f"s_lshl_b32 s{sT4}, s{sFT}, 6\ns_add_u32 s{sT4}, s{sT4}, s{sTL}\ns_lshl_b32 s{sT4}, s{sT4}, 2\ns_add_u32 s{sT4}, s{sT4}, {FQ}"); s.flag(sT4)
                if CHP: fh_flag()
            F.run(par("xb", 40))
            for r in range(4):
                y = x + 4 * r; z = b + r == 0
                k.e(mf4(SQ, y, y, z)); k.e(mf4(SM, ONE, y, z)); k.e(mf4(SQ + 4, y + 2, y + 2, z)); k.e(mf4(SM + 4, ONE, y + 2, z))
            if b == 6: force("misc"); F.g.insert(0, [stats(), 0])
            for r in range(4):
                k.e(mf32(D1, x + 4 * r, f + 4 * r, b + r == 0)); F.run(24 if b < 6 else 32)
        force("stats")
        k.e(mf32(D1, M4, FC))
        k.wait(lg="all")
        for q in range(4): k.e(f"ds_read_b128 {R(RSR+4*q)}, v{U1} offset:{512 + 32*q}")
        k.e("s_barrier")
        force("E")
        for h in range(2):
            for p in range(4 * h, 4 * h + 4):
                k.e(f"v_mul_f32 v{D1+2*p}, v{D1+2*p}, v{RSR+2*p}\nv_mul_f32 v{D1+2*p+1}, v{D1+2*p+1}, v{RSR+2*p+1}")
            for p in range(4 * h, 4 * h + 4): k.e(f"v_cvt_pk_bf16_f32 v{PA+p}, v{D1+2*p}, v{D1+2*p+1}")
            for p in range(4 * h, 4 * h + 4): k.e(f"v_xor_b32_dpp v{PB+p}, v{PA+p}, v{SGN} quad_perm:[1,0,3,2] row_mask:0xf bank_mask:0xf")
            k.e(mf32(D2C, E + 4 * h, PA + 4 * h, h == 0))
            k.e(f"s_mov_b64 exec, s[{sXM}:{sXM+1}]")
            for p in range(4 * h, 4 * h + 4): k.e(f"v_xor_b32 v{PB+p}, 0x80008000, v{PA+p}")
            k.e("s_mov_b64 exec, -1")
            k.e(mf32(D2S, E + 8 + 4 * h, PB + 4 * h, h == 0))
        s.w_addr(T, VW)
        for h in range(2):
            for r in range(8 * h, 8 * h + 8): k.e(f"v_fmac_f32 v{D2C+r}, v{D2S+r}, v{MS}")
            for p in range(4 * h, 4 * h + 4): k.e(f"v_cvt_pk_bf16_f32 v{PA+p}, v{D2C+2*p}, v{D2C+2*p+1}")
            k.e(f"buffer_store_dwordx4 {R(PA+4*h)}, v{VQ}, {S4(SWS)}, s{sQB} offen offset:{QT+512*h} {SC1}", "Q")
        L = k.label("nonyq")
        k.e(f"s_cmp_lg_u32 s{sFT}, 0\ns_cbranch_scc1 {L}")
        k.cond_begin()
        for p in range(8): k.e(f"v_cvt_pk_bf16_f32 v{PB+p}, v{D2S+2*p}, v{D2S+2*p+1}")
        k.e(f"s_mov_b64 exec, s[{sXM}:{sXM+1}]")
        for h in range(2): k.e(f"buffer_store_dwordx4 {R(PB+4*h)}, v{VQ}, {S4(SWS)}, s{sQB} offen offset:{QT+512*h+16} {SC1}", "Q")
        k.e("s_mov_b64 exec, -1")
        k.cond_end()
        k.e(f"{L}:")
        s.stamp(4)
        NWC, NH = par("nwc", 4), par("nh", 4)
        ASL = [6, 7, 8, 9, 6, 7, 8]
        W = lambda *a: [run(s.w_dma(i, VW)) for i in a]
        def A(*a):
            for i in a:
                if i >= 4: k.wait(lg=("ar", i - 4))
                run(s.wd_dma(0, i, ASL[i], VD))
        def Cq(*a):
            for i in a:
                if i >= NH: continue
                if i == 0: k.wait(lg=("ar", 3))
                run(s.wd_dma(1, i, s.CSL[i], VD))
        def ard(i, fs=range(4)):
            k.wait(vm=("D", 0, i))
            for f in fs:
                for hh in range(2): k.e(f"ds_read_b64_tr_b16 {R(WDR+16*(i&3)+4*f+2*hh, 2)}, v{TB+(f&1)} offset:{(ASL[i]-6)*SL + (f>>1)*2048 + hh*1024}", ("ar", i))
        def clr(P):
            if CHP: k.issued.add(("CH", P)); return
            if P: k.e(f"s_add_u32 s{sHS}, s{sHS}, {56*1024}")
            for j in range(4): k.e(f"buffer_store_dwordx4 {R(CLR)}, v1, {S4(SWS)}, s{sHS} offen offset:{1024*j} {SC1}", ("CH", P))
        def kb(i, *tags):
            s.bar(*[("W", w) for w in (2 * i + 1, 2 * i + 2) + ((13,) if i == 5 else ()) if w >= NWC], *tags)
            s.nstamp(32 * i + 16)
        if par("kb0", 0) == 0: kb(0)
        W(*range(NWC, 6))
        if par("kb0", 0) == 1: kb(0)
        s.scal(); s.wd_addr(T, VD, TB, 6 * SL)
        W(6); A(0); clr(0); A(1)
        kb(1)
        W(7, 8); clr(1); A(2); ard(0); ard(1)
        kb(2, ("CH", 0))
        W(9, 10); A(3, 4); ard(2)
        kb(3, ("CH", 1))
        if not CHP: fh_flag()
        W(11, 12); A(5, 6); ard(3)
        k.e(f"""v_bfe_u32 v{VP}, v1, 4, 4
        v_min_u32 v{VP}, 13, v{VP}
        v_bfe_u32 v{PD}, v1, 8, 1
        v_lshl_add_u32 v{VP}, v{PD}, 4, v{VP}
        v_lshlrev_b32 v{VP}, 2, v{VP}""")
        kb(4)
        rl = f"buffer_load_dword v{PD}, v{VP}, {S4(SWS)}, s{sFP} offen {SC1}"
        W(13); k.e(rl); Cq(0, 1)
        kb(5)
        s.stamp(5)
        s.check([PD], rl)
        for i in range(7):
            for l in s.hld(0, i, HB + 16 * i): k.e(l, ("h", i))
        Cq(2, 3)
        s.wa_addr(WA, 6 * SL)
        s.stamp(6)
        acc = lambda t, S: ACC + 16 * (2 * S + t)
        m = 224
        for i in range(7):
            r = HB + 16 * i
            s.checkm([r + 3, r + 7, r + 11, r + 15], "\n".join(s.hld(0, i, r)), TMP)
            for kk in range(2):
                for t in range(2):
                    for S in range(2):
                        k.e(mf32(acc(t, S), WDR + 16 * (i & 3) + 8 * kk + 4 * t, r + 8 * kk + 4 * S, i + kk == 0))
                        s.nstamp(m); m += 1
                    if i < 3: ard(i + 4, [2 * kk + t])
            if i == par("ge", 0):
                s.bar(*[("D", 1, c) for c in range(NH)])
                if par("prio", 1) == 1: k.e("s_setprio 1")
        if par("prio", 1) == 1: k.e("s_setprio 0")
        s.stamp(7)
        ZG = lambda S, i: HB + 8 * i + 4 * S
        FI = lambda i, t: WDR + 8 * i + 4 * t
        k.e(f"s_lshl_b32 s{sT0}, s{sSG}, 16\ns_add_u32 s{sZB}, s{sZB}, s{sT0}")
        def zld(S, i): return f"s_add_u32 s{sT4}, s{sZB}, {i << 18}\nbuffer_load_dwordx4 {R(ZG(S, i))}, v1, {S4(SWS)}, s{sT4} offen offset:{1024*S} {SC1}"
        A_, B_, CI_, CF, X = HB + 64, HB + 66, HB + 68, HB + 69, HB + 72
        k.e(f"""v_bfe_u32 v{A_}, v1, 4, 5
        s_lshl_b32 s{sT0}, s{sDT}, 6
        v_add_u32 v{A_}, s{sT0}, v{A_}
        v_cvt_f32_u32 v{A_}, v{A_}
        v_add_f32 v{A_+1}, {fh(32)}, v{A_}
        v_mul_f32 v{A_}, {fh(1/448)}, v{A_}
        v_mul_f32 v{A_+1}, {fh(1/448)}, v{A_+1}
        v_lshrrev_b32 v{B_}, 9, v1
        s_lshl_b32 s{sT0}, s{sSG}, 3
        v_lshl_add_u32 v{B_}, v{B_}, 2, s{sT0}
        v_cmp_eq_u32 vcc, 0, v{B_}
        v_cvt_f32_u32 v{B_}, v{B_}
        v_mul_f32 v{B_+1}, v{B_}, v{A_+1}
        v_mul_f32 v{B_}, v{B_}, v{A_}
        v_cndmask_b32 v{CF}, 1.0, 0.5, vcc""")
        for t in range(2):
            k.e(f"v_mul_f32 v{CI_}, {fh(32)}, v{A_+t}\nv_cos_f32 v{CI_}, v{CI_}")
            for jp in range(2):
                if 2 * t + jp == par("zl", 2):
                    for S in range(2):
                        for i in range(7): k.e(zld(S, i), ("z", S, i))
                    s.stamp(8)
                Y = lambda e, i: X + 14 * e + 2 * i
                for e in range(2):
                    for i in (2, 3): k.e(f"v_fmamk_f32 v{Y(e,i)}, v{A_+t}, {fh(32*i+2*jp+e)}, v{B_+t}\nv_sin_f32 v{Y(e,i)+1}, v{Y(e,i)}\nv_cos_f32 v{Y(e,i)}, v{Y(e,i)}")
                if jp == 0: k.e(f"v_add_f32 v{CI_}, v{CI_}, v{CI_}")
                for i, a, b in ((1, 2, 3), (4, 3, 2), (0, 1, 2), (5, 4, 3), (6, 5, 4)):
                    for e in range(2):
                        for c in range(2): k.e(f"v_fma_f32 v{Y(e,i)+c}, v{CI_}, v{Y(e,a)+c}, -v{Y(e,b)+c}")
                if jp == 0: k.e(f"v_mul_f32 v{Y(0,0)}, v{Y(0,0)}, v{CF}")
                for i in range(7):
                    for e in range(2): k.e(f"v_cvt_pk_bf16_f32 v{FI(i,t)+2*jp+e}, v{Y(e,i)}, v{Y(e,i)+1}")
        m = 400
        for S in range(2):
            for t in range(2):
                for i in range(7):
                    if t == 0 and i in (0, 4):
                        g = range(i, min(i + 4, 7))
                        s.checkm([ZG(S, z) + 3 for z in g] + ([ZG(S, 6) + 3] if i else []), "\n".join(zld(S, z) for z in g), TMP)
                    k.e(mf32(acc(t, S), FI(i, t), ZG(S, i)))
                    s.nstamp(m); m += 1
                    n = 2 * S + t
                    if n == 0 and i == par("r1", 3): s.bar()
                    if n and i == 1: F.add(s.wr(WA, acc((n - 1) & 1, (n - 1) >> 1), (n - 1) & 1, (n - 1) >> 1))
                    if n == 2 and i == 6: F.drain(); F.t = 0; s.bar()
                    F.run(10)
        F.drain()
        run(s.wr(WA, acc(1, 1), 1, 1))
        s.bar()
        L = k.label("noep")
        k.e(f"s_add_u32 s{sT0}, s2, s{sW}\ns_cmp_lg_u32 s{sT0}, 36\ns_cbranch_scc1 {L}\ns_mov_b32 s{sT0}, {EPOCH}")
        k.cond_begin(); s.flag(sT0); k.cond_end()
        k.e(f"{L}:")
        if s.tson: s.stamp(9 if par("s9", 0) else 1)
        s.finish()

    def t_wg(s):
        k = s.k; T = 2; s.inG = False; s.dbg = [(12, 3), (13, 7), (14, 9), (15, 0)]
        if "not" in OPT: k.e("s_endpgm")
        if "dbg" in OPT: k.e(f"s_mov_b32 s{sTS+14}, 0\ns_mov_b32 s{sTS+18}, 0")
        TAB, ZL = 64 * 1024, 96 * 1024
        O_TOI, O_TW, O_TE = 0, 8192, 24576
        QR, WR, TE, TO, EV, XP, SP = 16, 48, 80, 112, 144, 176, 208
        sK = sFT
        k.e(f"""s_lshr_b32 s{sT0}, s2, 1
        s_lshl_b32 s{sT0}, s{sT0}, 2
        s_and_b32 s{sSG}, s{sW}, 3
        s_add_u32 s{sT0}, s{sT0}, s{sSG}
        s_lshl_b32 s{sT0}, s{sT0}, 1
        s_and_b32 s{sT1}, s2, 1
        s_add_u32 s{sT0}, s{sT0}, s{sT1}
        s_mul_i32 s{sT0}, s{sT0}, 7200
        s_add_u32 s{sT1}, s{sT0}, 4096
        s_lshl_b32 s{sLW}, s{sW}, 13
        s_cmp_ge_u32 s{sW}, 4
        s_waitcnt lgkmcnt(0)
        s_cselect_b32 s{SC}, s8, s6
        s_cselect_b32 s{SC+1}, s9, s7
        s_mov_b32 s{SC+2}, {2048*450}
        s_mov_b32 s{SC+3}, 0x20000""")
        for h in range(2):
            k.e(f"s_add_u32 m0, s{sLW}, {4096*h}")
            for i in range(4):
                if h == 1 and i == 3: k.e("s_mov_b64 exec, 3")
                k.e(f"buffer_load_dwordx4 v1, {S4(SC)}, s{sT0+h} offen offset:{1024*i} lds", "T")
        k.e("s_mov_b64 exec, -1")
        s.load_epoch()
        k.srd(SWS, 22, WS_BYTES)
        k.srd(SWG, 22, 225 * 8192, WT)
        s.stamp(1)
        def pair(step, base, off):
            d = QR
            for i in range(4): k.e(f"v_fmamk_f32 v{d+8+i}, v{step}, {fh(i)}, v{base}\nv_sin_f32 v{d+12+i}, v{d+8+i}\nv_cos_f32 v{d+8+i}, v{d+8+i}")
            for i in range(4): k.e(f"v_cvt_pk_bf16_f32 v{d+i}, v{d+8+i}, v{d+12+i}\nv_cvt_pk_bf16_f32 v{d+4+i}, -v{d+12+i}, v{d+8+i}")
            k.e(f"ds_write_b128 v{T+5}, {R(d)} offset:{off}\nds_write_b128 v{T+5}, {R(d+4)} offset:{off+1024}")
        k.e(f"""v_bfe_u32 v{T}, v1, 4, 5
        v_cvt_f32_u32 v{T}, v{T}
        v_lshrrev_b32 v{T+1}, 9, v1
        v_lshlrev_b32 v{T+1}, 2, v{T+1}
        s_lshl_b32 s{sT0}, s{sSG}, 3
        v_add_u32 v{T+1}, s{sT0}, v{T+1}
        v_cvt_f32_u32 v{T+1}, v{T+1}
        s_lshr_b32 s{sT0}, s{sW}, 2
        v_cvt_f32_u32 v{T+2}, s{sT0}
        v_mul_f32 v{T+3}, {fh(1/32)}, v{T}
        v_fma_f32 v{T+4}, 0.5, v{T+2}, v{T+1}
        v_mul_f32 v{T+4}, v{T+4}, v{T+3}
        s_lshl_b32 s{sT0}, s{sW}, 11
        s_add_u32 s{sT0}, s{sT0}, {TAB}
        v_add_u32 v{T+5}, s{sT0}, v1""")
        pair(T + 3, T + 4, O_TE)
        NINV = 2.0 / (2048 * 448)
        k.e(f"""v_fma_f32 v{T+6}, 0.5, v{T+2}, v{T}
        v_mul_f32 v{T+6}, {fh(1/1024)}, v{T+6}
        v_mul_f32 v{T+7}, v{T+6}, v{T+1}""")
        d = WR
        for i in range(4): k.e(f"v_fmamk_f32 v{d+i}, v{T+6}, {fh(i)}, v{T+7}\nv_sin_f32 v{d+4+i}, v{d+i}\nv_cos_f32 v{d+i}, v{d+i}")
        for i in range(8): k.e(f"v_mul_f32 v{d+i}, {fh(NINV)}, v{d+i}")
        k.e(f"ds_write_b128 v{T+5}, {R(d)} offset:{O_TW}\nds_write_b128 v{T+5}, {R(d+4)} offset:{O_TW+1024}")
        k.e(f"s_cmp_ge_u32 s{sW}, 4\ns_cbranch_scc1 T_A")
        k.cond_begin()
        k.e(f"v_add_f32 v{T+3}, {fh(1/64)}, v{T+3}\nv_mul_f32 v{T+4}, v{T+1}, v{T+3}")
        pair(T + 3, T + 4, O_TOI)
        k.cond_end()
        k.e("T_A:")
        k.e(f"""s_lshl_b32 s{sLD}, s2, 16
        s_add_u32 s{sLD}, s{sLD}, s{sLW}
        s_add_u32 s{sU1}, s{sLD}, 4096""")
        k.e(f"""v_bfe_u32 v{T+3}, v1, 4, 4
        v_mul_u32_u24 v{T+4}, 450, v{T+3}
        v_lshrrev_b32 v{T+5}, 4, v0
        v_lshl_add_u32 v{T+4}, v{T+5}, 1, v{T+4}
        v_lshlrev_b32 v{T+5}, 13, v{T+5}
        v_lshl_add_u32 v{T+5}, v{T+3}, 4, v{T+5}
        s_lshl_b32 s{sT0}, s2, 8
        s_waitcnt lgkmcnt(0)""")
        s.get_tag()
        k.wait(vm="T")
        k.e("s_barrier")
        s.stamp(2)
        GR = 16
        def rd(it):
            for i in range(4):
                for m in range(2): k.e(f"ds_read_u16 v{GR+8*it+4*m+i}, v{T+4} offset:{(4*m+i)*8192 + 64*it}")
        rd(0)
        for it in range(8):
            if it < 7: rd(it + 1)
            r = GR + 8 * it
            for i in range(4): k.e(f"v_lshl_or_b32 v{r+i}, v{r+4+i}, 16, v{r+i}")
            k.e(f"s_add_u32 s{sT1}, s{sT0}, {it*32*8192}\nbuffer_store_dwordx4 {R(r)}, v{T+5}, {S4(SWG)}, s{sT1} offen {SC1}", "WT")
        s.stamp(3)
        k.e("s_barrier")
        k.e(f"v_add_u32 v{T+9}, {TAB}, v1")
        for i in range(8): k.e(f"ds_read_b128 {R(TE+4*i)}, v{T+9} offset:{O_TE+1024*i}\nds_read_b128 {R(TO+4*i)}, v{T+9} offset:{O_TE+8192+1024*i}")
        k.e(f"""s_lshl_b32 s{sA}, s{sW}, 5
        s_add_u32 s{sA}, s{sA}, s2
        s_lshl_b32 s{sA}, s{sA}, 2
        s_add_u32 s{sA}, s{sA}, {FW}
        s_cmp_lt_u32 s2, 29
        s_cbranch_scc1 T_M""")
        st = k.snap()
        k.wait(vm="WT"); s.flag(sA); k.e("s_branch T_FIN")
        k.restore(st)
        k.e("T_M:")
        k.e(f"""s_lshl_b32 s{sK}, s2, 3
        s_add_u32 s{sK}, s{sK}, s{sW}""")
        ZW, ZR = T, T + 4
        k.e(f"""v_bfe_u32 v{T+8}, v1, 6, 3
        v_lshlrev_b32 v{ZW}, 10, v{T+8}
        v_bfe_u32 v{T+8}, v1, 4, 2
        v_lshl_add_u32 v{ZW}, v{T+8}, 7, v{ZW}
        v_lshrrev_b32 v{T+8}, 5, v1
        v_and_b32 v{T+8}, 16, v{T+8}
        v_and_b32 v{T+10}, 0x70, v1
        v_xor_b32 v{T+8}, v{T+8}, v{T+10}
        s_add_u32 s{sT0}, s{sLW}, {ZL}
        v_add3_u32 v{ZW}, v{ZW}, v{T+8}, s{sT0}
        v_xor_b32 v{ZW+1}, 32, v{ZW}
        v_xor_b32 v{ZW+2}, 64, v{ZW}
        v_xor_b32 v{ZW+3}, 96, v{ZW}
        v_bfe_u32 v{ZR}, v1, 4, 5
        v_lshlrev_b32 v{ZR}, 2, v{ZR}
        v_lshrrev_b32 v{T+8}, 9, v1
        v_lshl_add_u32 v{ZR}, v{T+8}, 15, v{ZR}
        s_and_b32 s{sT0}, s{sW}, 1
        s_lshl_b32 s{sT0}, s{sT0}, 6
        v_xor_b32 v{ZR}, s{sT0}, v{ZR}
        s_lshl_b32 s{sT0}, s{sW}, 10
        s_add_u32 s{sT0}, s{sT0}, {ZL}
        v_add_u32 v{ZR}, s{sT0}, v{ZR}
        v_xor_b32 v{ZR+1}, {128+16}, v{ZR}
        v_xor_b32 v{ZR+2}, {256+32}, v{ZR}
        v_xor_b32 v{ZR+3}, {384+48}, v{ZR}
        """)
        PF, PD_, PW, QA, QM, QW = T + 8, T + 10, T + 11, 15, 0, 240
        sWD = sHF
        k.e(f"""s_lshr_b32 s{sT0}, s{sK}, 2
        s_and_b32 s{sT1}, s{sT0}, 7
        s_lshl_b32 s{sT1}, s{sT1}, 7
        s_add_u32 s{sU0}, s{sT1}, {FW}
        s_lshr_b32 s{sT0}, s2, 1
        s_cmp_eq_u32 s2, 28
        s_cselect_b32 s{sT0}, 0, s{sT0}
        s_lshl_b32 s{sT0}, s{sT0}, 8
        s_lshl_b32 s{sT1}, s{sW}, 5
        s_add_u32 s{sT0}, s{sT0}, s{sT1}
        s_add_u32 s{sT0}, s{sT0}, {FQ}
        v_bfe_u32 v{PF}, v1, 4, 3
        v_lshlrev_b32 v{PF}, 2, v{PF}""")
        rl = f"buffer_load_dword v{PD_}, v{PF}, {S4(SWS)}, s{sT0} offen {SC1}"
        k.e(f"""v_bfe_u32 v{PW}, v1, 4, 5
        v_lshlrev_b32 v{PW}, 2, v{PW}
        v_bfe_u32 v{QM}, v1, 7, 1
        v_bfe_u32 v{QA}, v1, 8, 1
        v_lshl_add_u32 v{QM}, v{QM}, 1, v{QA}
        v_bfe_u32 v{QA}, v1, 4, 1
        v_lshl_add_u32 v{QM}, v{QM}, 1, v{QA}
        v_xor_b32 v{QA}, s{sW}, v{QM}
        v_lshlrev_b32 v{QA}, 5, v{QA}
        v_lshl_add_u32 v{QA}, v{QM}, 8, v{QA}
        v_bfe_u32 v{QM}, v1, 5, 2
        v_lshl_add_u32 v{QA}, v{QM}, 3, v{QA}
        v_lshrrev_b32 v{QM}, 9, v1
        v_lshl_add_u32 v{QA}, v{QM}, 13, v{QA}
        v_lshrrev_b32 v{QW}, 3, v1
        v_and_b32 v{QW}, 0x60, v{QW}
        v_xor_b32 v{QW}, v{QW}, v1
        v_add_u32 v{QW}, s{sLW}, v{QW}
        v_xor_b32 v{QW+1}, 128, v{QW}
        v_and_b32 v{QM}, 0xe0, v1
        s_cmp_eq_u32 s2, 28
        s_cselect_b32 s{sT1}, 0, 0xe0
        v_cmp_ge_u32 s[{sM}:{sM+1}], s{sT1}, v{QM}
        s_lshl_b32 s{sT2}, s{sK}, 13
        s_add_u32 s{sT3}, s{sT2}, 4096
        s_cmp_gt_u32 s{sK}, 224
        s_cselect_b32 s{sWD}, 1, 0""")
        k.wait(vm="WT"); s.flag(sA)
        s.stamp(5)
        k.e(rl)
        s.check([PD_], rl, sleep=2)
        s.stamp(6)
        rw = f"buffer_load_dword v{PD_}, v{PW}, {S4(SWS)}, s{sU0} offen {SC1}"
        wl = "\n".join(f"buffer_load_dwordx4 {R(WR+4*i)}, v1, {S4(SWG)}, s{sT3 if i >= 4 else sT2} offen offset:{1024*(i&3)} {SC1}" for i in range(8))
        QL = EV
        k.e("s_waitcnt vmcnt(0) lgkmcnt(0)\nT_P:")
        k.e(rw)
        for i in range(8): k.e(f"buffer_load_dwordx4 {R(QL+4*i)}, v1, {S4(SWS)}, s{sU1 if i >= 4 else sLD} offen offset:{(QT + 1024*(i&3))} {SC1}")
        k.e(f"v_cmp_ne_u32 vcc, s{sTAG}, v{PD_}\ns_cmp_lg_u32 s{sWD}, 0\ns_cbranch_scc1 T_P1\ns_cbranch_vccnz T_P1\ns_mov_b32 s{sWD}, 1")
        k.cond_begin(); k.e(wl, "wl"); k.cond_end()
        k.raw("    s_waitcnt vmcnt(8)\n    s_branch T_P2\nT_P1:\n    s_waitcnt vmcnt(0)\nT_P2:")
        k.vm = [e for e in k.vm if e["tag"] == "wl"]
        k.e(f"v_max3_u32 v{QM}, v{QL+3}, v{QL+7}, v{QL+11}\nv_max3_u32 v{QM}, v{QM}, v{QL+15}, v{QL+19}\nv_max3_u32 v{QM}, v{QM}, v{QL+23}, v{QL+27}\nv_max_u32 v{QM}, v{QM}, v{QL+31}")
        k.e(f"""v_cmp_eq_u32 vcc, -1, v{QM}
        s_add_u32 s{sCNT}, s{sCNT}, 1
        s_cmp_ge_u32 s{sCNT}, 0x4000
        s_cbranch_scc1 T_P3
        s_and_b64 vcc, vcc, s[{sM}:{sM+1}]
        s_cbranch_scc1 T_P
        T_P3:""")
        for i in range(8): k.e(f"ds_write_b128 v{QW+(i&1)}, {R(QL+4*i)} offset:{1024*i}")
        k.e(f"s_waitcnt lgkmcnt(0)\ns_barrier\ns_cmp_le_u32 s{sK}, 224\ns_cbranch_scc1 T_I")
        st = k.snap()
        for i in range(4): k.e(f"v_mov_b32 v{QR+i}, 0")
        for p in range(2):
            for q in range(4): k.e(f"ds_write_b128 v{ZW+q}, {R(QR)} offset:{512*p}")
        k.e("s_branch T_X")
        k.restore(st)
        k.e("T_I:")
        s.stamp(7)
        def qg(pp, j):
            for h in range(2): k.e(f"ds_read_b64_tr_b16 {R(QR+16*pp+4*j+2*h,2)}, v{QA} offset:{16384*j + 4096*pp + 2048*h}")
        for j in range(4): qg(0, j)
        for j in range(3): qg(1, j)
        for j in range(4):
            for c in range(2): k.e(mf32(EV + 16 * c, TE + 8 * j + 4 * c, QR + 4 * j, j == 0))
            if j == 0: qg(1, 3)
        k.e(f"s_cmp_lg_u32 s{sWD}, 0\ns_cbranch_scc1 T_W")
        k.cond_begin()
        c0 = (k._cs, k._cv)
        k.e(rw); s.check([PD_], rw); k.e(wl, "wl")
        k._cs, k._cv = c0
        k.cond_end()
        k.e("T_W:")
        for j in range(4):
            for c in range(2): k.e(mf32(XP + 16 * c, TO + 8 * j + 4 * c, QR + 16 + 4 * j, EV + 16 * c if j == 0 else None))
        for i in range(8): k.e(f"ds_read_b128 {R(TO+4*i)}, v{T+9} offset:{O_TOI+1024*i}")
        for i in range(32): k.e(f"v_lshlrev_b32 v{SP+i}, 16, v{WR+i}\nv_and_b32 v{WR+i}, 0xffff0000, v{WR+i}")
        A_, B_ = 240, 244
        for e0 in range(0, 16, 4):
            for L in (lambda e, a, b: f"v_fma_f32 v{EV+e}, 2.0, v{EV+e}, -v{XP+e}",
                      lambda e, a, b: f"v_fma_f32 v{EV+16+e}, 2.0, v{EV+16+e}, -v{XP+16+e}",
                      lambda e, a, b: f"v_mul_f32 v{a}, v{XP+e}, v{SP+e}",
                      lambda e, a, b: f"v_mul_f32 v{b}, v{XP+e}, v{WR+e}",
                      lambda e, a, b: f"v_fma_f32 v{a}, -v{XP+16+e}, v{WR+e}, v{a}",
                      lambda e, a, b: f"v_fmac_f32 v{b}, v{XP+16+e}, v{SP+e}",
                      lambda e, a, b: f"v_fma_f32 v{XP+e}, v{EV+e}, v{SP+16+e}, v{a}",
                      lambda e, a, b: f"v_fma_f32 v{XP+16+e}, v{EV+e}, v{WR+16+e}, v{b}",
                      lambda e, a, b: f"v_fma_f32 v{XP+e}, -v{EV+16+e}, v{WR+16+e}, v{XP+e}",
                      lambda e, a, b: f"v_fmac_f32 v{XP+16+e}, v{EV+16+e}, v{SP+16+e}",
                      lambda e, a, b: f"v_fma_f32 v{a}, 2.0, v{a}, -v{XP+e}",
                      lambda e, a, b: f"v_fma_f32 v{b}, 2.0, v{b}, -v{XP+16+e}",
                      lambda e, a, b: f"v_cvt_pk_bf16_f32 v{QR+e}, v{XP+e}, -v{XP+16+e}",
                      lambda e, a, b: f"v_cvt_pk_bf16_f32 v{QR+16+e}, v{a}, -v{b}"):
                for i in range(4): k.e(L(e0 + i, A_ + i, B_ + i))
        for p in range(2):
            for i in range(8): k.e(f"ds_read_b128 {R((WR, SP)[p]+4*i)}, v{T+9} offset:{O_TW + 8192*p + 1024*i}")
        for p in range(2):
            for q in range(4):
                for c in range(2): k.e(mf32((EV, XP)[p] + 16 * c, QR + 16 * p + 4 * q, (TE, TO)[p] + 8 * q + 4 * c, q == 0))
        for p in range(2):
            Y = (EV, XP)[p]; TWr = (WR, SP)[p]
            for q in range(4):
                for L in (lambda e, a, b, c_, s_: f"v_mul_f32 v{a}, v{Y+e}, v{c_}",
                          lambda e, a, b, c_, s_: f"v_mul_f32 v{b}, v{Y+16+e}, v{c_}",
                          lambda e, a, b, c_, s_: f"v_fmac_f32 v{a}, v{Y+16+e}, v{s_}",
                          lambda e, a, b, c_, s_: f"v_fma_f32 v{b}, -v{Y+e}, v{s_}, v{b}",
                          lambda e, a, b, c_, s_: f"v_cvt_pk_bf16_f32 v{QR+16*p+e}, v{a}, v{b}"):
                    for i in range(4): k.e(L(4 * q + i, A_ + i, B_ + i, TWr + 8 * q + i, TWr + 8 * q + 4 + i))
            for q in range(4):
                for c in range(2): k.e(mf32(Y + 16 * c, TE + 8 * q + 4 * c, QR + 16 * p + 4 * q, q == 0))
        for p in range(2):
            Y = (EV, XP)[p]
            for q in range(4):
                for i in range(4): k.e(f"v_cvt_pk_bf16_f32 v{Y+4*q+i}, v{Y+4*q+i}, v{Y+16+4*q+i}")
                k.e(f"ds_write_b128 v{ZW+q}, {R(Y+4*q)} offset:{512*p}")
        s.stamp(8)
        k.e("T_X:\ns_waitcnt lgkmcnt(0)\ns_barrier")
        for tt in range(8):
            for h in range(2): k.e(f"ds_read2st64_b32 {R(QR+4*tt+2*h,2)}, v{ZR+(tt&3)} offset0:{64*h + 2*(tt>>2)} offset1:{64*h + 32 + 2*(tt>>2)}")
        k.e(f"s_add_u32 s{sLD}, s{sLD}, {ZT}\ns_add_u32 s{sU1}, s{sU1}, {ZT}")
        for tt in range(8): k.e(f"buffer_store_dwordx4 {R(QR+4*tt)}, v1, {S4(SWS)}, s{sU1 if tt >= 4 else sLD} offen offset:{1024*(tt&3)} {SC1}")
        s.stamp(9)
        k.e("T_FIN:")
        s.ts_store()
        k.e("s_endpgm")

    def build(s):
        k = s.k
        k.raw(f".globl {NAME}_kernel\n.p2align 8\n.type {NAME}_kernel,@function\n{NAME}_kernel:")
        s.stamp(0)
        k.e(f"""s_load_dwordx16 s[4:19], s[0:1], 0
        s_load_dwordx4 s[20:23], s[0:1], 64
        v_readfirstlane_b32 s{sW}, v0
        v_and_b32 v1, 63, v0
        s_cmp_ge_u32 s2, 256
        s_cbranch_scc1 K_END
        v_lshlrev_b32 v1, 4, v1
        s_lshr_b32 s{sW}, s{sW}, 6
        s_and_b32 s{sW}, s{sW}, 7
        s_sub_u32 s{sT0}, s2, 32
        s_cbranch_scc0 G_WG
        s_getpc_b64 s[{sT2}:{sT3}]
        PCREF:
        s_lshr_b32 s{sT0}, s2, 3
        s_lshl_b32 s{sT0}, s{sT0}, 7
        v_lshlrev_b32 v2, 9, v0
        v_add_u32 v2, s{sT0}, v2
        v_cmp_gt_u32 vcc, CODE_END-PCREF-4, v2
        s_cbranch_vccz T_WG
        v_min_u32 v2, CODE_END-PCREF-4, v2
        global_load_dword v255, v2, s[{sT2}:{sT3}]
        s_branch T_WG
        G_WG:""")
        stT = k.snap()
        k.vm = []
        k.e(f"""s_lshr_b32 s{sT0}, s{sT0}, 3
        s_and_b32 s{sRT}, s2, 6
        s_lshr_b32 s{sT2}, s{sRT}, 1
        s_lshl_b32 s{sRT}, s{sRT}, 1
        s_and_b32 s{sT1}, s{sT0}, 3
        s_add_u32 s{sRT}, s{sRT}, s{sT1}
        s_lshr_b32 s{sDT}, s{sT0}, 2
        s_lshl_b32 s{sT1}, s{sT1}, 1
        s_add_u32 s{sT1}, s{sT1}, s{sT2}
        s_add_u32 s{sT1}, s{sT1}, s{sDT}
        s_mul_i32 s{sT2}, s{sT1}, 37
        s_lshr_b32 s{sT2}, s{sT2}, 8
        s_mul_i32 s{sT2}, s{sT2}, 7
        s_sub_u32 s{sT1}, s{sT1}, s{sT2}
        s_lshl_b32 s{sT1}, s{sT1}, {0 if 'norot' in OPT else 2}
        s_and_b32 s{sT1}, s{sT1}, {0 if 'norot' in OPT else 31}
        s_mov_b32 s{sT2}, 0x06543210
        s_mov_b32 s{sT3}, 0x00654321
        s_lshr_b64 s[{sT2}:{sT3}], s[{sT2}:{sT3}], s{sT1}
        s_mov_b32 s{sPK}, s{sT2}
        s_and_b32 s{sHF}, s2, 1
        s_mul_i32 s{sFT}, s{sHF}, 7
        s_add_u32 s{sFT}, s{sFT}, s{sDT}
        s_and_b32 s{sSG}, s{sW}, 3
        s_lshl_b32 s{sTL}, s{sRT}, 2
        s_add_u32 s{sTL}, s{sTL}, s{sSG}
        s_and_b32 s{sS2}, s{sTL}, 0x38
        s_and_b32 s{sT1}, s{sRT}, 1
        s_add_u32 s{sS2}, s{sS2}, s{sT1}
        s_lshl_b32 s{sT1}, s{sSG}, 1
        s_add_u32 s{sS2}, s{sS2}, s{sT1}""")
        k.e(f"s_lshl_b32 s{sLW}, s{sSG}, 11\ns_cmp_ge_u32 s{sW}, 4\ns_cbranch_scc1 G_R1")
        st = k.snap()
        s.c_role()
        k.restore(st); k.e("G_R1:")
        s.h_role()
        k.restore(stT); k.vm = [dict(e, opt=True) for e in k.vm]; k.e("T_WG:")
        s.t_wg()
        k.e("K_END:\ns_endpgm\nCODE_END:")
        k.lines += s.cold
        ref = open(f"cdna_kernels/{NAME}.s.ref").read().split("\n")
        head = [l for l in ref if l.startswith(";") and "@launch" not in l]
        out = head + [f"; @launch grid=(256,1,1) block=(512,1,1) lds={LDS_BYTES}", '.amdgcn_target "amdgcn-amd-amdhsa--gfx950"', ".text"] + k.lines
        out += ['.section .rodata,"a"', ".p2align 6", f""".amdhsa_kernel {NAME}_kernel
  .amdhsa_next_free_vgpr 256
  .amdhsa_next_free_sgpr 102
  .amdhsa_accum_offset 256
  .amdhsa_group_segment_fixed_size 0
  .amdhsa_kernarg_size 80
  .amdhsa_user_sgpr_count 2
  .amdhsa_user_sgpr_kernarg_segment_ptr 1
  .amdhsa_system_sgpr_workgroup_id_x 1
  .amdhsa_float_denorm_mode_32 3
  .amdhsa_float_denorm_mode_16_64 3
.end_amdhsa_kernel"""]
        return "\n".join(out) + "\n"

if __name__ == "__main__":
    if len(sys.argv) == 1:
        open("t/v5.s", "w").write(G(False).build())
        open("t/v5ts.s", "w").write(G(True).build())
    for o in sys.argv[1:]:
        OPT.clear(); PAR.clear()
        for x in o.split("+"):
            if "=" in x: a, b = x.split("="); PAR[a] = float(b) if "." in b else int(b)
            else: OPT.add(x)
        open(f"t/y_{o}.s", "w").write(G(True).build())
```

```python
import struct, sys
import asm2
from asm2 import K, Fill
asm2.PADS = False
NAME = "parallel_sum__spectral_gfnet__glu_gated_bilinear__prompt"
def fh(x): return "0x%08x" % struct.unpack("<I", struct.pack("<f", x))[0]
MB = 1 << 20
QT, WT, CSO, FL, HO, ZT = 0, 2 * MB, 4 * MB, 4 * MB + MB // 2, 5 * MB, 12 * MB
WS_BYTES = ZT + 29 * 65536
FQ, FW, FH, EPOCH = CSO, CSO + 128 * 1024, CSO + 256 * 1024, CSO + 192 * 1024
TS_OFF = 200 * MB
LDS_BYTES = 160 * 1024
SL = 16384
F_LDS, MISC = 8 * SL, 159744
FCS_L, ST_L = MISC, MISC + 2048
SX, SWG, SWU, SWD, SWS, SOUT, SC = 24, 28, 32, 36, 40, 44, 48
sW, sSG, sRT, sFT, sHF, sDT, sPK, sTAG, sS2, sTL, sA, sCNT, sLW, sLD, sT0, sT1, sT2, sT3, sT4, sT5, sU0, sU1 = range(52, 74)
sM = 74
sPC, sQB, sFP, sO0, sO1, sZB, sXM, sHS = 6, 3, 8, 9, 10, 11, 20, 51
sTS = 82
OPT = {"sent", "r8"}
PAR = {}
def par(n, d): return PAR.get(n, d)
VTAG = 14
SC1 = "sc1"
class _L:
    def __format__(s, f): return "" if "plain" in OPT else "sc1"
LSC = _L()

def R(b, n=4): return f"v[{b}:{b+n-1}]"
def S4(b): return f"s[{b}:{b+3}]"
def mf32(d, A, B, c=None): return f"v_mfma_f32_32x32x16_bf16 {R(d,16)}, {R(A)}, {R(B)}, {'0' if c is True else R(d if c in (None, False) else c,16)}"
def mf4(d, A, B, c0=False): return f"v_mfma_f32_4x4x4_16b_bf16 {R(d)}, {R(A,2)}, {R(B,2)}, {'0' if c0 else R(d)}"
def rot(dst, i): return f"s_bfe_u32 s{dst}, s{sPK}, {(4 << 16) | (4 * i):#x}"
at = lambda n: ("at", n)

class G:
    def __init__(s, tson):
        s.k = K(); s.tson = tson; s.cold = []; s.k.drop = {o[2:] for o in OPT if o.startswith('x_')}; s.inG = True; s.k.lognop = "nops" in OPT
    def nstamp(s, n):
        if "ta" in PAR:
            i, r = divmod(n - PAR["ta"], PAR.get("tb", 4))
            if r == 0 and 0 <= i < 9: s.stamp(int(i) + 1, True)
    def stamp(s, i, force=False):
        if "ta" in PAR and s.inG and i and not force: return
        if s.tson: s.k.e(f"{'s_memtime' if 'cyc' in OPT else 's_memrealtime'} s[{sTS+2*i}:{sTS+2*i+1}]")
    def ts_store(s):
        if not s.tson: return
        k = s.k
        k.e("s_waitcnt vmcnt(0) lgkmcnt(0)")
        if "dbg" in OPT:
            k.e(f"s_load_dwordx2 s[{SC}:{SC+1}], s[0:1], 64\ns_mov_b32 s{SC+2}, 256\ns_mov_b32 s{SC+3}, 0x20000\ns_mov_b64 exec, 1\ns_not_b32 s{sT0}, s{sTS}\nv_mov_b32 v8, s{sT0}\ns_waitcnt lgkmcnt(0)")
            k.e(f"buffer_atomic_umax v8, off, {S4(SC)}, 0")
            for slot, i in s.dbg:
                k.e(f"v_mov_b32 v9, s{sTS+2*i}\nbuffer_atomic_umax v9, off, {S4(SC)}, 0 offset:{4*slot}")
            return
        k.srd(SC, 22, MB, TS_OFF)
        for i in range(10): k.e(f"v_mov_b32 v{8+i}, s{sTS+2*i}")
        k.e(f"v_mov_b32 v18, s{sCNT}")
        k.e(f"s_lshl_b32 s{sT0}, s2, 3\ns_add_u32 s{sT0}, s{sT0}, s{sW}\ns_lshl_b32 s{sT0}, s{sT0}, 6\ns_mov_b64 exec, 1")
        for i in range(3): k.e(f"buffer_store_dwordx4 {R(8+4*i)}, off, {S4(SC)}, s{sT0} offset:{16*i}")
    def seq(s, text, tag=None):
        for l in text.split("\n"):
            if l.strip(): yield s.k.e(l, tag)
    def flag(s, soff, off=0, full=True, reg=12):
        if reg == 14: return s.k.e(f"v_mov_b32 v250, v{VTAG}\ns_mov_b64 exec, 255\nbuffer_store_dwordx4 v[248:251], v1, {S4(SWS)}, s{soff} offen {SC1}\ns_mov_b64 exec, -1", "flag")
        if full and par("fl", 8): return s.k.e(f"s_mov_b64 exec, {(1 << par('fl', 8)) - 1}\nbuffer_store_dwordx4 v[12:15], v1, {S4(SWS)}, s{soff} offen {SC1}\ns_mov_b64 exec, -1", "flag")
        if full: off = 8
        return s.k.e(f"s_mov_b64 exec, 1\nbuffer_store_dword v{VTAG}, off, {S4(SWS)}, s{soff} offset:{off} {SC1}\ns_mov_b64 exec, -1", "flag")
    def vp_addr(s, n, VP, PD):
        k = s.k
        k.e(f"v_bfe_u32 v{VP}, v1, 4, 2")
        if n == 0: k.e(f"s_lshr_b32 s{sT0}, s{sLD}, 1\nv_add_lshl_u32 v{VP}, v{VP}, s{sT0}, 7")
        else:
            if n == 1: k.e(f"v_min_u32 v{VP}, 2, v{VP}\ns_mov_b32 s{sT0}, s{sPC}")
            else: k.e(f"s_lshr_b64 s[{sT0}:{sT1}], s[{sPC}:{sPC+1}], 24")
            if "sent" in OPT: k.e(f"v_lshlrev_b32 v{VP}, 3, v{VP}\nv_bfe_u32 v{VP}, s{sT0}, v{VP}, 8\nv_lshrrev_b32 v{VP}, 1, v{VP}\nv_lshlrev_b32 v{VP}, 7, v{VP}")
            else: k.e(f"""v_lshlrev_b32 v{VP}, 3, v{VP}
            v_bfe_u32 v{VP}, s{sT0}, v{VP}, 8
            v_and_b32 v{PD}, 1, v{VP}
            v_lshrrev_b32 v{VP}, 1, v{VP}
            v_lshl_add_u32 v{VP}, v{PD}, 10, v{VP}
            v_add_lshl_u32 v{VP}, v{VP}, 0x400, 7""".replace(f"v_add_lshl_u32 v{VP}, v{VP}, 0x400, 7", f"v_add_u32 v{VP}, 0x400, v{VP}\nv_lshlrev_b32 v{VP}, 7, v{VP}"))
        k.e(f"v_bfe_u32 v{PD}, v1, 6, 1\nv_lshl_add_u32 v{VP}, v{PD}, 11, v{VP}")
        return f"buffer_load_dword v{PD}, v{VP}, {S4(SWS)}, s{sFP} offen offset:8 {SC1}"
    def cmp(s, regs, sent):
        k = s.k
        for i, r in enumerate(regs):
            d = "vcc" if len(regs) == 1 else f"s[{sM+2*i}:{sM+2*i+1}]"
            k.e(f"v_cmp_eq_u32 {d}, -1, v{r}" if sent else f"v_cmp_ne_u32 {d}, s{sTAG}, v{r}")
        return 4 * len(regs)
    def fin(s, n, lab):
        k = s.k
        for i in range(1, n): k.e(f"s_or_b64 s[{sM}:{sM+1}], s[{sM}:{sM+1}], s[{sM+2*i}:{sM+2*i+1}]")
        k.e(f"s_cbranch_vccnz {lab}" if n == 1 else f"s_cbranch_scc1 {lab}")
    def check(s, regs, reload, sent=False, pre=True, sleep=1):
        k = s.k
        ok, lp = k.label("ok"), k.label("spin")
        if pre: s.cmp(regs, sent)
        if "nochk" in OPT and s.inG:
            s.fin(len(regs), ok); k.e(f"{ok}:")
            return 2 + 6 * len(regs)
        s.fin(len(regs), lp)
        k.cond_begin()
        hot, k.lines = k.lines, s.cold
        k.e(f"{lp}:\ns_sleep {sleep}\n{reload}\ns_waitcnt vmcnt(0)\ns_add_u32 s{sCNT}, s{sCNT}, 1\ns_cmp_ge_u32 s{sCNT}, 0x4000\ns_cbranch_scc1 {ok}")
        s.cmp(regs, sent); s.fin(len(regs), lp)
        k.e(f"s_branch {ok}")
        k.lines = hot
        k.cond_end()
        k.e(f"{ok}:")
        return 2 + 6 * len(regs)
    def get_tag(s):
        s.k.e(f"s_or_b32 s{sTAG}, s{sTAG}, 0x40004000\ns_add_u32 s{sTAG}, s{sTAG}, 1\ns_and_b32 s{sTAG}, s{sTAG}, 0xbfffbfff\nv_mov_b32 v{VTAG}, s{sTAG}\ns_mov_b32 s{sCNT}, 0")
    def load_epoch(s, a=sT4):
        s.k.e(f"s_add_u32 s{a}, s22, {EPOCH:#x}\ns_addc_u32 s{a+1}, s23, 0\ns_load_dword s{sTAG}, s[{a}:{a+1}], 0")
    def split_hilo(s, dst, src, t):
        return f"""v_cvt_pk_bf16_f32 v{t}, v{src}, v{src}
        v_and_b32 v{t}, 0xffff0000, v{t}
        v_sub_f32 v{t}, v{src}, v{t}
        v_cvt_pk_bf16_f32 v{dst}, v{src}, v{t}"""

    def checkm(s, regs, reload, t):
        mx = f"v_max3_u32 v{t}, v{regs[0]}, v{regs[1]}, v{regs[2]}\nv_max_u32 v{t}, v{t}, v{regs[3]}" if len(regs) == 4 else f"v_max_u32 v{t}, v{regs[0]}, v{regs[1]}"
        return s.k.e(mx) + s.check([t], reload + "\n" + mx, sent=True)
    def x_dma(s, b, VX):
        k = s.k
        k.e(f"s_lshl1_add_u32 m0, s{sLW}, {SL*(b+1)}\n{rot(sT0, b)}\ns_lshl_b32 s{sT0}, s{sT0}, 7\ns_add_u32 s{sU0}, s{sT0}, s{sU1}")
        for i in range(4): yield k.e(f"buffer_load_dwordx4 v{VX+i}, {S4(SX)}, s{sU0} offen offset:{i*1024} lds", ("X", b))
    def w_dma(s, i, VW):
        k = s.k; P, ii = divmod(i, 7); slot = i % 6
        k.e(f"{rot(sT4, ii)}\ns_mul_i32 s{sT4}, s{sT4}, {64*3584}\ns_add_u32 s{sT5}, s{sT4}, {1792*P + 8*3584 - 1024}")
        if P: k.e(f"s_add_u32 s{sT4}, s{sT4}, 1792")
        for u in range(2):
            k.e(f"s_add_u32 m0, s{sLW}, {slot*SL + u*8192}")
            for h in range(2): yield k.e(f"buffer_load_dwordx4 v{VW+u}, {S4(SWU if u else SWG)}, s{sT4+h} offen offset:{1024*h} lds", ("W", i))
    def w_addr(s, T, VW):
        s.k.e(f"""v_lshrrev_b32 v{T}, 7, v1
        v_mul_u32_u24 v{VW}, 3584, v{T}
        v_and_b32 v{T}, 2, v{T}
        v_bfe_u32 v{T+1}, v1, 5, 2
        v_xor_b32 v{T}, v{T}, v{T+1}
        v_lshl_add_u32 v{VW}, v{T}, 5, v{VW}
        v_and_b32 v{T}, 16, v1
        s_mul_i32 s{sT0}, s{sSG}, {16*3584}
        s_lshl_b32 s{sT1}, s{sFT}, 7
        s_add_u32 s{sT0}, s{sT0}, s{sT1}
        v_add3_u32 v{VW}, v{VW}, v{T}, s{sT0}
        v_xor_b32 v{VW+1}, 32, v{VW}""")
        s.k.srd(SWG, 12, 448 * 3584); s.k.srd(SWU, 14, 448 * 3584)
    def unit(s, d, P, i):
        if P: return f"s_bfe_u32 s{d}, s{sPC + (i >> 2)}, {(8 << 16) | (8 * (i & 3)):#x}"
        return f"{rot(d, i)}\ns_add_u32 s{d}, s{d}, s{sLD}"
    def wd_dma(s, P, i, slot, VD):
        k = s.k
        k.e(f"{s.unit(sT4, P, i)}\ns_mul_i32 s{sT4}, s{sT4}, {32*896}\ns_lshl1_add_u32 m0, s{sLW}, {slot*SL}")
        for e in range(4):
            d = 896 * 896 * P if e == 0 else 8 * 896 - 1024
            if d: k.e(f"s_add_u32 s{sT4}, s{sT4}, {d}")
            yield k.e(f"buffer_load_dwordx4 v{VD}, {S4(SWD)}, s{sT4} offen offset:{1024*e} lds", ("D", P, i))
    def wd_addr(s, T, VD, TB, base):
        s.k.e(f"""v_bfe_u32 v{T}, v1, 8, 1
        v_bfe_u32 v{T+1}, v1, 6, 2
        v_lshrrev_b32 v{T+2}, 9, v1
        v_lshl_add_u32 v{TB}, v{T+2}, 2, v{T+1}
        v_lshlrev_b32 v{TB}, 7, v{TB}
        v_bfe_u32 v{T+3}, v1, 7, 1
        v_lshl_add_u32 v{TB}, v{T+3}, 6, v{TB}
        v_lshl_add_u32 v{TB}, v{T}, 5, v{TB}
        v_bfe_u32 v{T+3}, v1, 4, 2
        v_lshl_add_u32 v{TB}, v{T+3}, 3, v{TB}
        s_lshl1_add_u32 s{sT0}, s{sLW}, {base}
        v_add_u32 v{TB}, s{sT0}, v{TB}
        v_xor_b32 v{TB+1}, 64, v{TB}
        v_lshrrev_b32 v{T+1}, 7, v1
        v_mul_u32_u24 v{VD}, 896, v{T+1}
        v_lshlrev_b32 v{T}, 6, v{T}
        v_and_b32 v{T+3}, 0x70, v1
        v_xor_b32 v{T}, v{T}, v{T+3}
        s_lshl_b32 s{sT1}, s{sDT}, 7
        v_add3_u32 v{VD}, v{VD}, v{T}, s{sT1}""")
        s.k.srd(SWD, 16, 1792 * 896)
    def scal(s):
        k = s.k
        k.e(f"""s_lshl1_add_u32 s{sZB}, s{sRT}, s{sHF}
        s_mul_i32 s{sA}, s{sZB}, {224*1024}
        s_add_u32 s{sA}, s{sA}, {HO}
        s_lshl_b32 s{sFP}, s{sZB}, 12
        s_add_u32 s{sFP}, s{sFP}, {FH}
        s_lshl_b32 s{sZB}, s{sZB}, 11
        s_add_u32 s{sZB}, s{sZB}, {ZT}
        s_mul_i32 s{sHS}, s{sTL}, 28
        s_add_u32 s{sHS}, s{sHS}, s{sFT}
        s_lshl_b32 s{sHS}, s{sHS}, 12
        s_add_u32 s{sHS}, s{sHS}, {HO}
        s_mul_i32 s{sLD}, s{sSG}, 7
        {rot(sT0, 0)}
        s_lshl1_add_u32 s{sT0}, s{sT0}, s{sSG}
        s_lshr_b32 s{sT3}, s{sSG}, 1
        s_lshl_b32 s{sPC}, s{sT3}, 24
        s_mov_b32 s{sPC+1}, 0x010101
        s_mul_i32 s{sT3}, s{sT3}, 14""")
        for i in range(7):
            k.e(f"s_add_u32 s{sT1}, s{sT0}, {4*i - (14 if i > 3 else 0)}")
            if i == 3: k.e(f"s_sub_u32 s{sT1}, s{sT1}, s{sT3}")
            k.e(f"""s_sub_u32 s{sT2}, s{sT1}, 14
            s_cselect_b32 s{sT1}, s{sT1}, s{sT2}
            s_lshl_b32 s{sT1}, s{sT1}, {8*(i&3)+1}
            s_or_b32 s{sPC+(i>>2)}, s{sPC+(i>>2)}, s{sT1}""")
    def hld(s, P, i, r, sc=LSC):
        o = []
        for S in range(2):
            p = f"{s.unit(sT4, P, i)}\ns_lshl_b32 s{sT4}, s{sT4}, 11\ns_add_u32 s{sT4}, s{sT4}, s{sA}\n" + (f"s_add_u32 s{sT4}, s{sT4}, {56*1024}\n" if P else "") if S == 0 else f"s_add_u32 s{sT4}, s{sT4}, {112*1024}\n"
            for kk in range(2):
                o.append(p + f"buffer_load_dwordx4 {R(r+8*kk+4*S)}, v1, {S4(SWS)}, s{sT4} offen offset:{1024*kk} {sc}"); p = ""
        return o
    def gen_F(s, n, T, B):
        k = s.k
        k.e(f"""v_bfe_u32 v{T}, v1, 5, 4
        s_lshl_b32 s{sT0}, s{sFT}, 4
        v_add_u32 v{T}, s{sT0}, v{T}
        v_bfe_u32 v{T+1}, v1, 4, 1
        v_lshl_add_u32 v{T+2}, v{T}, 1, v{T+1}
        v_cmp_eq_u32 vcc, 1, v{T+2}
        v_mov_b32 v{T+3}, 224
        v_cvt_f32_u32 v{T+1}, v{T+1}
        v_cndmask_b32 v{T}, v{T}, v{T+3}, vcc
        v_mul_f32 v{T+1}, 0x3e800000, v{T+1}
        v_cvt_f32_u32 v{T}, v{T}
        v_cndmask_b32 v{T+1}, v{T+1}, 0, vcc
        v_mul_f32 v{T}, {fh(1/448)}, v{T}
        v_lshrrev_b32 v{T+2}, 9, v1
        v_lshlrev_b32 v{T+2}, 3, v{T+2}
        s_xor_b32 s{sT1}, s{sW}, {4*par("fsw", 0)}
        {rot(sT0, 0)}
        s_lshl_b32 s{sT0}, s{sT0}, 2
        s_add_u32 s{sT0}, s{sT0}, s{sT1}
        s_lshl_b32 s{sT0}, s{sT0}, 4
        s_sub_u32 s{sT0}, s{sT0}, 448
        v_add_u32 v{T+2}, s{sT0}, v{T+2}
        v_cvt_f32_i32 v{T+2}, v{T+2}
        v_fmac_f32 v{T+1}, v{T}, v{T+2}
        s_lshl_b32 s{sT1}, s{sT1}, 10
        s_add_u32 s{sT1}, s{sT1}, {F_LDS}
        v_add_u32 v{T+3}, s{sT1}, v1
        v_mov_b32 v{T+2}, 0
        s_mov_b32 s{sT0}, 0x3f803f80""")
        s.nstamp(602)
        for i in range(n):
            if i == 1: s.nstamp(603)
            r = B + 8 * (i & 1)
            for j in range(8):
                if 128 * i + j: k.e(f"v_fmamk_f32 v{r+j}, v{T}, {fh(128*i+j)}, v{T+1}")
            for j in range(8): k.e(f"v_cos_f32 v{r+j}, v{r+j if 128*i+j else T+1}")
            o = B + 16 + 4 * (i & 1)
            for j in range(4): k.e(f"v_cvt_pk_bf16_f32 v{o+j}, v{r+2*j}, v{r+2*j+1}")
            k.e(f"ds_write_b128 v{T+3}, {R(o)} offset:{i*8192}")
            for j in range(4): k.e(f"v_dot2c_f32_bf16 v{T+2}, s{sT0}, v{o+j}")
        k.e(f"""s_lshl_b32 s{sT1}, s{sW}, 8
        s_add_u32 s{sT1}, s{sT1}, {FCS_L}
        v_lshrrev_b32 v{T+3}, 2, v1
        v_add_u32 v{T+3}, s{sT1}, v{T+3}
        ds_write_b32 v{T+3}, v{T+2}""")
    def x_addr(s, T, XRD):
        s.k.e(f"""v_bfe_u32 v{T}, v1, 4, 5
        v_bfe_u32 v{T+1}, v1, 5, 3
        v_lshrrev_b32 v{T+2}, 9, v1
        v_xor_b32 v{T+1}, v{T+1}, v{T+2}
        v_lshlrev_b32 v{T+1}, 4, v{T+1}
        v_lshl_add_u32 v{XRD}, v{T}, 7, v{T+1}
        s_lshl1_add_u32 s{sT0}, s{sLW}, {SL}
        v_add_u32 v{XRD}, s{sT0}, v{XRD}
        v_xor_b32 v{XRD+1}, 32, v{XRD}
        v_xor_b32 v{XRD+2}, 64, v{XRD}
        v_xor_b32 v{XRD+3}, 96, v{XRD}""")
    def xrd(s, b, XRD, r):
        if b == 4:
            for i in range(4): s.k.e(f"v_add_u32 v{XRD+i}, {4*SL}, v{XRD+i}")
        for i in range(4): s.k.e(f"ds_read_b128 {R(r+4*i)}, v{XRD+i} offset:{(b&3)*SL}")
    def bar(s, *tags):
        k = s.k; idx = []
        for v in tags:
            assert v in k.issued, v
            idx += [(i, v) for i, e in enumerate(k.vm) if e["tag"] == v]
        k.wait(vm=max(idx, key=lambda x: x[0])[1] if idx else None, lg="all")
        k.e("s_barrier")
    def wa_addr(s, WA, base):
        s.k.e(f"""v_lshrrev_b32 v{WA}, 5, v1
        v_and_b32 v{WA}, 16, v{WA}
        v_xor_b32 v{WA}, v{WA}, v1
        s_lshl1_add_u32 s{sT0}, s{sLW}, {base}
        v_add_u32 v{WA}, s{sT0}, v{WA}""")
        for q in range(1, 4): s.k.e(f"v_xor_b32 v{WA+q}, {q*32}, v{WA}")
    def wr(s, WA, acc, t, S, d):
        for q in range(4):
            yield 8 + s.k.e(f"ds_write_b128 v{WA+q}, {R(acc+4*q)} offset:{t*SL + q*1024}")
            if (t, S) == (1, 0): yield s.k.e(f"v_add_u32 v{WA+q}, {d*SL}, v{WA+q}")
    def out_pre(s, SS, VO, VN, VR, TMP, XRES, ZN):
        k = s.k
        k.srd(SOUT, 18, 2048 * 896); k.srd(SX, 4, 2048 * 896)
        k.e(f"""s_and_b32 s{sO0}, s{sS2}, 0x39
        s_lshl2_add_u32 s{sO0}, s{sHF}, s{sO0}
        s_lshl_b32 s{sT1}, s{sSG}, 9
        s_add_u32 s{sO0}, s{sO0}, s{sT1}
        s_mul_i32 s{sO0}, s{sO0}, 896
        s_lshl_b32 s{sT1}, s{sDT}, 7
        s_add_u32 s{sO0}, s{sO0}, s{sT1}
        s_add_u32 s{sO1}, s{sO0}, {256*896}
        v_lshrrev_b32 v{VN}, 8, v1
        v_mul_u32_u24 v{VO}, {64*896}, v{VN}
        v_bfe_u32 v{VR}, v1, 4, 4
        v_lshl_add_u32 v{VO}, v{VR}, 3, v{VO}
        s_lshl_b32 s{sT0}, s{sSG}, 3
        v_add_u32 v{VN}, s{sT0}, v{VN}
        v_lshlrev_b32 v{VN}, 4, v{VN}""")
        for S in SS:
            for g in range(2): k.e(f"buffer_load_dwordx2 {R(XRES+4*S+2*g, 2)}, v{VO}, {S4(SX)}, s{sO0+g} offen offset:{1792*S}")
        zl = [f"buffer_load_dword v{ZN+2*S+g}, v{VN}, {S4(SWS)}, s{sU0} offen offset:{1024*S + 64*g} {SC1}" for S in SS for g in range(2)]
        k.e("\n".join(zl))
        k.e(f"""v_bfe_u32 v{VR}, v1, 7, 1
        v_lshlrev_b32 v{VR}, 14, v{VR}
        v_and_b32 v{TMP}, 0x70, v1
        v_lshl_add_u32 v{VR}, v{TMP}, 5, v{VR}
        v_xor_b32 v{TMP}, v{TMP}, v{VN}
        v_add_u32 v{VR}, v{VR}, v{TMP}
        v_xor_b32 v{VR+1}, 64, v{VR}
        v_add_u32 v{VR+2}, {5*SL}, v{VR}
        v_add_u32 v{VR+3}, {5*SL}, v{VR+1}""")
        return zl
    def out_sum(s, SS, SUM, XRES):
        for S in SS[::-1]:
            for g in (1, 0):
                d = SUM + 8 * S + 4 * g
                for e in range(4):
                    x = XRES + 4 * S + 2 * g + (e >> 1)
                    yield s.k.e(f"v_and_b32 v{d+e}, 0xffff0000, v{x}" if e & 1 else f"v_lshlrev_b32 v{d+e}, 16, v{x}")
    def out_zn(s, SS, SUM, ZN, zl, TMP):
        k = s.k; I = [2 * S + g for S in SS for g in range(2)]
        s.checkm([ZN + i for i in I], "\n".join(zl), TMP)
        for i in I: k.e(f"v_lshlrev_b32 v{ZN+i}, 16, v{ZN+i}")
        for i in I:
            for e in range(4): k.e(f"v_fma_f32 v{SUM+4*i+e}, v{ZN+i}, {'-0.5' if e & 1 else '0.5'}, v{SUM+4*i+e}")
    def out_fin(s, S, SUM, RB, VR, VO):
        k = s.k
        if par("fp", 1): k.e("s_setprio 0")
        for g in range(2):
            for role in range(2):
                for w in range(4): k.e(f"ds_read_b128 {R(RB+32*g+16*role+4*w)}, v{VR+2*(role == S)+g} offset:{2*(1-role)*SL + w*4096}")
        for g in range(2):
            d = SUM + 8 * S + 4 * g; b = RB + 32 * g
            for w in range(0, 8, 2):
                if par("pk", 1):
                    for e in (0, 2): k.e(f"v_pk_add_f32 {R(b+4*w+e,2)}, {R(b+4*w+e,2)}, {R(b+4*w+4+e,2)}")
                    for e in (0, 2): k.e(f"v_pk_add_f32 {R(d+e,2)}, {R(d+e,2)}, {R(b+4*w+e,2)}")
                    continue
                for e in range(4): k.e(f"v_add_f32 v{b+4*w+e}, v{b+4*w+e}, v{b+4*w+4+e}")
                for e in range(4): k.e(f"v_add_f32 v{d+e}, v{d+e}, v{b+4*w+e}")
            k.e(f"v_cvt_pk_bf16_f32 v{d}, v{d}, v{d+1}\nv_cvt_pk_bf16_f32 v{d+1}, v{d+2}, v{d+3}")
            k.e(f"buffer_store_dwordx2 {R(d,2)}, v{VO}, {S4(SOUT)}, s{sO0+g} offen offset:{1792*S}")
        if s.tson: k.e("s_waitcnt vmcnt(0)")
    def clears(s, CLR):
        k = s.k
        for i in range(4): k.e(f"v_mov_b32 v{CLR+i}, -1")
        k.e(f"s_lshl_b32 s{sT5}, s{sFT}, 7\ns_add_u32 s{sT5}, s{sT5}, s{sTL}\ns_lshl_b32 s{sT5}, s{sT5}, 10")
        st = lambda o: k.e(f"s_add_u32 s{sT4}, s{sT5}, {o}\nbuffer_store_dwordx4 {R(CLR)}, v1, {S4(SWS)}, s{sT4} offen {SC1}", "C")
        for o in (QT, QT + 65536, ZT, ZT + 65536): st(o)
        L = k.label("nonyq")
        k.e(f"s_cmp_lg_u32 s{sFT}, 0\ns_cbranch_scc1 {L}")
        k.cond_begin()
        for o in (QT, ZT): st(o + 28 * 65536)
        k.cond_end()
        k.e(f"{L}:")
    def finish(s):
        k = s.k
        s.ts_store()
        k.e("s_endpgm")
        if "flows" in OPT: k.show_flows()
        if "log" in OPT: print("  nops", k.nops)
        k.issued = set(); k.lw = {}
    CSL = [6, 7, 8, 9, 2, 3, 4]

    def c_role(s):
        k = s.k; F = Fill(k); s.dbg = [(1, 0), (2, 2), (3, 3), (4, 4), (5, 6), (6, 8), (7, 1)]
        TRL, TRH, XRD, AR, ACC, XF = 2, 6, 10, 16, 48, 112
        VX, VW, VD, NR, NM, TB, NT, VO, VN, VR, TMP = 224, 228, 230, 231, 232, 234, 240, 248, 249, 250, 15
        WA, XRES, ZN = 2, 224, 236
        T = ACC
        done = {}
        def mark(n):
            done[n] = F.t
            if "log" in OPT: print("  C", n, "at", F.t)
        def force(n):
            while n not in done: F.run(40); F.t += (n not in done)
        k.e(f"""v_lshrrev_b32 v{T}, 7, v1
        v_mul_u32_u24 v{VX}, {64*896}, v{T}
        v_lshrrev_b32 v{T}, 4, v1
        v_xor_b32 v{T}, v{T}, v1
        v_and_b32 v{T}, 0x70, v{T}
        v_add_u32 v{VX}, v{T}, v{VX}
        v_xor_b32 v{VX+1}, 64, v{VX}
        v_add_u32 v{VX+2}, {2*(8*64*896-1024)}, v{VX}
        v_add_u32 v{VX+1}, {8*64*896-1024}, v{VX+1}
        v_add_u32 v{VX+3}, {2*(8*64*896-1024)}, v{VX+1}
        s_mul_i32 s{sU1}, s{sS2}, 896
        s_waitcnt lgkmcnt(0)""")
        s.nstamp(600)
        k.srd(SX, 4, 2048 * 896)
        NWC = par("nwc", 2)
        def hflag(n): return 6 + s.flag(sQB) + k.e(f"s_add_u32 s{sQB}, s{sQB}, {128*1024}")
        def ldq():
            for b in range(7 + NWC):
                if b == par("cpos", 99): s.clears(NT)
                yield from s.x_dma(b, VX) if b < 7 else s.w_dma(b - 7, VW)
        lq = ldq()
        def issue(n):
            for _ in range(n): next(lq, None)
        issue(par("x0n", 8))
        s.load_epoch(sPC)
        k.srd(SWS, 22, WS_BYTES)
        s.stamp(1); s.nstamp(601)
        s.gen_F(4 - par("fsw", 0), T, T + 8)
        s.nstamp(604)
        issue(par("ahead", 16) - par("x0n", 8))
        s.nstamp(605)
        s.x_addr(T, XRD)
        s.w_addr(T, VW)
        k.e(f"""v_bfe_u32 v{T}, v1, 8, 1
        v_bfe_u32 v{T+1}, v1, 6, 2
        v_lshrrev_b32 v{T+2}, 9, v1
        v_lshl_add_u32 v{T+3}, v{T+2}, 3, v{T+1}
        v_lshlrev_b32 v{T+3}, 7, v{T+3}
        v_lshl_add_u32 v{TRL}, v{T}, 13, v{T+3}
        v_and_or_b32 v{T+4}, v{T+1}, 2, v{T}
        v_lshl_add_u32 v{TRL}, v{T+4}, 5, v{TRL}
        v_bfe_u32 v{T+4}, v1, 4, 2
        v_lshl_add_u32 v{TRL}, v{T+4}, 3, v{TRL}""")
        for j in range(1, 4): k.e(f"v_xor_b32 v{TRL+j}, {32*j}, v{TRL}")
        for j in range(4): k.e(f"v_add_u32 v{TRH+j}, {4*SL}, v{TRL+j}")
        k.e(f"""v_bfe_u32 v{TMP}, v1, 4, 5
        s_lshl_b32 s{sT0}, s{sSG}, 7
        s_add_u32 s{sT0}, s{sT0}, {ST_L}
        v_lshl_add_u32 v{TMP}, v{TMP}, 2, s{sT0}
        s_lshl_b32 s{sQB}, s{sTL}, 4
        s_add_u32 s{sQB}, s{sQB}, s{sFT}
        s_lshl_b32 s{sQB}, s{sQB}, 7
        s_add_u32 s{sQB}, s{sQB}, {FH}
        s_waitcnt lgkmcnt(0)""")
        s.get_tag()
        s.stamp(9); s.inG and s.nstamp(606)
        SQ, SM, ONE, M4 = ACC + 16, ACC + 24, ACC + 32, ACC + 34
        k.e(f"""v_mov_b32 v{ONE}, 0x3f803f80
        v_mov_b32 v{ONE+1}, 0x3f803f80
        s_mov_b32 s{sM}, 0x22222222
        s_mov_b32 s{sM+1}, 0x22222222
        s_mov_b32 s{sM+2}, 0x44444444
        s_mov_b32 s{sM+3}, 0x44444444
        s_mov_b32 s{sM+4}, 0x88888888
        s_mov_b32 s{sM+5}, 0x88888888""")
        for b in range(7):
            if b in (1, 3, 5, 6): s.bar(("X", b))
            else: k.wait(vm=("X", b))
            if b == 0: s.stamp(2)
            if b == 6: s.stamp(3)
            if b == par("xp", 6) and par("prio", 1): k.e("s_setprio 1")
            s.nstamp(500 + b)
            s.xrd(b, XRD, XF + 16 * b)
            issue(4)
            s.nstamp(520 + b)
            if b == 0: s.scal()
            if b == 1: s.wd_addr(T, VD, TB, 0)
            if b == 2:
                for i in range(2): k.e(f"v_add_u32 v{TB+2+i}, {4*SL}, v{TB+i}\nv_add_u32 v{TB+4+i}, {8*SL}, v{TB+i}")
            for bb in ([b] if not par("cp", 1) else [b - 1] if b < 6 else [5, 6]):
                for r in range(4 * (bb >= 0)):
                    y = XF + 16 * bb + 4 * r; z = bb + r == 0
                    k.e(mf4(SQ, y, y, z)); k.e(mf4(SM, ONE, y, z)); k.e(mf4(SQ + 4, y + 2, y + 2, z)); k.e(mf4(SM + 4, ONE, y + 2, z))
        issue(99)
        s.nstamp(507)
        S1, S2 = SM, SQ
        k.e(f"""v_add_f32 v{SQ}, v{SQ}, v{SQ+4}
        v_add_f32 v{SQ+1}, v{SQ+1}, v{SQ+5}
        v_add_f32 v{SQ+2}, v{SQ+2}, v{SQ+6}
        v_add_f32 v{SQ+3}, v{SQ+3}, v{SQ+7}
        v_add_f32 v{S1}, v{SM}, v{SM+4}
        v_cndmask_b32 v{SQ}, v{SQ}, v{SQ+1}, s[{sM}:{sM+1}]
        v_mov_b32 v{S1+1}, v{S1}
        v_cndmask_b32 v{SQ}, v{SQ}, v{SQ+2}, s[{sM+2}:{sM+3}]
        v_cndmask_b32 v{SQ}, v{SQ}, v{SQ+3}, s[{sM+4}:{sM+5}]
        v_permlane32_swap_b32 v{S1}, v{S1+1}
        v_mov_b32 v{S2+1}, v{S2}
        v_add_f32 v{S1}, v{S1}, v{S1+1}
        v_mul_f32 v{S1}, {fh(1/448)}, v{S1}
        v_permlane32_swap_b32 v{S2}, v{S2+1}
        v_cvt_pk_bf16_f32 v{M4}, -v{S1}, -v{S1}
        v_add_f32 v{S2}, v{S2}, v{S2+1}
        v_mul_f32 v{S2}, {fh(1/448)}, v{S2}
        ds_write_b32 v{TMP}, v{M4}
        v_fma_f32 v{S2}, -v{S1}, v{S1}, v{S2}
        v_max_f32 v{S2}, 0, v{S2}
        v_cvt_pk_bf16_f32 v{S2}, v{S2}, v{S2}
        v_and_b32 v{S2}, 0xffff0000, v{S2}
        v_add_f32 v{S2}, {fh(1e-5)}, v{S2}
        v_cvt_pk_bf16_f32 v{S2}, v{S2}, v{S2}
        v_and_b32 v{S2}, 0xffff0000, v{S2}
        v_sqrt_f32 v{S2}, v{S2}
        v_and_b32 v{S1}, 0xffff0000, v{M4}
        v_cvt_pk_bf16_f32 v{S2}, v{S2}, v{S2}
        v_and_b32 v{S2}, 0xffff0000, v{S2}
        v_rcp_f32 v{NR}, v{S2}
        s_nop 0
        ds_write_b32 v{TMP}, v{NR} offset:512
        v_mul_f32 v{NM}, v{S1}, v{NR}""")
        kmaj = lambda its: [(i, kk, j) for i in its for kk in range(4) for j in range(4)]
        tmaj = lambda its: [(i, kk, j) for j in range(4) for i in its for kk in range(4)]
        nt = par("nt", 2)
        M = kmaj(range(6)) + tmaj([6]) + tmaj([7]) + kmaj(range(8, 14 - nt)) + tmaj(range(14 - nt, 14))
        last = {}
        for m, (i, kk, j) in enumerate(M): last[i // 7, j] = m
        def norm():
            for kk in range(28):
                for h in range(2):
                    x = XF + 4 * kk + 2 * h; t = NT + 4 * h
                    yield from s.seq(f"""v_lshlrev_b32 v{t}, 16, v{x}
                    v_and_b32 v{t+1}, 0xffff0000, v{x}
                    v_lshlrev_b32 v{t+2}, 16, v{x+1}
                    v_and_b32 v{t+3}, 0xffff0000, v{x+1}
                    v_fma_f32 v{t}, v{t}, v{NR}, v{NM}
                    v_fma_f32 v{t+1}, v{t+1}, v{NR}, v{NM}
                    v_fma_f32 v{t+2}, v{t+2}, v{NR}, v{NM}
                    v_fma_f32 v{t+3}, v{t+3}, v{NR}, v{NM}
                    v_cvt_pk_bf16_f32 v{x}, v{t}, v{t+1}""")
                    if h: done["n", kk] = F.t
                    yield k.e(f"v_cvt_pk_bf16_f32 v{x+1}, v{t+2}, v{t+3}")
            mark("norm")
        def hepi():
            for P in range(2):
                if P: yield k.e(f"s_add_u32 s{sHS}, s{sHS}, {56*1024}")
                for j in range(4):
                    c = ACC + 16 * j; o = NT + 4 * (j & 1)
                    yield at(last[P, j] + 2)
                    assert "norm" in done
                    for i in range(4):
                        yield from s.seq(f"v_mul_f32 v{c+2*i}, v{c+2*i}, v{c+8+2*i}\nv_mul_f32 v{c+2*i+1}, v{c+2*i+1}, v{c+9+2*i}")
                    for i in range(4):
                        if i == 3: done["e", P, j] = F.t
                        yield k.e(f"v_cvt_pk_bf16_f32 v{o+i}, v{c+2*i}, v{c+2*i+1}")
                    yield 10 + k.e(f"buffer_store_dwordx4 {R(o)}, v1, {S4(SWS)}, s{sHS} offen offset:{1024*j} {SC1}", ("H", P, j))
                    mark(("H", P, j))
                s.stamp(5 + 2 * P)
                if P == 0:
                    yield at(par("f0", 140))
                    k.wait(vm=("H", 0, 3)); yield hflag(0)
        rl = {}
        def hclr():
            assert par("f0", 140) > 128 + 32 * (par("kp", 3) == 7)
            yield at(par("cl0", 60))
            if par("kp", 3) == 9:
                yield k.e(f"s_add_u32 s{sT5}, s{sHS}, {56*1024}")
                for i in range(4): yield k.e(f"v_mov_b32 v{252+i}, -1")
            for j in range(4 * (par("kp", 3) == 9)):
                yield at(par("cl0", 60) + j * par("cls", 4))
                assert ("H", 0, 0) not in done
                yield 10 + k.e(f"buffer_store_dwordx4 {R(252)}, v1, {S4(SWS)}, s{sT5} offen offset:{1024*j} {SC1}", "K")
            yield at(par("dm", 999) if par("dm", 999) < par("pm", 200) else 0)
            if par("dm", 999) < par("pm", 200): yield from dlate()
            if par("kp", 3) == 10: return
            yield at(par("pm", 200) - 6)
            for i in range(2): rl[i + 1] = s.vp_addr(i + 1, VX + 2 * i, VX + 2 * i + 1); yield 30
            yield at(par("pm", 200))
            for i in range(2): yield 6 + k.e(rl[i + 1], "P")
            if 224 > par("dm", 999) >= par("pm", 200): yield at(par("dm", 999)); yield from dlate()
        def dlate():
            assert par("dm", 999) > 188
            for i in (5, 6):
                for c in s.wd_dma(1, i, s.CSL[i], VD): yield c + 8
        F.add(norm(), -99); F.add(hepi(), -99)
        if "sent" in OPT: F.add(hclr(), -99)
        rp = [0]; pub = [1]
        def reads(upto):
            c = 0
            while rp[0] <= min(upto, 223) and M[rp[0]][0] <= pub[0]:
                i, kk, j = M[rp[0]]; slot = i % 6
                for hh in range(2): c += 2 + k.e(f"ds_read_b64_tr_b16 {R(AR+4*(rp[0]%8)+2*hh, 2)}, v{(TRH if slot >= 4 else TRL)+j} offset:{(slot&3)*SL + kk*2048 + hh*512}")
                rp[0] += 1
            return c
        DIST, DB = par("dist", 6), par("db", 4)
        F.t = -1
        force(("n", 0))
        s.nstamp(508)
        k.wait(vm="C"); k.wait(vm=("W", 1))
        s.nstamp(509)
        s.bar()
        s.nstamp(510)
        reads(DIST - 1)
        force(("n", par("n0", 1)))
        s.stamp(4)
        for m, (i, kk, j) in enumerate(M):
            P, ii = divmod(i, 7)
            F.t = m
            if P == 0: force(("n", 4 * ii + kk))
            if i == 7 and kk == 0: force(("e", 0, j))
            F.t = m
            k.e(mf32(ACC + 16 * j, AR + 4 * (m % 8), XF + 16 * ii + 4 * kk, ii + kk == 0))
            s.nstamp(m)
            if m % 32 == 32 - DB and m < 192:
                kb = m // 32
                assert rp[0] == 32 * kb + 32
                pub[0] = 2 * kb + 3
                s.bar(*[("W", w) for w in range(NWC) if w <= pub[0]])
            c = reads(m + DIST)
            F.run(max(4, (par("nb", 30) if "norm" not in done else par("bud", 24)) - c))
        s.stamp(6)
        F.drain()
        if par("prio", 1) == 1: k.e("s_setprio 0")
        NP = par("np", 2)
        ge = []
        def ard(f):
            i, kk, t = f >> 2, (f >> 1) & 1, f & 1; slot = s.CSL[i]
            assert i < NP or ge
            if i >= par("nd", 5): assert ("D", 1, i) in k.issued; k.wait(vm=("D", 1, i))
            for hh in range(2): k.e(f"ds_read_b64_tr_b16 {R(AR+4*(f%8)+2*hh, 2)}, v{TB+2*(slot>>2)+t} offset:{(slot&3)*SL + kk*2048 + hh*1024}")
        acc = lambda t, S: ACC + 16 * (2 * S + t)
        SM_ = par("sm", 2)
        n = 0
        def mm(i, kk, t, S):
            f = 4 * i + 2 * kk + t
            k.e(mf32(acc(t, S), AR + 4 * (f % 8), XF + 16 * i + 8 * kk + 4 * S, i + kk == 0))
            s.nstamp(280 + n)
            if S == 1 and f + 8 < 28: ard(f + 8)
            if n == par("r1", 28) and "r8" not in OPT: s.bar()
        CT = [
            "F1 a0 a1 F2 p1 p2 D5 D6 G0 c1 h0 h1 h2 c2 h3 g0 h4 g1 h5 g2 h6 g3 g4",
            "D5 D6 F1 a0 a1 F2 p1 p2 G0 c1 h0 h1 h2 c2 h3 g0 h4 g1 h5 g2 h6 g3 g4",
            "F1 a0 a1 F2 p1 p2 G0 c1 h0 h1 h2 D5 D6 g0 c2 h3 h4 g1 h5 g2 h6 g3 g4",
            "F1 a0 a1 G0 F2 p1 p2 D5 D6 c1 h0 h1 h2 c2 h3 g0 h4 g1 h5 g2 h6 g3 g4",
        ][par("ct", 0) & 3].split()
        if "sent" in OPT: CT = [
            "c1 c2 D5 D6 a0 a1 h0 h1 h2 G0 h3 h4 k0 g0 h5 k1 g1 h6 k2 g2 k3 g3 k4 g4 k5 k6",
            "c1 c2 h0 h1 h2 D5 D6 a0 a1 G0 h3 h4 k0 g0 h5 k1 g1 h6 k2 g2 k3 g3 k4 g4 k5 k6",
            "c1 c2 D5 D6 a0 a1 G0 h0 h1 h2 h3 h4 k0 g0 h5 k1 g1 h6 k2 g2 k3 g3 k4 g4 k5 k6",
            "c1 c2 D5 D6 a0 a1 h0 h1 h2 h3 h4 h5 h6 G0 k0 g0 k1 g1 k2 g2 k3 g3 k4 g4 k5 k6",
            "c1 c2 a0 a1 G0 D5 D6 h0 h1 h2 h3 k0 g0 h4 k1 g1 h5 k2 g2 h6 k3 g3 k4 g4 k5 k6",
            "c1 c2 a0 a1 h0 h1 G0 h2 h3 k0 g0 D5 h4 k1 g1 D6 h5 k2 g2 h6 k3 g3 k4 g4 k5 k6",
            "c1 c2 a0 a1 G0 h0 h1 h2 D5 k0 g0 h3 k1 g1 h4 D6 k2 g2 h5 h6 k3 g3 k4 g4 k5 k6",
            "c1 c2 a0 a1 G0 D5 h0 h1 h2 k0 g0 h3 k1 g1 h4 D6 k2 g2 h5 k3 g3 h6 k4 g4 k5 k6",
            "c1 c2 a0 a1 G0 D5 D6 h0 h1 h2 k0 g0 h3 k1 g1 h4 k2 g2 h5 k3 g3 h6 k4 g4 k5 k6",
            "c1 c2 a0 a1 G0 h0 h1 h2 D5 u2 k0 g0 h3 k1 g1 h4 D6 k2 g2 h5 h6 k3 g3 k4 g4 k5 k6",
            "c1 c2 a0 a1 G0 h0 h1 h2 D5 u2 k0 g0 h3 h4 k1 g1 D6 h5 h6 k2 g2 k3 g3 k4 g4 k5 k6",
            "c1 c2 a0 a1 G0 h0 h1 u2 h2 k0 g0 h3 D5 k1 g1 h4 D6 k2 g2 h5 h6 k3 g3 k4 g4 k5 k6",
            "c1 c2 a0 a1 G0 h0 h1 h2 D5 k0 g0 h3 h4 k1 g1 D6 h5 h6 u2 k2 g2 k3 g3 k4 g4 k5 k6",
            "c1 c2 a0 a1 G0 h0 h1 h2 h3 u2 k0 g0 h4 D5 k1 g1 h5 D6 k2 g2 h6 k3 g3 k4 g4 k5 k6",
            "c1 c2 a0 a1 G0 h0 h1 h2 h3 h4 D5 h5 D6 h6 u2 k0 g0 k1 g1 k2 g2 k3 g3 k4 g4 k5 k6",
            "c1 c2 a0 a1 h0 h1 G0 h2 k0 g0 h3 h4 k1 g1 h5 h6 u2 k2 g2 k3 g3 k4 g4 k5 k6",
            "c1 c2 a0 a1 h0 h1 G0 h2 h3 k0 g0 h4 k1 g1 h5 k2 g2 h6 u2 k3 g3 k4 g4 k5 k6",
        ][par("ct", 12)].split()
        for tok in CT:
            c, i = tok[0], int(tok[1:])
            if c == "D" and (("D", 1, i) in k.issued or i < par("nd", 5)): continue
            if c == "c" and i not in rl: continue
            if c == "u": k.e(f"s_setprio {i}")
            if c == "k": s.checkm([XF + 16 * i + 4 * q + 3 for q in range(4)], "\n".join(s.hld(1, i, XF + 16 * i)), TMP)
            if c == "F": k.wait(vm=("H", 1, 2 * i - 1)); hflag(i); s.nstamp(269 + i)
            if c == "a":
                for f in range(4 * i, 4 * i + 4): ard(f)
                if "sent" not in OPT: rl[i + 1] = s.vp_addr(i + 1, VX + 2 * i, VX + 2 * i + 1)
                if i == 0: s.wa_addr(WA, 7 * SL)
            if c == "G": s.bar(); ge.append(1); s.nstamp(272)
            if c == "D":
                for _ in s.wd_dma(1, i, s.CSL[i], VD): pass
            if c == "p": k.e(rl[i], "P")
            if c == "c": s.check([VX + 2 * i - 1], rl[i]); s.nstamp(272 + i)
            if c == "h":
                for l in s.hld(1, i, XF + 16 * i): k.e(l, ("h", i))
                if i == 6: s.stamp(8)
            if c == "g":
                for kk in range(2):
                    for t in range(2):
                        for S in range(2): mm(i, kk, t, S); n += 1
            s.nstamp(700 + CT.index(tok))
            if "r8" in OPT and tok == f"g{par('op', 3)}":
                k.e(f"s_add_u32 s{sU0}, s{sZB}, {28*65536}")
                zl = s.out_pre((0,), VO, VN, VR, TMP, NT, NT + 4)
        F.t = 0
        if "r8" in OPT: F.add(s.out_sum((0,), XF + 64, NT))
        for S in range(2):
            for t in range(2):
                for r, (i, kk) in enumerate((i, kk) for i in (5, 6) for kk in range(2)):
                    mm(i, kk, t, S); n += 1
                    q = 2 * S + t
                    if q > 0 and r == 1:
                        if q == 3 and "r8" not in OPT: F.drain(); F.t = 0; s.bar()
                        F.add(s.wr(WA, acc((q - 1) & 1, (q - 1) >> 1), (q - 1) & 1, (q - 1) >> 1, -5))
                    F.run(20)
        F.drain()
        for _ in s.wr(WA, acc(1, 1), 1, 1, 0): pass
        if "r8" in OPT: s.out_zn((0,), XF + 64, NT + 4, zl, TMP)
        s.nstamp(341)
        s.bar()
        s.nstamp(342)
        if "r8" in OPT: s.out_fin(0, XF + 64, XF, VR, VO)
        if s.tson: s.stamp(1); s.nstamp(343)
        s.finish()

    def h_role(s):
        k = s.k; F = Fill(k); s.dbg = [(8, 4), (9, 5), (10, 7), (11, 1)]
        XRD, FA, VW, VD, TB, VQ, SGN, TMP = 2, 6, 7, 9, 10, 12, 13, 15
        WA, VP, PD, MS = 2, 6, 12, 0
        ACC, WDR, HB = 16, 80, 192
        D1, D2C, D2S, CLR, SQ, SM, ONE, M4, FC = 16, 32, 48, 76, 80, 88, 64, 68, 72
        E, RSR, PA, PB = 96, 112, 128, 136
        XB, FB, T = 144, 192, 240
        done = {}
        def force(n):
            while n not in done: F.run(40)
        def run(g):
            for _ in g: pass
        k.e(f"s_lshl_b32 s{sQB}, s{sFT}, 7\ns_add_u32 s{sQB}, s{sQB}, s{sTL}\ns_lshl_b32 s{sQB}, s{sQB}, 10\ns_waitcnt lgkmcnt(0)")
        s.nstamp(600)
        k.srd(SWS, 22, WS_BYTES)
        s.load_epoch(sU0)
        s.stamp(1); s.nstamp(601)
        s.gen_F(3 + par("fsw", 0), T, XB)
        s.nstamp(604)
        k.e("s_waitcnt lgkmcnt(0)")
        s.nstamp(605)
        s.get_tag()
        s.x_addr(T, XRD)
        k.e(f"""v_add_u32 v{FA}, {F_LDS}, v1
        v_lshrrev_b32 v{TMP}, 2, v1
        v_add_u32 v{TMP}, {FCS_L}, v{TMP}""")
        def etab():
            C_ = T + 4
            yield from s.seq(f"""v_bfe_u32 v{T}, v1, 4, 5
            v_cvt_f32_u32 v{T}, v{T}
            v_lshrrev_b32 v{T+1}, 9, v1
            v_lshlrev_b32 v{T+1}, 8, v{T+1}
            v_add_u32 v{T+1}, s{sS2}, v{T+1}
            v_cvt_f32_u32 v{T+1}, v{T+1}
            v_mul_f32 v{T+1}, {fh(1/2048)}, v{T+1}
            v_mul_f32 v{T+1}, v{T+1}, v{T}
            v_mul_f32 v{T}, {fh(1/32)}, v{T}""")
            for q in range(2):
                for jp in range(4):
                    c = C_ + 4 * (jp & 1)
                    for e in range(2):
                        j = 2 * jp + e
                        yield from s.seq(f"v_fmamk_f32 v{c+e}, v{T}, {fh(16*q + 8*(j>>2) + (j&3))}, v{T+1}\nv_sin_f32 v{c+2+e}, v{c+e}\nv_cos_f32 v{c+e}, v{c+e}")
                    yield from s.seq(f"v_cvt_pk_bf16_f32 v{E+8+4*q+jp}, v{c+2}, v{c+3}\nv_cvt_pk_bf16_f32 v{E+4*q+jp}, v{c}, v{c+1}")
            done["E"] = 1
        U0, U1 = PB, PB + 1
        def misc():
            for st in (4, 2, 1):
                for i in range(st): yield k.e(f"v_add_f32 v{D2C+i}, v{D2C+i}, v{D2C+st+i}")
            yield from s.seq(s.split_hilo(FC, D2C, D2C + 1))
            for i in range(1, 4): yield k.e(f"v_mov_b32 v{FC+i}, 0\nv_mov_b32 v{M4+i}, 0")
            yield k.e(f"""s_cmp_eq_u32 s{sFT}, 0
            s_cselect_b32 s{sXM}, 3, 0
            s_mov_b32 s{sXM+1}, s{sXM}
            s_and_b32 s{sM+6}, s{sXM}, 2
            s_mov_b32 s{sM+7}, s{sM+6}""")
            yield from s.seq(f"""v_and_b32 v{VQ}, 0xf0, v1
            v_bfe_u32 v{SGN}, v1, 8, 1
            v_lshl_add_u32 v{VQ}, v{SGN}, 16, v{VQ}
            v_mov_b32 v{SGN}, {28*65536}
            v_cndmask_b32 v{VQ}, v{VQ}, v{SGN}, s[{sM+6}:{sM+7}]
            v_lshrrev_b32 v{SGN}, 9, v1
            v_lshl_add_u32 v{VQ}, v{SGN}, 8, v{VQ}
            v_cndmask_b32 v{MS}, 1.0, 0, s[{sXM}:{sXM+1}]
            v_bfe_i32 v{U0}, v1, 4, 1
            v_lshlrev_b32 v{U1}, 4, v{SGN}
            v_and_b32 v{SGN}, 0x80008000, v{U0}
            v_bfe_u32 v{U0}, v1, 4, 5""")
            yield k.e(f"""s_lshl_b32 s{sT0}, s{sSG}, 7
            s_add_u32 s{sT0}, s{sT0}, {ST_L}
            v_lshl_add_u32 v{U0}, v{U0}, 2, s{sT0}
            v_add_u32 v{U1}, s{sT0}, v{U1}""")
            done["misc"] = 1
        ge = etab()
        s.w_addr(D2S, VW); s.scal(); s.wd_addr(D2S, VD, TB, 6 * SL)
        k.e(f"s_lshl_b32 s{sU1}, s{sFT}, 6\ns_add_u32 s{sU1}, s{sU1}, s{sTL}\ns_lshl_b32 s{sU1}, s{sU1}, 7\ns_add_u32 s{sU1}, s{sU1}, {FQ}")
        for _ in range(par("epre", 73)): next(ge)
        s.nstamp(607)
        if par("cpos", 99) == 99: s.clears(CLR)
        s.stamp(9); s.inG and s.nstamp(606)
        NWC, NP = par("nwc", 2), par("np", 2)
        def early():
            for i in range(NWC, 6): yield from s.w_dma(i, VW)
        eq = early()
        def issue(n):
            for _ in range(n): next(eq, None)
        xr = lambda b: (XB, XB + 16, 80, RSR)[b & 3]
        fr = lambda b: XB + 32 + 16 * (b & 3)
        def frd(b):
            for r in range(4): k.e(f"ds_read_b128 {R(fr(b)+4*r)}, v{FA} offset:{(4*b+r)*1024}")
        MS_ = [[(0,), (1, 2), (3, 4), (5, 6)], [(), (0, 1), (2, 3), (4, 5, 6)], [(0, 1), (2,), (3,), (4, 5, 6)], [(0,), (1,), (2, 3), (4, 5, 6)]][par("ms", 0)]
        for st, bs in enumerate(((0, 1), (2, 3), (4, 5), (6,))):
            s.bar()
            if st == 0: s.stamp(2)
            if st == 3: s.stamp(3)
            for b in bs:
                assert b < 4 or ("d", b - 4) in done
                s.xrd(b, XRD, xr(b))
                if st == 0: frd(b)
            if st == 0:
                for w in range(8): k.e(f"ds_read_b32 v{D2C+w}, v{TMP} offset:{w*256}")
                frd(2); frd(3)
                F.add(misc()); F.add(ge)
            for b in MS_[st]:
                for r in range(4):
                    k.e(mf32(D1, xr(b) + 4 * r, fr(b) + 4 * r, b + r == 0)); F.run(par("xb", 24))
                done["d", b] = 1
                if b + 4 < 7: frd(b + 4)
            if st >= 2: issue(par(f"q{st+3}", (4, 6)[st - 2]))
            s.nstamp(501 + bs[-1])
        force("misc")
        issue(par("q7", 0))
        force("E")
        s.nstamp(508)
        s.bar(); done["sb"] = 1
        k.e(f"ds_read_b32 v{M4}, v{U0}")
        for q in range(4): k.e(f"ds_read_b128 {R(RSR+4*q)}, v{U1} offset:{512 + 32*q}")
        k.e(mf32(D1, M4, FC))
        issue(par("q1", 2))
        for h in range(2):
            for p in range(4 * h, 4 * h + 4):
                k.e(f"v_mul_f32 v{D1+2*p}, v{D1+2*p}, v{RSR+2*p}\nv_mul_f32 v{D1+2*p+1}, v{D1+2*p+1}, v{RSR+2*p+1}")
            for p in range(4 * h, 4 * h + 4): k.e(f"v_cvt_pk_bf16_f32 v{PA+p}, v{D1+2*p}, v{D1+2*p+1}")
            for p in range(4 * h, 4 * h + 4): k.e(f"v_xor_b32_dpp v{PB+p}, v{PA+p}, v{SGN} quad_perm:[1,0,3,2] row_mask:0xf bank_mask:0xf")
            k.e(mf32(D2C, E + 4 * h, PA + 4 * h, h == 0))
            k.e(f"s_mov_b64 exec, s[{sXM}:{sXM+1}]")
            for p in range(4 * h, 4 * h + 4): k.e(f"v_xor_b32 v{PB+p}, 0x80008000, v{PA+p}")
            k.e("s_mov_b64 exec, -1")
            k.e(mf32(D2S, E + 8 + 4 * h, PB + 4 * h, h == 0))
        issue(par("q2", 99))
        k.wait(vm="C"); s.flag(sU1)
        for h in range(2):
            for r in range(8 * h, 8 * h + 8): k.e(f"v_fmac_f32 v{D2C+r}, v{D2S+r}, v{MS}")
            for p in range(4 * h, 4 * h + 4): k.e(f"v_cvt_pk_bf16_f32 v{PA+p}, v{D2C+2*p}, v{D2C+2*p+1}")
            k.e(f"buffer_store_dwordx4 {R(PA+4*h)}, v{VQ}, {S4(SWS)}, s{sQB} offen offset:{QT+512*h} {SC1}", "Q")
        L = k.label("nonyq")
        k.e(f"s_cmp_lg_u32 s{sFT}, 0\ns_cbranch_scc1 {L}")
        k.cond_begin()
        for p in range(8): k.e(f"v_cvt_pk_bf16_f32 v{PB+p}, v{D2S+2*p}, v{D2S+2*p+1}")
        k.e(f"s_mov_b64 exec, s[{sXM}:{sXM+1}]")
        for h in range(2): k.e(f"buffer_store_dwordx4 {R(PB+4*h)}, v{VQ}, {S4(SWS)}, s{sQB} offen offset:{QT+512*h+16} {SC1}", "Q")
        k.e("s_mov_b64 exec, -1")
        k.cond_end()
        k.e(f"{L}:")
        s.stamp(4)
        issue(99)
        ASL = [7, 8, 6, 9, 7, 8, 9]
        own = {}
        def take(slot, who):
            if slot in own: assert ("ar", own[slot]) in k.issued, (slot, who); k.wait(lg=("ar", own[slot]))
            own[slot] = who
        cur = [-1]
        def do(tok):
            c, i = tok[0], int(tok[1:])
            if c == "W":
                assert i <= 2 * cur[0] + 7
                if i >= NWC: run(s.w_dma(i, VW))
            if c == "A": assert ASL[i] < 9 or cur[0] >= 0; take(ASL[i], i); run(s.wd_dma(0, i, ASL[i], VD))
            if c == "C":
                if i < 4: assert own[s.CSL[i]] == (2, 4, 5, 6)[i]; take(s.CSL[i], 99)
                else: assert 4 + i <= 2 * cur[0] + 1
                run(s.wd_dma(1, i, s.CSL[i], VD))
            if c == "r":
                k.wait(vm=("D", 0, i))
                for f in range(4):
                    for hh in range(2): k.e(f"ds_read_b64_tr_b16 {R(WDR+16*i+4*f+2*hh, 2)}, v{TB+(f&1)} offset:{(ASL[i]-6)*SL + (f>>1)*2048 + hh*1024}", ("ar", i))
            if c == "h":
                assert F.t >= 8 * (i - 3)
                for l in s.hld(0, i, HB + 16 * (i & 3)): k.e(l, ("h", i))
            if c == "p": k.e(rl, "P")
            if c == "q":
                k.e(f"v_bfe_u32 v13, v1, 4, 3\nv_bfe_u32 v15, v1, 7, 1\nv_lshl_add_u32 v13, v13, 5, v15\ns_lshl_b32 s{sT4}, s{sRT}, 1\ns_add_u32 s{sT4}, s{sT4}, {(FW + 32*1024) >> 7}\nv_add_lshl_u32 v13, v13, s{sT4}, 7")
                k.e(rq, "P")
            if c == "d": assert cur[0] < 5; s.check([15], rq)
            if c == "K":
                k.e(f"s_add_u32 s{sT5}, s{sHS}, {56*1024}")
                kw = par("kw", 0)
                if kw: k.e(f"v_lshlrev_b32 v{CLR+1}, {kw}, v1")
                for j in range(4 >> kw):
                    if kw: k.e(f"buffer_store_dword v{CLR}, v{CLR+1}, {S4(SWS)}, s{sT5} offen offset:{(1024<<kw)*j+12} {SC1}", "K")
                    else: k.e(f"buffer_store_dwordx4 {R(CLR)}, v1, {S4(SWS)}, s{sT5} offen offset:{1024*j} {SC1}", "K")
            if c == "c": s.check([PD], rl); s.stamp(5)
        def kb(i):
            s.bar(*[("W", w) for w in (2 * i + 2, 2 * i + 3) if w >= NWC], *([("D", 1, c) for c in range(NP)] if i == 5 else []), *(["K"] if i == 3 + ("r3 K0" in P0) and "K0" in P0 else []))
            s.nstamp(32 * i + 32); cur[0] = i
        P0 = "A0|W6 W7 A1|W8 W9 A2 A3 r0 r1|W10 W11 A4 A5 r2 r3|"
        if "sent" in OPT: P0 = P0.replace(*[("A0", "A0 K0"), ("A1", "A1 K0"), ("W7", "W7 K0"), ("r1", "r1 K0"), ("A0", "K0 A0"), ("A0|W6 W7 A1", "K0|W6 W7 A0 A1"), ("W9", "W9 K0"), ("r3", "r3 K0"), ("A3", "A3 K0"), ("x", "x"), ("x", "x")][par("kp", 3)])
        PLAN = [
            P0 + "W12 W13 A6 C0 r4|C1 r5 C2 p0 C4 r6 C3",
            P0 + "W12 W13 A6 C0 r4|C1 C4 p0 r5 r6 c0 h0",
            P0 + "W12 W13 A6 C0 r4|C1 p0 C4 r5 r6 c0 h0 h1",
        ][par("plan", 0)].split("|")
        rq = f"buffer_load_dword v15, v13, {S4(SWS)}, 0 offen offset:8 {SC1}"
        if "sent" in OPT and par("kp", 3) == 10:
            qp = par("qp", 4); PLAN[qp] += " q0"; PLAN[qp + 1] += " d0"
        TAIL = [
            "c0 h0 h1 h2 h3 C2 C3 g0 h4 g1 h5 g2 h6 G0 g3 g4 z0 g5 z1 g6",
            "c0 h0 h1 h2 h3 C2 C3 g0 h4 g1 h5 G0 g2 h6 g3 g4 z0 g5 z1 g6",
            "c0 h0 h1 h2 h3 C2 C3 g0 h4 g1 h5 g2 h6 g3 g4 G0 z0 g5 z1 g6",
            "c0 h0 h1 h2 h3 C2 C3 g0 h4 G0 g1 h5 g2 h6 g3 g4 z0 g5 z1 g6",
            "c0 h0 h1 h2 h3 C2 C3 G0 g0 h4 g1 h5 g2 h6 g3 g4 z0 g5 z1 g6",
            "c0 h0 h1 h2 C2 C3 g0 h3 h4 g1 h5 g2 h6 G0 g3 g4 z0 g5 z1 g6",
            "c0 h0 h1 h2 C2 C3 g0 h3 h4 g1 h5 G0 g2 h6 g3 g4 z0 g5 z1 g6",
            "c0 h0 h1 h2 C2 C3 g0 h3 g1 h4 h5 g2 h6 g3 g4 G0 z0 g5 z1 g6",
            "c0 h0 h1 h2 C2 C3 G0 g0 h3 h4 g1 h5 g2 h6 g3 g4 z0 g5 z1 g6",
            "c0 h0 h1 h2 C2 C3 g0 G0 h3 h4 g1 h5 g2 h6 g3 g4 z0 g5 z1 g6",
            "c0 h0 h1 C2 C3 g0 h2 G0 h3 g1 h4 h5 g2 h6 g3 g4 z0 g5 z1 g6",
            "c0 h0 h1 C5 C6 h2 g0 h3 G0 h4 g1 h5 g2 h6 g3 g4 z0 g5 z1 g6",
            "c0 h0 h1 h2 C5 C6 g0 h3 h4 g1 G0 h5 g2 h6 g3 g4 z0 g5 z1 g6",
            "c0 C5 C6 h0 h1 h2 G0 g0 h3 h4 g1 h5 g2 h6 g3 g4 z0 g5 z1 g6",
            "c0 h0 C5 h1 C6 h2 h3 g0 G0 h4 g1 h5 g2 h6 g3 g4 z0 g5 z1 g6",
        ][par("tail", 9)].split()
        F.t = 0
        rl = s.vp_addr(0, VP, PD)
        s.wa_addr(WA, 0)
        for i in range(6):
            for tok in PLAN[i].split(): do(tok)
            kb(i)
        acc = lambda t, S: ACC + 16 * (2 * S + t)
        H_ = lambda i, q=0: WDR + 16 * i + 4 * q
        D_ = lambda i, q=0: HB + 16 * i + 4 * q
        FIr = [[H_(1, 3)] + [H_(2, q) for q in range(4)] + [H_(3, 0), H_(3, 1)], [H_(3, 2), H_(3, 3)] + [D_(3, q) for q in range(4)] + [H_(4, 0)]]
        ZGr = [[H_(4, q) for q in (1, 2, 3)] + [D_(0, q) for q in range(4)], [H_(5, q) for q in range(4)] + [D_(1, q) for q in range(3)]]
        FI = lambda i, t: FIr[t][i]
        ZG = lambda S, i: ZGr[S][i]
        XRES, ZN, RB, SUM = H_(6), D_(1, 3), WDR, H_(4)
        VO, VN, VR = D_(2), D_(2) + 1, D_(2, 1)
        A_, B_, CI_, CF, X = 7, 12, 6, 0, WDR
        def zld(S, i): return f"s_add_u32 s{sT4}, s{sZB}, {i << 18}\nbuffer_load_dwordx4 {R(ZG(S, i))}, v1, {S4(SWS)}, s{sT4} offen offset:{1024*S} {SC1}"
        def figen():
            yield from s.seq(f"""v_bfe_u32 v{A_}, v1, 4, 5
            s_lshl_b32 s{sT0}, s{sDT}, 6
            v_add_u32 v{A_}, s{sT0}, v{A_}
            v_cvt_f32_u32 v{A_}, v{A_}
            v_add_f32 v{A_+1}, {fh(32)}, v{A_}
            v_mul_f32 v{A_}, {fh(1/448)}, v{A_}
            v_mul_f32 v{A_+1}, {fh(1/448)}, v{A_+1}
            v_lshrrev_b32 v{B_}, 9, v1
            s_lshl_b32 s{sT0}, s{sSG}, 3
            v_lshl_add_u32 v{B_}, v{B_}, 2, s{sT0}
            v_cmp_eq_u32 vcc, 0, v{B_}
            v_cvt_f32_u32 v{B_}, v{B_}
            v_mul_f32 v{B_+1}, v{B_}, v{A_+1}
            v_mul_f32 v{B_}, v{B_}, v{A_}
            v_cndmask_b32 v{CF}, 1.0, 0.5, vcc""")
            yield at(16)
            for t in range(2):
                yield from s.seq(f"v_mul_f32 v{CI_}, {fh(32)}, v{A_+t}\nv_cos_f32 v{CI_}, v{CI_}")
                for jp in range(2):
                    Y = lambda e, i: X + 14 * e + 2 * i
                    for e in range(2):
                        for i in (2, 3): yield from s.seq(f"v_fmamk_f32 v{Y(e,i)}, v{A_+t}, {fh(32*i+2*jp+e)}, v{B_+t}\nv_sin_f32 v{Y(e,i)+1}, v{Y(e,i)}\nv_cos_f32 v{Y(e,i)}, v{Y(e,i)}")
                    if jp == 0: yield k.e(f"v_add_f32 v{CI_}, v{CI_}, v{CI_}")
                    for i, a, b in ((1, 2, 3), (4, 3, 2), (0, 1, 2), (5, 4, 3), (6, 5, 4)):
                        for e in range(2):
                            for c in range(2): yield k.e(f"v_fma_f32 v{Y(e,i)+c}, v{CI_}, v{Y(e,a)+c}, -v{Y(e,b)+c}")
                    if jp == 0: yield k.e(f"v_mul_f32 v{Y(0,0)}, v{Y(0,0)}, v{CF}")
                    for i in range(7):
                        q = FI(i, t)
                        yield at(8 * (((q - WDR) >> 4) + 1) if q < HB else 32)
                        for e in range(2): yield k.e(f"v_cvt_pk_bf16_f32 v{q+2*jp+e}, v{Y(e,i)}, v{Y(e,i)+1}")
        k.e(f"s_lshl_b32 s{sT0}, s{sSG}, 16\ns_add_u32 s{sU0}, s{sZB}, {28*65536}\ns_add_u32 s{sZB}, s{sZB}, s{sT0}")
        F.t = 0
        for tok in TAIL:
            c, i = tok[0], int(tok[1:])
            if c == "G":
                s.bar(*[("D", 1, c) for c in range(par("nd", 5))]); s.nstamp(300)
                if par("prio", 1) == 1: k.e("s_setprio 1")
            elif tok in " ".join(PLAN).split(): pass
            elif c == "z":
                assert F.t >= 8 * (5 + i) and TAIL.index("G0") < TAIL.index(tok)
                for z in range(7): k.e(zld(i, z), ("z", i, z))
            elif c == "g":
                if i == 0: F.add(figen())
                for kk in range(2):
                    for t in range(2):
                        for S in range(2):
                            k.e(mf32(acc(t, S), WDR + 16 * i + 8 * kk + 4 * t, HB + 16 * (i & 3) + 8 * kk + 4 * S, i + kk == 0))
                            s.nstamp(224 + F.t); F.t += 1
                            F.run(par("fb", 28))
            else: do(tok)
            if tok == "h6": s.stamp(6)
            s.nstamp(700 + TAIL.index(tok))
        s.stamp(7)
        SS = (1,) if 'r8' in OPT else (0, 1)
        zl = s.out_pre(SS, VO, VN, VR, TMP, XRES, ZN)
        F.drain(); F.t = 0
        s.stamp(8)
        m = 400
        for S in range(2):
            for t in range(2):
                for i in range(7):
                    if t == 0 and i in (0, 4):
                        g = range(i, min(i + 4, 7))
                        s.checkm([ZG(S, z) + 3 for z in g] + ([ZG(S, 6) + 3] if i else []), "\n".join(zld(S, z) for z in g), TMP)
                    k.e(mf32(acc(t, S), FI(i, t), ZG(S, i)))
                    s.nstamp(m); m += 1
                    n = 2 * S + t
                    if n and i == 1: F.add(s.wr(WA, acc((n - 1) & 1, (n - 1) >> 1), (n - 1) & 1, (n - 1) >> 1, 5))
                    F.run(10)
        F.drain()
        run(s.out_sum(SS, SUM, XRES))
        run(s.wr(WA, acc(1, 1), 1, 1, 0))
        s.out_zn(SS, SUM, ZN, zl, TMP)
        s.bar()
        s.nstamp(440)
        def rd(role, S):
            for g in range(2):
                for w in range(4): k.e(f"ds_read_b128 {R(RB+32*S+16*g+4*w)}, v{VR+2*(role == S)+g} offset:{2*(1-role)*SL + w*4096}")
        def add(S, g):
            d = SUM + 8 * S + 4 * g; b = RB + 32 * S + 16 * g
            for w in range(4):
                for e in range(4): k.e(f"v_add_f32 v{d+e}, v{d+e}, v{b+4*w+e}")
            return d
        if "r8" in OPT: s.out_fin(1, SUM, RB, VR, VO)
        else: rd(1, 0); rd(1, 1)
        for S in range(2 * ("r8" not in OPT)):
            for g in range(2): add(S, g)
        for S in range(2 * ("r8" not in OPT)):
            s.bar()
            s.nstamp(441 + S)
            rd(0, S)
            for g in range(2):
                d = add(S, g)
                k.e(f"v_cvt_pk_bf16_f32 v{d}, v{d}, v{d+1}\nv_cvt_pk_bf16_f32 v{d+1}, v{d+2}, v{d+3}")
                k.e(f"buffer_store_dwordx2 {R(d,2)}, v{VO}, {S4(SOUT)}, s{sO0+g} offen offset:{1792*S}")
        if s.tson: k.e("s_waitcnt vmcnt(0)")
        L = k.label("noep")
        k.e(f"s_add_u32 s{sT0}, s2, s{sW}\ns_cmp_lg_u32 s{sT0}, 36\ns_cbranch_scc1 {L}\ns_mov_b32 s{sT0}, {EPOCH}")
        k.cond_begin(); s.flag(sT0, 0, False); k.cond_end()
        k.e(f"{L}:")
        if s.tson: s.stamp(9 if par("s9", 0) else 1)
        s.finish()

    def t_wg(s):
        k = s.k; T = 2; s.inG = False; s.dbg = [(12, 3), (13, 7), (14, 9), (15, 0)]
        if "not" in OPT: k.e("s_endpgm")
        if "dbg" in OPT: k.e(f"s_mov_b32 s{sTS+14}, 0\ns_mov_b32 s{sTS+18}, 0")
        TAB, ZL = 64 * 1024, 96 * 1024
        O_TOI, O_TW, O_TE = 0, 8192, 24576
        QR, WR, TE, TO, EV, XP, SP = 16, 48, 80, 112, 144, 176, 208
        sK = sFT
        k.e(f"""s_lshr_b32 s{sT0}, s2, 1
        s_lshl_b32 s{sT0}, s{sT0}, 2
        s_and_b32 s{sSG}, s{sW}, 3
        s_add_u32 s{sT0}, s{sT0}, s{sSG}
        s_lshl_b32 s{sT0}, s{sT0}, 1
        s_and_b32 s{sT1}, s2, 1
        s_add_u32 s{sT0}, s{sT0}, s{sT1}
        s_mul_i32 s{sT0}, s{sT0}, 7200
        s_add_u32 s{sT1}, s{sT0}, 4096
        s_lshl_b32 s{sLW}, s{sW}, 13
        s_cmp_ge_u32 s{sW}, 4
        s_waitcnt lgkmcnt(0)
        s_cselect_b32 s{SC}, s8, s6
        s_cselect_b32 s{SC+1}, s9, s7
        s_mov_b32 s{SC+2}, {2048*450}
        s_mov_b32 s{SC+3}, 0x20000""")
        for h in range(2):
            k.e(f"s_add_u32 m0, s{sLW}, {4096*h}")
            for i in range(4):
                if h == 1 and i == 3: k.e("s_mov_b64 exec, 3")
                k.e(f"buffer_load_dwordx4 v1, {S4(SC)}, s{sT0+h} offen offset:{1024*i} lds", "T")
        k.e("s_mov_b64 exec, -1")
        s.load_epoch()
        k.srd(SWS, 22, WS_BYTES)
        k.srd(SWG, 22, 225 * 8192, WT)
        s.stamp(1)
        def pair(step, base, off):
            d = QR
            for i in range(4): k.e(f"v_fmamk_f32 v{d+8+i}, v{step}, {fh(i)}, v{base}\nv_sin_f32 v{d+12+i}, v{d+8+i}\nv_cos_f32 v{d+8+i}, v{d+8+i}")
            for i in range(4): k.e(f"v_cvt_pk_bf16_f32 v{d+i}, v{d+8+i}, v{d+12+i}\nv_cvt_pk_bf16_f32 v{d+4+i}, -v{d+12+i}, v{d+8+i}")
            k.e(f"ds_write_b128 v{T+5}, {R(d)} offset:{off}\nds_write_b128 v{T+5}, {R(d+4)} offset:{off+1024}")
        k.e(f"""v_bfe_u32 v{T}, v1, 4, 5
        v_cvt_f32_u32 v{T}, v{T}
        v_lshrrev_b32 v{T+1}, 9, v1
        v_lshlrev_b32 v{T+1}, 2, v{T+1}
        s_lshl_b32 s{sT0}, s{sSG}, 3
        v_add_u32 v{T+1}, s{sT0}, v{T+1}
        v_cvt_f32_u32 v{T+1}, v{T+1}
        s_lshr_b32 s{sT0}, s{sW}, 2
        v_cvt_f32_u32 v{T+2}, s{sT0}
        v_mul_f32 v{T+3}, {fh(1/32)}, v{T}
        v_fma_f32 v{T+4}, 0.5, v{T+2}, v{T+1}
        v_mul_f32 v{T+4}, v{T+4}, v{T+3}
        s_lshl_b32 s{sT0}, s{sW}, 11
        s_add_u32 s{sT0}, s{sT0}, {TAB}
        v_add_u32 v{T+5}, s{sT0}, v1""")
        pair(T + 3, T + 4, O_TE)
        NINV = 2.0 / (2048 * 448)
        k.e(f"""v_fma_f32 v{T+6}, 0.5, v{T+2}, v{T}
        v_mul_f32 v{T+6}, {fh(1/1024)}, v{T+6}
        v_mul_f32 v{T+7}, v{T+6}, v{T+1}""")
        d = WR
        for i in range(4): k.e(f"v_fmamk_f32 v{d+i}, v{T+6}, {fh(i)}, v{T+7}\nv_sin_f32 v{d+4+i}, v{d+i}\nv_cos_f32 v{d+i}, v{d+i}")
        for i in range(8): k.e(f"v_mul_f32 v{d+i}, {fh(NINV)}, v{d+i}")
        k.e(f"ds_write_b128 v{T+5}, {R(d)} offset:{O_TW}\nds_write_b128 v{T+5}, {R(d+4)} offset:{O_TW+1024}")
        k.e(f"s_cmp_ge_u32 s{sW}, 4\ns_cbranch_scc1 T_A")
        k.cond_begin()
        k.e(f"v_add_f32 v{T+3}, {fh(1/64)}, v{T+3}\nv_mul_f32 v{T+4}, v{T+1}, v{T+3}")
        pair(T + 3, T + 4, O_TOI)
        k.cond_end()
        k.e("T_A:")
        k.e(f"""s_lshl_b32 s{sLD}, s2, 16
        s_add_u32 s{sLD}, s{sLD}, s{sLW}
        s_add_u32 s{sU1}, s{sLD}, 4096""")
        k.e(f"""v_bfe_u32 v{T+3}, v1, 4, 4
        v_mul_u32_u24 v{T+4}, 450, v{T+3}
        v_lshrrev_b32 v{T+5}, 4, v0
        v_lshl_add_u32 v{T+4}, v{T+5}, 1, v{T+4}
        v_lshlrev_b32 v{T+5}, 13, v{T+5}
        v_lshl_add_u32 v{T+5}, v{T+3}, 4, v{T+5}
        s_lshl_b32 s{sT0}, s2, 8
        s_waitcnt lgkmcnt(0)""")
        s.get_tag()
        TK = "sent" in OPT and par("kp", 3) == 10
        KE = par("ke", 6)
        def tclr(a, b):
            for j in range(a, b):
                if j % 4 == 0 and j: k.e(f"s_add_u32 s{sDT}, s{sDT}, 4096")
                k.e(f"buffer_store_dwordx4 {R(248)}, v1, {S4(SWS)}, s{sDT} offen offset:{1024*(j&3)} {SC1}", "K")
        if TK:
            k.e(f"s_lshr_b32 s{sT1}, s{sW}, 2\ns_lshl1_add_u32 s{sDT}, s2, s{sT1}\ns_lshl_b32 s{sDT}, s{sDT}, 3\ns_add_u32 s{sDT}, s{sDT}, s{sSG}\ns_mul_i32 s{sDT}, s{sDT}, {14*1024}\ns_add_u32 s{sDT}, s{sDT}, {HO + 56*1024}")
            for i in range(4): k.e(f"v_mov_b32 v{248+i}, -1")
            tclr(0, KE)
        k.wait(vm="T")
        k.e("s_barrier")
        s.stamp(2)
        GR = 16
        def rd(it):
            for i in range(4):
                for m in range(2): k.e(f"ds_read_u16 v{GR+8*it+4*m+i}, v{T+4} offset:{(4*m+i)*8192 + 64*it}")
        rd(0)
        for it in range(8):
            if it < 7: rd(it + 1)
            r = GR + 8 * it
            for i in range(4): k.e(f"v_lshl_or_b32 v{r+i}, v{r+4+i}, 16, v{r+i}")
            k.e(f"s_add_u32 s{sT1}, s{sT0}, {it*32*8192}\nbuffer_store_dwordx4 {R(r)}, v{T+5}, {S4(SWG)}, s{sT1} offen {SC1}", "WT")
        s.stamp(3)
        k.e("s_barrier")
        k.e(f"v_add_u32 v{T+9}, {TAB}, v1")
        for i in range(8): k.e(f"ds_read_b128 {R(TE+4*i)}, v{T+9} offset:{O_TE+1024*i}\nds_read_b128 {R(TO+4*i)}, v{T+9} offset:{O_TE+8192+1024*i}")
        k.e(f"""s_lshl_b32 s{sA}, s{sW}, 5
        s_add_u32 s{sA}, s{sA}, s2
        s_lshl_b32 s{sA}, s{sA}, 7
        s_add_u32 s{sA}, s{sA}, {FW}
        s_cmp_lt_u32 s2, 29
        s_cbranch_scc1 T_M""")
        st = k.snap()
        k.wait(vm="WT"); s.flag(sA)
        if TK: tclr(KE, 14); k.wait(vm="K"); k.e(f"s_add_u32 s{sA}, s{sA}, {32*1024}"); s.flag(sA)
        k.e("s_branch T_FIN")
        k.restore(st)
        k.e("T_M:")
        k.e(f"""s_lshl_b32 s{sK}, s2, 3
        s_add_u32 s{sK}, s{sK}, s{sW}""")
        ZW, ZR = T, T + 4
        k.e(f"""v_bfe_u32 v{T+8}, v1, 6, 3
        v_lshlrev_b32 v{ZW}, 10, v{T+8}
        v_bfe_u32 v{T+8}, v1, 4, 2
        v_lshl_add_u32 v{ZW}, v{T+8}, 7, v{ZW}
        v_lshrrev_b32 v{T+8}, 5, v1
        v_and_b32 v{T+8}, 16, v{T+8}
        v_and_b32 v{T+10}, 0x70, v1
        v_xor_b32 v{T+8}, v{T+8}, v{T+10}
        s_add_u32 s{sT0}, s{sLW}, {ZL}
        v_add3_u32 v{ZW}, v{ZW}, v{T+8}, s{sT0}
        v_xor_b32 v{ZW+1}, 32, v{ZW}
        v_xor_b32 v{ZW+2}, 64, v{ZW}
        v_xor_b32 v{ZW+3}, 96, v{ZW}
        v_bfe_u32 v{ZR}, v1, 4, 5
        v_lshlrev_b32 v{ZR}, 2, v{ZR}
        v_lshrrev_b32 v{T+8}, 9, v1
        v_lshl_add_u32 v{ZR}, v{T+8}, 15, v{ZR}
        s_and_b32 s{sT0}, s{sW}, 1
        s_lshl_b32 s{sT0}, s{sT0}, 6
        v_xor_b32 v{ZR}, s{sT0}, v{ZR}
        s_lshl_b32 s{sT0}, s{sW}, 10
        s_add_u32 s{sT0}, s{sT0}, {ZL}
        v_add_u32 v{ZR}, s{sT0}, v{ZR}
        v_xor_b32 v{ZR+1}, {128+16}, v{ZR}
        v_xor_b32 v{ZR+2}, {256+32}, v{ZR}
        v_xor_b32 v{ZR+3}, {384+48}, v{ZR}
        """)
        PF, PD_, PW, QA, QM, QW = T + 8, T + 10, T + 11, 15, 0, 240
        sWD = sHF
        k.e(f"""s_lshr_b32 s{sT0}, s{sK}, 2
        s_and_b32 s{sT1}, s{sT0}, 7
        s_lshl_b32 s{sT1}, s{sT1}, 12
        s_add_u32 s{sU0}, s{sT1}, {FW}
        s_lshr_b32 s{sT0}, s2, 1
        s_cmp_eq_u32 s2, 28
        s_cselect_b32 s{sT0}, 0, s{sT0}
        s_lshl_b32 s{sT0}, s{sT0}, 13
        s_lshl_b32 s{sT1}, s{sW}, 10
        s_add_u32 s{sT0}, s{sT0}, s{sT1}
        s_add_u32 s{sT0}, s{sT0}, {FQ}
        v_bfe_u32 v{PF}, v1, 4, 3
        v_lshlrev_b32 v{PF}, 7, v{PF}""")
        rl = f"buffer_load_dword v{PD_}, v{PF}, {S4(SWS)}, s{sT0} offen offset:8 {SC1}"
        k.e(f"""v_bfe_u32 v{PW}, v1, 4, 5
        v_lshlrev_b32 v{PW}, 7, v{PW}
        v_bfe_u32 v{QM}, v1, 7, 1
        v_bfe_u32 v{QA}, v1, 8, 1
        v_lshl_add_u32 v{QM}, v{QM}, 1, v{QA}
        v_bfe_u32 v{QA}, v1, 4, 1
        v_lshl_add_u32 v{QM}, v{QM}, 1, v{QA}
        v_xor_b32 v{QA}, s{sW}, v{QM}
        v_lshlrev_b32 v{QA}, 5, v{QA}
        v_lshl_add_u32 v{QA}, v{QM}, 8, v{QA}
        v_bfe_u32 v{QM}, v1, 5, 2
        v_lshl_add_u32 v{QA}, v{QM}, 3, v{QA}
        v_lshrrev_b32 v{QM}, 9, v1
        v_lshl_add_u32 v{QA}, v{QM}, 13, v{QA}
        v_lshrrev_b32 v{QW}, 3, v1
        v_and_b32 v{QW}, 0x60, v{QW}
        v_xor_b32 v{QW}, v{QW}, v1
        v_add_u32 v{QW}, s{sLW}, v{QW}
        v_xor_b32 v{QW+1}, 128, v{QW}
        v_and_b32 v{QM}, 0xe0, v1
        s_cmp_eq_u32 s2, 28
        s_cselect_b32 s{sT1}, 0, 0xe0
        v_cmp_ge_u32 s[{sM}:{sM+1}], s{sT1}, v{QM}
        s_lshl_b32 s{sT2}, s{sK}, 13
        s_add_u32 s{sT3}, s{sT2}, 4096
        s_cmp_gt_u32 s{sK}, 224
        s_cselect_b32 s{sWD}, 1, 0""")
        if TK and par("kb4", 0): tclr(KE, 14)
        k.wait(vm="WT"); s.flag(sA)
        s.stamp(5)
        if TK and not par("kb4", 0): tclr(KE, 14)
        k.e(rl)
        if TK: k.wait(vm="K"); k.e(f"s_add_u32 s{sA}, s{sA}, {32*1024}"); s.flag(sA, reg=14)
        s.check([PD_], rl, sleep=2)
        s.stamp(6)
        rw = f"buffer_load_dword v{PD_}, v{PW}, {S4(SWS)}, s{sU0} offen offset:8 {SC1}"
        wl = "\n".join(f"buffer_load_dwordx4 {R(WR+4*i)}, v1, {S4(SWG)}, s{sT3 if i >= 4 else sT2} offen offset:{1024*(i&3)} {SC1}" for i in range(8))
        QL = EV
        k.e("s_waitcnt vmcnt(0) lgkmcnt(0)\nT_P:")
        k.e(rw)
        for i in range(8): k.e(f"buffer_load_dwordx4 {R(QL+4*i)}, v1, {S4(SWS)}, s{sU1 if i >= 4 else sLD} offen offset:{(QT + 1024*(i&3))} {SC1}")
        k.e(f"v_cmp_ne_u32 vcc, s{sTAG}, v{PD_}\ns_cmp_lg_u32 s{sWD}, 0\ns_cbranch_scc1 T_P1\ns_cbranch_vccnz T_P1\ns_mov_b32 s{sWD}, 1")
        k.cond_begin(); k.e(wl, "wl"); k.cond_end()
        k.raw("    s_waitcnt vmcnt(8)\n    s_branch T_P2\nT_P1:\n    s_waitcnt vmcnt(0)\nT_P2:")
        k.vm = [e for e in k.vm if e["tag"] == "wl"]
        k.e(f"v_max3_u32 v{QM}, v{QL+3}, v{QL+7}, v{QL+11}\nv_max3_u32 v{QM}, v{QM}, v{QL+15}, v{QL+19}\nv_max3_u32 v{QM}, v{QM}, v{QL+23}, v{QL+27}\nv_max_u32 v{QM}, v{QM}, v{QL+31}")
        k.e(f"""v_cmp_eq_u32 vcc, -1, v{QM}
        s_add_u32 s{sCNT}, s{sCNT}, 1
        s_cmp_ge_u32 s{sCNT}, 0x4000
        s_cbranch_scc1 T_P3
        s_and_b64 vcc, vcc, s[{sM}:{sM+1}]
        s_cbranch_scc1 T_P
        T_P3:""")
        for i in range(8): k.e(f"ds_write_b128 v{QW+(i&1)}, {R(QL+4*i)} offset:{1024*i}")
        k.e(f"s_waitcnt lgkmcnt(0)\ns_barrier\ns_cmp_le_u32 s{sK}, 224\ns_cbranch_scc1 T_I")
        st = k.snap()
        for i in range(4): k.e(f"v_mov_b32 v{QR+i}, 0")
        for p in range(2):
            for q in range(4): k.e(f"ds_write_b128 v{ZW+q}, {R(QR)} offset:{512*p}")
        k.e("s_branch T_X")
        k.restore(st)
        k.e("T_I:")
        s.stamp(7)
        def qg(pp, j):
            for h in range(2): k.e(f"ds_read_b64_tr_b16 {R(QR+16*pp+4*j+2*h,2)}, v{QA} offset:{16384*j + 4096*pp + 2048*h}")
        for j in range(4): qg(0, j)
        for j in range(3): qg(1, j)
        for j in range(4):
            for c in range(2): k.e(mf32(EV + 16 * c, TE + 8 * j + 4 * c, QR + 4 * j, j == 0))
            if j == 0: qg(1, 3)
        k.e(f"s_cmp_lg_u32 s{sWD}, 0\ns_cbranch_scc1 T_W")
        k.cond_begin()
        c0 = (k._cs, k._cv)
        k.e(rw); s.check([PD_], rw); k.e(wl, "wl")
        k._cs, k._cv = c0
        k.cond_end()
        k.e("T_W:")
        for j in range(4):
            for c in range(2): k.e(mf32(XP + 16 * c, TO + 8 * j + 4 * c, QR + 16 + 4 * j, EV + 16 * c if j == 0 else None))
        for i in range(8): k.e(f"ds_read_b128 {R(TO+4*i)}, v{T+9} offset:{O_TOI+1024*i}")
        for i in range(32): k.e(f"v_lshlrev_b32 v{SP+i}, 16, v{WR+i}\nv_and_b32 v{WR+i}, 0xffff0000, v{WR+i}")
        A_, B_ = 240, 244
        for e0 in range(0, 16, 4):
            for L in (lambda e, a, b: f"v_fma_f32 v{EV+e}, 2.0, v{EV+e}, -v{XP+e}",
                      lambda e, a, b: f"v_fma_f32 v{EV+16+e}, 2.0, v{EV+16+e}, -v{XP+16+e}",
                      lambda e, a, b: f"v_mul_f32 v{a}, v{XP+e}, v{SP+e}",
                      lambda e, a, b: f"v_mul_f32 v{b}, v{XP+e}, v{WR+e}",
                      lambda e, a, b: f"v_fma_f32 v{a}, -v{XP+16+e}, v{WR+e}, v{a}",
                      lambda e, a, b: f"v_fmac_f32 v{b}, v{XP+16+e}, v{SP+e}",
                      lambda e, a, b: f"v_fma_f32 v{XP+e}, v{EV+e}, v{SP+16+e}, v{a}",
                      lambda e, a, b: f"v_fma_f32 v{XP+16+e}, v{EV+e}, v{WR+16+e}, v{b}",
                      lambda e, a, b: f"v_fma_f32 v{XP+e}, -v{EV+16+e}, v{WR+16+e}, v{XP+e}",
                      lambda e, a, b: f"v_fmac_f32 v{XP+16+e}, v{EV+16+e}, v{SP+16+e}",
                      lambda e, a, b: f"v_fma_f32 v{a}, 2.0, v{a}, -v{XP+e}",
                      lambda e, a, b: f"v_fma_f32 v{b}, 2.0, v{b}, -v{XP+16+e}",
                      lambda e, a, b: f"v_cvt_pk_bf16_f32 v{QR+e}, v{XP+e}, -v{XP+16+e}",
                      lambda e, a, b: f"v_cvt_pk_bf16_f32 v{QR+16+e}, v{a}, -v{b}"):
                for i in range(4): k.e(L(e0 + i, A_ + i, B_ + i))
        for p in range(2):
            for i in range(8): k.e(f"ds_read_b128 {R((WR, SP)[p]+4*i)}, v{T+9} offset:{O_TW + 8192*p + 1024*i}")
        for p in range(2):
            for q in range(4):
                for c in range(2): k.e(mf32((EV, XP)[p] + 16 * c, QR + 16 * p + 4 * q, (TE, TO)[p] + 8 * q + 4 * c, q == 0))
        for p in range(2):
            Y = (EV, XP)[p]; TWr = (WR, SP)[p]
            for q in range(4):
                for L in (lambda e, a, b, c_, s_: f"v_mul_f32 v{a}, v{Y+e}, v{c_}",
                          lambda e, a, b, c_, s_: f"v_mul_f32 v{b}, v{Y+16+e}, v{c_}",
                          lambda e, a, b, c_, s_: f"v_fmac_f32 v{a}, v{Y+16+e}, v{s_}",
                          lambda e, a, b, c_, s_: f"v_fma_f32 v{b}, -v{Y+e}, v{s_}, v{b}",
                          lambda e, a, b, c_, s_: f"v_cvt_pk_bf16_f32 v{QR+16*p+e}, v{a}, v{b}"):
                    for i in range(4): k.e(L(4 * q + i, A_ + i, B_ + i, TWr + 8 * q + i, TWr + 8 * q + 4 + i))
            for q in range(4):
                for c in range(2): k.e(mf32(Y + 16 * c, TE + 8 * q + 4 * c, QR + 16 * p + 4 * q, q == 0))
        for p in range(2):
            Y = (EV, XP)[p]
            for q in range(4):
                for i in range(4): k.e(f"v_cvt_pk_bf16_f32 v{Y+4*q+i}, v{Y+4*q+i}, v{Y+16+4*q+i}")
                k.e(f"ds_write_b128 v{ZW+q}, {R(Y+4*q)} offset:{512*p}")
        s.stamp(8)
        k.e("T_X:\ns_waitcnt lgkmcnt(0)\ns_barrier")
        for tt in range(8):
            for h in range(2): k.e(f"ds_read2st64_b32 {R(QR+4*tt+2*h,2)}, v{ZR+(tt&3)} offset0:{64*h + 2*(tt>>2)} offset1:{64*h + 32 + 2*(tt>>2)}")
        k.e(f"s_add_u32 s{sLD}, s{sLD}, {ZT}\ns_add_u32 s{sU1}, s{sU1}, {ZT}")
        for tt in range(8): k.e(f"buffer_store_dwordx4 {R(QR+4*tt)}, v1, {S4(SWS)}, s{sU1 if tt >= 4 else sLD} offen offset:{1024*(tt&3)} {SC1}")
        s.stamp(9); s.inG and s.nstamp(606)
        k.e("T_FIN:")
        s.ts_store()
        k.e("s_endpgm")

    def build(s):
        k = s.k
        k.raw(f".globl {NAME}_kernel\n.p2align 8\n.type {NAME}_kernel,@function\n{NAME}_kernel:")
        s.stamp(0)
        k.e(f"""s_load_dwordx16 s[4:19], s[0:1], 0
        s_load_dwordx4 s[20:23], s[0:1], 64
        v_readfirstlane_b32 s{sW}, v0
        v_and_b32 v1, 63, v0
        s_cmp_ge_u32 s2, 256
        s_cbranch_scc1 K_END
        v_lshlrev_b32 v1, 4, v1
        s_lshr_b32 s{sW}, s{sW}, 6
        s_and_b32 s{sW}, s{sW}, 7
        s_sub_u32 s{sT0}, s2, 32
        s_cbranch_scc0 G_WG
        s_getpc_b64 s[{sT2}:{sT3}]
        PCREF:
        s_lshr_b32 s{sT0}, s2, 3
        s_lshl_b32 s{sT0}, s{sT0}, 7
        v_lshlrev_b32 v2, 9, v0
        v_add_u32 v2, s{sT0}, v2
        v_cmp_gt_u32 vcc, CODE_END-PCREF-4, v2
        s_cbranch_vccz T_WG
        v_min_u32 v2, CODE_END-PCREF-4, v2
        global_load_dword v255, v2, s[{sT2}:{sT3}]
        s_branch T_WG
        G_WG:""")
        stT = k.snap()
        k.vm = []
        k.e(f"""s_lshr_b32 s{sT0}, s{sT0}, 3
        s_and_b32 s{sRT}, s2, 6
        s_lshr_b32 s{sT2}, s{sRT}, 1
        s_lshl_b32 s{sRT}, s{sRT}, 1
        s_and_b32 s{sT1}, s{sT0}, 3
        s_add_u32 s{sRT}, s{sRT}, s{sT1}
        s_lshr_b32 s{sDT}, s{sT0}, 2
        s_mul_i32 s{sT1}, s{sT1}, {par("rr", 2)}
        s_mul_i32 s{sT2}, s{sT2}, {par("rx", 1)}
        s_add_u32 s{sT1}, s{sT1}, s{sT2}
        s_mul_i32 s{sT2}, s{sDT}, {par("rd", 1)}
        s_add_u32 s{sT1}, s{sT1}, s{sT2}
        s_mul_i32 s{sT2}, s{sT1}, 37
        s_lshr_b32 s{sT2}, s{sT2}, 8
        s_mul_i32 s{sT2}, s{sT2}, 7
        s_sub_u32 s{sT1}, s{sT1}, s{sT2}
        s_lshl_b32 s{sT1}, s{sT1}, {0 if 'norot' in OPT else 2}
        s_and_b32 s{sT1}, s{sT1}, {0 if 'norot' in OPT else 31}
        s_mov_b32 s{sT2}, 0x06543210
        s_mov_b32 s{sT3}, 0x00654321
        s_lshr_b64 s[{sT2}:{sT3}], s[{sT2}:{sT3}], s{sT1}
        s_mov_b32 s{sPK}, s{sT2}
        s_and_b32 s{sHF}, s2, 1
        s_mul_i32 s{sFT}, s{sHF}, 7
        s_add_u32 s{sFT}, s{sFT}, s{sDT}
        s_and_b32 s{sSG}, s{sW}, 3
        s_lshl_b32 s{sTL}, s{sRT}, 2
        s_add_u32 s{sTL}, s{sTL}, s{sSG}
        s_and_b32 s{sS2}, s{sTL}, 0x38
        s_and_b32 s{sT1}, s{sRT}, 1
        s_add_u32 s{sS2}, s{sS2}, s{sT1}
        s_lshl_b32 s{sT1}, s{sSG}, 1
        s_add_u32 s{sS2}, s{sS2}, s{sT1}""")
        k.e(f"s_lshl_b32 s{sLW}, s{sSG}, 11\ns_cmp_ge_u32 s{sW}, 4\ns_cbranch_scc1 G_R1")
        st = k.snap()
        s.c_role()
        k.restore(st); k.e("G_R1:")
        s.h_role()
        k.restore(stT); k.vm = [dict(e, opt=True) for e in k.vm]; k.e("T_WG:")
        s.t_wg()
        k.e("K_END:\ns_endpgm\nCODE_END:")
        k.lines += s.cold
        ref = open(f"cdna_kernels/{NAME}.s.ref").read().split("\n")
        head = [l for l in ref if l.startswith(";") and "@launch" not in l]
        out = head + [f"; @launch grid=(256,1,1) block=(512,1,1) lds={LDS_BYTES}", '.amdgcn_target "amdgcn-amd-amdhsa--gfx950"', ".text"] + k.lines
        out += ['.section .rodata,"a"', ".p2align 6", f""".amdhsa_kernel {NAME}_kernel
  .amdhsa_next_free_vgpr 256
  .amdhsa_next_free_sgpr 102
  .amdhsa_accum_offset 256
  .amdhsa_group_segment_fixed_size 0
  .amdhsa_kernarg_size 80
  .amdhsa_user_sgpr_count 2
  .amdhsa_user_sgpr_kernarg_segment_ptr 1
  .amdhsa_system_sgpr_workgroup_id_x 1
  .amdhsa_float_denorm_mode_32 3
  .amdhsa_float_denorm_mode_16_64 3
.end_amdhsa_kernel"""]
        return "\n".join(out) + "\n"

if __name__ == "__main__":
    if len(sys.argv) == 1:
        open("t/v6.s", "w").write(G(False).build())
        open("t/v6ts.s", "w").write(G(True).build())
    for o in sys.argv[1:]:
        OPT.clear(); PAR.clear(); OPT.update(("sent", "r8"))
        for x in o.split("+"):
            if "=" in x: a, b = x.split("="); PAR[a] = float(b) if "." in b else int(b)
            else: OPT.add(x)
        open(f"t/y_{o}.s", "w").write(G("nots" not in OPT).build())
```

```python
import struct, sys
import asm2
from asm2 import K, Fill
asm2.PADS = False
NAME = "parallel_sum__spectral_gfnet__glu_gated_bilinear__prompt"
def fh(x): return "0x%08x" % struct.unpack("<I", struct.pack("<f", x))[0]
MB = 1 << 20
QT, WT, CSO, FL, HO, ZT = 0, 2 * MB, 4 * MB, 4 * MB + MB // 2, 5 * MB, 12 * MB
WS_BYTES = ZT + 29 * 65536
FQ, FW, FH, EPOCH = CSO, CSO + 128 * 1024, CSO + 256 * 1024, CSO + 192 * 1024
TS_OFF = 200 * MB
LDS_BYTES = 160 * 1024
SL = 16384
F_LDS, MISC = 8 * SL, 159744
FCS_L, ST_L = MISC, MISC + 2048
SX, SWG, SWU, SWD, SWS, SOUT, SC = 24, 28, 32, 36, 40, 44, 48
sW, sSG, sRT, sFT, sHF, sDT, sPK, sTAG, sS2, sTL, sA, sCNT, sLW, sLD, sT0, sT1, sT2, sT3, sT4, sT5, sU0, sU1 = range(52, 74)
sM = 74
sPC, sQB, sFP, sO0, sO1, sZB, sXM, sHS = 6, 3, 8, 9, 10, 11, 20, 51
sTS = 82
OPT = {"sent", "r8"}
PAR = {}
def par(n, d): return PAR.get(n, d)
VTAG = 14
SC1 = "sc1"
class _L:
    def __format__(s, f): return "" if "plain" in OPT else "sc1"
LSC = _L()
class _S:
    def __format__(s, f): return ["sc1", "sc1 nt", "sc0 sc1", "sc0 sc1 nt"][par("st", 0)]
STF = _S()

def R(b, n=4): return f"v[{b}:{b+n-1}]"
def S4(b): return f"s[{b}:{b+3}]"
def mf32(d, A, B, c=None): return f"v_mfma_f32_32x32x16_bf16 {R(d,16)}, {R(A)}, {R(B)}, {'0' if c is True else R(d if c in (None, False) else c,16)}"
def mf4(d, A, B, c0=False): return f"v_mfma_f32_4x4x4_16b_bf16 {R(d)}, {R(A,2)}, {R(B,2)}, {'0' if c0 else R(d)}"
def rot(dst, i, two=False): return f"s_bfe_u32 s{dst}, s{sO1 if two and par('ra', 6) else sPK}, {(4 << 16) | (4 * i):#x}"
at = lambda n: ("at", n)

class G:
    def __init__(s, tson):
        s.k = K(); s.tson = tson; s.cold = []; s.k.drop = {o[2:] for o in OPT if o.startswith('x_')}; s.inG = True; s.k.lognop = "nops" in OPT
    def nstamp(s, n):
        if "ta" in PAR:
            i, r = divmod(n - PAR["ta"], PAR.get("tb", 4))
            if r == 0 and 0 <= i < 9: s.stamp(int(i) + 1, True)
    def stamp(s, i, force=False):
        if "ta" in PAR and s.inG and i and not force: return
        if s.tson: s.k.e(f"{'s_memtime' if 'cyc' in OPT else 's_memrealtime'} s[{sTS+2*i}:{sTS+2*i+1}]")
    def ts_store(s):
        if not s.tson: return
        k = s.k
        k.e("s_waitcnt vmcnt(0) lgkmcnt(0)")
        if "dbg" in OPT:
            k.e(f"s_load_dwordx2 s[{SC}:{SC+1}], s[0:1], 64\ns_mov_b32 s{SC+2}, 256\ns_mov_b32 s{SC+3}, 0x20000\ns_mov_b64 exec, 1\ns_not_b32 s{sT0}, s{sTS}\nv_mov_b32 v8, s{sT0}\ns_waitcnt lgkmcnt(0)")
            k.e(f"buffer_atomic_umax v8, off, {S4(SC)}, 0")
            for slot, i in s.dbg:
                k.e(f"v_mov_b32 v9, s{sTS+2*i}\nbuffer_atomic_umax v9, off, {S4(SC)}, 0 offset:{4*slot}")
            return
        k.srd(SC, 22, MB, TS_OFF)
        for i in range(10): k.e(f"v_mov_b32 v{8+i}, s{sTS+2*i}")
        k.e(f"v_mov_b32 v18, s{sCNT}")
        k.e(f"s_lshl_b32 s{sT0}, s2, 3\ns_add_u32 s{sT0}, s{sT0}, s{sW}\ns_lshl_b32 s{sT0}, s{sT0}, 6\ns_mov_b64 exec, 1")
        for i in range(3): k.e(f"buffer_store_dwordx4 {R(8+4*i)}, off, {S4(SC)}, s{sT0} offset:{16*i}")
    def seq(s, text, tag=None):
        for l in text.split("\n"):
            if l.strip(): yield s.k.e(l, tag)
    def flag(s, soff, off=0, full=True, reg=12):
        if reg == 14: return s.k.e(f"v_mov_b32 v250, v{VTAG}\ns_mov_b64 exec, 255\nbuffer_store_dwordx4 v[248:251], v1, {S4(SWS)}, s{soff} offen {SC1}\ns_mov_b64 exec, -1", "flag")
        if full and par("fl", 8): return s.k.e(f"s_mov_b64 exec, {(1 << par('fl', 8)) - 1}\nbuffer_store_dwordx4 v[12:15], v1, {S4(SWS)}, s{soff} offen {SC1}\ns_mov_b64 exec, -1", "flag")
        if full: off = 8
        return s.k.e(f"s_mov_b64 exec, 1\nbuffer_store_dword v{VTAG}, off, {S4(SWS)}, s{soff} offset:{off} {SC1}\ns_mov_b64 exec, -1", "flag")
    def vp_addr(s, n, VP, PD):
        k = s.k
        k.e(f"v_bfe_u32 v{VP}, v1, 4, 2")
        if n == 0: k.e(f"s_lshr_b32 s{sT0}, s{sLD}, 1\nv_add_lshl_u32 v{VP}, v{VP}, s{sT0}, 7")
        else:
            if n == 1: k.e(f"v_min_u32 v{VP}, 2, v{VP}\ns_mov_b32 s{sT0}, s{sPC}")
            else: k.e(f"s_lshr_b64 s[{sT0}:{sT1}], s[{sPC}:{sPC+1}], 24")
            if "sent" in OPT: k.e(f"v_lshlrev_b32 v{VP}, 3, v{VP}\nv_bfe_u32 v{VP}, s{sT0}, v{VP}, 8\nv_lshrrev_b32 v{VP}, 1, v{VP}\nv_lshlrev_b32 v{VP}, 7, v{VP}")
            else: k.e(f"""v_lshlrev_b32 v{VP}, 3, v{VP}
            v_bfe_u32 v{VP}, s{sT0}, v{VP}, 8
            v_and_b32 v{PD}, 1, v{VP}
            v_lshrrev_b32 v{VP}, 1, v{VP}
            v_lshl_add_u32 v{VP}, v{PD}, 10, v{VP}
            v_add_lshl_u32 v{VP}, v{VP}, 0x400, 7""".replace(f"v_add_lshl_u32 v{VP}, v{VP}, 0x400, 7", f"v_add_u32 v{VP}, 0x400, v{VP}\nv_lshlrev_b32 v{VP}, 7, v{VP}"))
        k.e(f"v_bfe_u32 v{PD}, v1, 6, 1\nv_lshl_add_u32 v{VP}, v{PD}, 11, v{VP}")
        return f"buffer_load_dword v{PD}, v{VP}, {S4(SWS)}, s{sFP} offen offset:8 {SC1}"
    def cmp(s, regs, sent):
        k = s.k
        for i, r in enumerate(regs):
            d = "vcc" if len(regs) == 1 else f"s[{sM+2*i}:{sM+2*i+1}]"
            k.e(f"v_cmp_eq_u32 {d}, -1, v{r}" if sent else f"v_cmp_ne_u32 {d}, s{sTAG}, v{r}")
        return 4 * len(regs)
    def fin(s, n, lab):
        k = s.k
        for i in range(1, n): k.e(f"s_or_b64 s[{sM}:{sM+1}], s[{sM}:{sM+1}], s[{sM+2*i}:{sM+2*i+1}]")
        k.e(f"s_cbranch_vccnz {lab}" if n == 1 else f"s_cbranch_scc1 {lab}")
    def check(s, regs, reload, sent=False, pre=True, sleep=1):
        k = s.k
        ok, lp = k.label("ok"), k.label("spin")
        if pre: s.cmp(regs, sent)
        if "nochk" in OPT and s.inG:
            s.fin(len(regs), ok); k.e(f"{ok}:")
            return 2 + 6 * len(regs)
        s.fin(len(regs), lp)
        k.cond_begin()
        hot, k.lines = k.lines, s.cold
        k.e(f"{lp}:\ns_sleep {sleep}\n{reload}\ns_waitcnt vmcnt(0)\ns_add_u32 s{sCNT}, s{sCNT}, 1\ns_cmp_ge_u32 s{sCNT}, 0x4000\ns_cbranch_scc1 {ok}")
        s.cmp(regs, sent); s.fin(len(regs), lp)
        k.e(f"s_branch {ok}")
        k.lines = hot
        k.cond_end()
        k.e(f"{ok}:")
        return 2 + 6 * len(regs)
    def get_tag(s):
        s.k.e(f"s_or_b32 s{sTAG}, s{sTAG}, 0x40004000\ns_add_u32 s{sTAG}, s{sTAG}, 1\ns_and_b32 s{sTAG}, s{sTAG}, 0xbfffbfff\nv_mov_b32 v{VTAG}, s{sTAG}\ns_mov_b32 s{sCNT}, 0")
    def load_epoch(s, a=sT4):
        s.k.e(f"s_add_u32 s{a}, s22, {EPOCH:#x}\ns_addc_u32 s{a+1}, s23, 0\ns_load_dword s{sTAG}, s[{a}:{a+1}], 8")
    def split_hilo(s, dst, src, t):
        return f"""v_cvt_pk_bf16_f32 v{t}, v{src}, v{src}
        v_and_b32 v{t}, 0xffff0000, v{t}
        v_sub_f32 v{t}, v{src}, v{t}
        v_cvt_pk_bf16_f32 v{dst}, v{src}, v{t}"""

    def checkm(s, regs, reload, t):
        mx = f"v_max3_u32 v{t}, v{regs[0]}, v{regs[1]}, v{regs[2]}\nv_max_u32 v{t}, v{t}, v{regs[3]}" if len(regs) == 4 else f"v_max_u32 v{t}, v{regs[0]}, v{regs[1]}"
        return s.k.e(mx) + s.check([t], reload + "\n" + mx, sent=True)
    def x_dma(s, b, VX):
        k = s.k
        k.e(f"s_lshl1_add_u32 m0, s{sLW}, {SL*(b+1)}\n{rot(sT0, b)}\ns_lshl_b32 s{sT0}, s{sT0}, 7\ns_add_u32 s{sU0}, s{sT0}, s{sU1}")
        for i in range(4): yield k.e(f"buffer_load_dwordx4 v{VX+i}, {S4(SX)}, s{sU0} offen offset:{i*1024} lds", ("X", b))
    def w_dma(s, i, VW):
        k = s.k; P, ii = divmod(i, 7); slot = i % 6
        k.e(f"{rot(sT4, ii)}\ns_mul_i32 s{sT4}, s{sT4}, {64*3584}")
        if par("fb2", 0): k.e(f"s_{'sub' if P else 'add'}_u32 s{sT4}, s{sT4}, s{sO1}")
        k.e(f"s_add_u32 s{sT5}, s{sT4}, {1792*P + 8*3584 - 1024}")
        if P: k.e(f"s_add_u32 s{sT4}, s{sT4}, 1792")
        for u in range(2):
            k.e(f"s_add_u32 m0, s{sLW}, {slot*SL + u*8192}")
            for h in range(2): yield k.e(f"buffer_load_dwordx4 v{VW+u}, {S4(SWU if u else SWG)}, s{sT4+h} offen offset:{1024*h} lds", ("W", i))
    def w_addr(s, T, VW):
        s.k.e(f"""v_lshrrev_b32 v{T}, 7, v1
        v_mul_u32_u24 v{VW}, 3584, v{T}
        v_and_b32 v{T}, 2, v{T}
        v_bfe_u32 v{T+1}, v1, 5, 2
        v_xor_b32 v{T}, v{T}, v{T+1}
        v_lshl_add_u32 v{VW}, v{T}, 5, v{VW}
        v_and_b32 v{T}, 16, v1
        s_mul_i32 s{sT0}, s{sSG}, {16*3584}
        s_lshl_b32 s{sT1}, s{sFT}, 7
        s_add_u32 s{sT0}, s{sT0}, s{sT1}
        v_add3_u32 v{VW}, v{VW}, v{T}, s{sT0}
        v_xor_b32 v{VW+1}, 32, v{VW}""")
        s.k.srd(SWG, 12, 448 * 3584); s.k.srd(SWU, 14, 448 * 3584)
        if par("fb2", 0): s.k.e(f"s_bitcmp1_b32 s{sRT}, 1\ns_cselect_b32 s{sO1}, 1792, 0")
    def unit(s, d, P, i):
        if P: return f"s_bfe_u32 s{d}, s{sPC + (i >> 2)}, {(8 << 16) | (8 * (i & 3)):#x}"
        return f"{rot(d, i, True)}\ns_add_u32 s{d}, s{d}, s{sLD}"
    def wd_dma(s, P, i, slot, VD):
        k = s.k
        k.e(f"{s.unit(sT4, P, i)}\ns_mul_i32 s{sT4}, s{sT4}, {32*896}\ns_lshl1_add_u32 m0, s{sLW}, {slot*SL}")
        if par("fb2", 0): k.e(f"s_mul_i32 s{sT5}, s{sO1}, 448\ns_{'sub' if P else 'add'}_u32 s{sT4}, s{sT4}, s{sT5}")
        for e in range(4):
            d = 896 * 896 * P if e == 0 else 8 * 896 - 1024
            if d: k.e(f"s_add_u32 s{sT4}, s{sT4}, {d}")
            yield k.e(f"buffer_load_dwordx4 v{VD}, {S4(SWD)}, s{sT4} offen offset:{1024*e} lds", ("D", P, i))
    def wd_addr(s, T, VD, TB, base):
        s.k.e(f"""v_bfe_u32 v{T}, v1, 8, 1
        v_bfe_u32 v{T+1}, v1, 6, 2
        v_lshrrev_b32 v{T+2}, 9, v1
        v_lshl_add_u32 v{TB}, v{T+2}, 2, v{T+1}
        v_lshlrev_b32 v{TB}, 7, v{TB}
        v_bfe_u32 v{T+3}, v1, 7, 1
        v_lshl_add_u32 v{TB}, v{T+3}, 6, v{TB}
        v_lshl_add_u32 v{TB}, v{T}, 5, v{TB}
        v_bfe_u32 v{T+3}, v1, 4, 2
        v_lshl_add_u32 v{TB}, v{T+3}, 3, v{TB}
        s_lshl1_add_u32 s{sT0}, s{sLW}, {base}
        v_add_u32 v{TB}, s{sT0}, v{TB}
        v_xor_b32 v{TB+1}, 64, v{TB}
        v_lshrrev_b32 v{T+1}, 7, v1
        v_mul_u32_u24 v{VD}, 896, v{T+1}
        v_lshlrev_b32 v{T}, 6, v{T}
        v_and_b32 v{T+3}, 0x70, v1
        v_xor_b32 v{T}, v{T}, v{T+3}
        s_lshl_b32 s{sT1}, s{sDT}, 7
        v_add3_u32 v{VD}, v{VD}, v{T}, s{sT1}""")
        s.k.srd(SWD, 16, 1792 * 896)
    def scal(s):
        k = s.k
        if par("ra", 6): k.e(f"""s_add_u32 s{sT1}, s{sRT}, {par("rb", 0)}
        s_and_b32 s{sT1}, s{sT1}, 3
        s_and_b32 s{sT2}, s{sRT}, 3
        s_mul_i32 s{sT1}, s{sT1}, {par("ra", 6)}
        s_mul_i32 s{sT2}, s{sT2}, {7 - par("rr", 1)}
        {rot(sT0, 0)}
        s_add_u32 s{sT1}, s{sT1}, s{sT0}
        s_add_u32 s{sT1}, s{sT1}, s{sT2}
        s_mul_i32 s{sT2}, s{sT1}, 37
        s_lshr_b32 s{sT2}, s{sT2}, 8
        s_mul_i32 s{sT2}, s{sT2}, 7
        s_sub_u32 s{sT1}, s{sT1}, s{sT2}
        s_lshl_b32 s{sT1}, s{sT1}, 2
        s_mov_b32 s{sT2}, 0x06543210
        s_mov_b32 s{sT3}, 0x00654321
        s_lshr_b64 s[{sT2}:{sT3}], s[{sT2}:{sT3}], s{sT1}
        s_mov_b32 s{sO1}, s{sT2}""")
        k.e(f"""s_lshl1_add_u32 s{sZB}, s{sRT}, s{sHF}
        s_mul_i32 s{sA}, s{sZB}, {224*1024}
        s_add_u32 s{sA}, s{sA}, {HO}
        s_lshl_b32 s{sFP}, s{sZB}, 12
        s_add_u32 s{sFP}, s{sFP}, {FH}
        s_lshl_b32 s{sZB}, s{sZB}, 11
        s_add_u32 s{sZB}, s{sZB}, {ZT}
        s_mul_i32 s{sHS}, s{sTL}, 28
        s_add_u32 s{sHS}, s{sHS}, s{sFT}
        s_lshl_b32 s{sHS}, s{sHS}, 12
        s_add_u32 s{sHS}, s{sHS}, {HO}
        s_mul_i32 s{sLD}, s{sSG}, 7
        {rot(sT0, 0, par("rc", 1))}
        s_lshl1_add_u32 s{sT0}, s{sT0}, s{sSG}
        s_lshr_b32 s{sT3}, s{sSG}, 1
        s_lshl_b32 s{sPC}, s{sT3}, 24
        s_mov_b32 s{sPC+1}, 0x010101
        s_mul_i32 s{sT3}, s{sT3}, 14""")
        for i in range(7):
            k.e(f"s_add_u32 s{sT1}, s{sT0}, {4*i - (14 if i > 3 else 0)}")
            if i == 3: k.e(f"s_sub_u32 s{sT1}, s{sT1}, s{sT3}")
            k.e(f"""s_sub_u32 s{sT2}, s{sT1}, 14
            s_cselect_b32 s{sT1}, s{sT1}, s{sT2}
            s_lshl_b32 s{sT1}, s{sT1}, {8*(i&3)+1}
            s_or_b32 s{sPC+(i>>2)}, s{sPC+(i>>2)}, s{sT1}""")
    def hld(s, P, i, r, sc=LSC):
        o = []
        for S in range(2):
            p = f"{s.unit(sT4, P, i)}\ns_lshl_b32 s{sT4}, s{sT4}, 11\ns_add_u32 s{sT4}, s{sT4}, s{sA}\n" + (f"s_add_u32 s{sT4}, s{sT4}, {56*1024}\n" if P else "") if S == 0 else f"s_add_u32 s{sT4}, s{sT4}, {112*1024}\n"
            for kk in range(2):
                o.append(p + f"buffer_load_dwordx4 {R(r+8*kk+4*S)}, v1, {S4(SWS)}, s{sT4} offen offset:{1024*kk} {sc}"); p = ""
        return o
    def gen_F(s, n, T, B):
        k = s.k
        k.e(f"""v_bfe_u32 v{T}, v1, 5, 4
        s_lshl_b32 s{sT0}, s{sFT}, 4
        v_add_u32 v{T}, s{sT0}, v{T}
        v_bfe_u32 v{T+1}, v1, 4, 1
        v_lshl_add_u32 v{T+2}, v{T}, 1, v{T+1}
        v_cmp_eq_u32 vcc, 1, v{T+2}
        v_mov_b32 v{T+3}, 224
        v_cvt_f32_u32 v{T+1}, v{T+1}
        v_cndmask_b32 v{T}, v{T}, v{T+3}, vcc
        v_mul_f32 v{T+1}, 0x3e800000, v{T+1}
        v_cvt_f32_u32 v{T}, v{T}
        v_cndmask_b32 v{T+1}, v{T+1}, 0, vcc
        v_mul_f32 v{T}, {fh(1/448)}, v{T}
        v_lshrrev_b32 v{T+2}, 9, v1
        v_lshlrev_b32 v{T+2}, 3, v{T+2}
        s_xor_b32 s{sT1}, s{sW}, {4*par("fsw", 0)}
        {rot(sT0, 0)}
        s_lshl_b32 s{sT0}, s{sT0}, 2
        s_add_u32 s{sT0}, s{sT0}, s{sT1}
        s_lshl_b32 s{sT0}, s{sT0}, 4
        s_sub_u32 s{sT0}, s{sT0}, 448
        v_add_u32 v{T+2}, s{sT0}, v{T+2}
        v_cvt_f32_i32 v{T+2}, v{T+2}
        v_fmac_f32 v{T+1}, v{T}, v{T+2}
        s_lshl_b32 s{sT1}, s{sT1}, 10
        s_add_u32 s{sT1}, s{sT1}, {F_LDS}
        v_add_u32 v{T+3}, s{sT1}, v1
        v_mov_b32 v{T+2}, 0
        s_mov_b32 s{sT0}, 0x3f803f80""")
        s.nstamp(602)
        for i in range(n):
            if i == 1: s.nstamp(603)
            r = B + 8 * (i & 1)
            for j in range(8):
                if 128 * i + j: k.e(f"v_fmamk_f32 v{r+j}, v{T}, {fh(128*i+j)}, v{T+1}")
            for j in range(8): k.e(f"v_cos_f32 v{r+j}, v{r+j if 128*i+j else T+1}")
            o = B + 16 + 4 * (i & 1)
            for j in range(4): k.e(f"v_cvt_pk_bf16_f32 v{o+j}, v{r+2*j}, v{r+2*j+1}")
            k.e(f"ds_write_b128 v{T+3}, {R(o)} offset:{i*8192}")
            for j in range(4): k.e(f"v_dot2c_f32_bf16 v{T+2}, s{sT0}, v{o+j}")
        k.e(f"""s_lshl_b32 s{sT1}, s{sW}, 8
        s_add_u32 s{sT1}, s{sT1}, {FCS_L}
        v_lshrrev_b32 v{T+3}, 2, v1
        v_add_u32 v{T+3}, s{sT1}, v{T+3}
        ds_write_b32 v{T+3}, v{T+2}""")
    def x_addr(s, T, XRD):
        s.k.e(f"""v_bfe_u32 v{T}, v1, 4, 5
        v_bfe_u32 v{T+1}, v1, 5, 3
        v_lshrrev_b32 v{T+2}, 9, v1
        v_xor_b32 v{T+1}, v{T+1}, v{T+2}
        v_lshlrev_b32 v{T+1}, 4, v{T+1}
        v_lshl_add_u32 v{XRD}, v{T}, 7, v{T+1}
        s_lshl1_add_u32 s{sT0}, s{sLW}, {SL}
        v_add_u32 v{XRD}, s{sT0}, v{XRD}
        v_xor_b32 v{XRD+1}, 32, v{XRD}
        v_xor_b32 v{XRD+2}, 64, v{XRD}
        v_xor_b32 v{XRD+3}, 96, v{XRD}""")
    def xrd(s, b, XRD, r):
        if b == 4:
            for i in range(4): s.k.e(f"v_add_u32 v{XRD+i}, {4*SL}, v{XRD+i}")
        for i in range(4): s.k.e(f"ds_read_b128 {R(r+4*i)}, v{XRD+i} offset:{(b&3)*SL}")
    def bar(s, *tags):
        k = s.k; idx = []
        for v in tags:
            assert v in k.issued, v
            idx += [(i, v) for i, e in enumerate(k.vm) if e["tag"] == v]
        k.wait(vm=max(idx, key=lambda x: x[0])[1] if idx else None, lg="all")
        k.e("s_barrier")
    def wa_addr(s, WA, base):
        s.k.e(f"""v_lshrrev_b32 v{WA}, 5, v1
        v_and_b32 v{WA}, 16, v{WA}
        v_xor_b32 v{WA}, v{WA}, v1
        s_lshl1_add_u32 s{sT0}, s{sLW}, {base}
        v_add_u32 v{WA}, s{sT0}, v{WA}""")
        for q in range(1, 4): s.k.e(f"v_xor_b32 v{WA+q}, {q*32}, v{WA}")
    def wr(s, WA, acc, t, S, d):
        for q in range(4):
            yield 8 + s.k.e(f"ds_write_b128 v{WA+q}, {R(acc+4*q)} offset:{t*SL + q*1024}")
            if (t, S) == (1, 0): yield s.k.e(f"v_add_u32 v{WA+q}, {d*SL}, v{WA+q}")
    def out_pre(s, SS, VO, VN, VR, TMP, XRES, ZN, now=True):
        k = s.k
        if par("o4", 1):
            S = SS[0]
            k.srd(SOUT, 18, 2048 * 896); k.srd(SX, 4, 2048 * 896)
            k.e(f"""s_and_b32 s{sO0}, s{sS2}, 0x39
            s_lshl2_add_u32 s{sO0}, s{sHF}, s{sO0}
            s_mul_i32 s{sO0}, s{sO0}, 896
            s_lshl_b32 s{sT1}, s{sDT}, 7
            s_add_u32 s{sO0}, s{sO0}, s{sT1}
            s_mul_i32 s{sT0}, s{sSG}, 12
            s_and_b32 s{sT0}, s{sT0}, 0x14
            s_cmp_eq_u32 s{sSG}, 3
            s_cselect_b32 s{sT0}, 0x14, s{sT0}
            v_bfe_u32 v{VN}, v1, 7, 1
            v_bfe_u32 v{VR}, v1, 8, 1
            v_lshl_add_u32 v{VN}, v{VR}, 3, v{VN}
            v_lshrrev_b32 v{VR}, 9, v1
            v_lshl_add_u32 v{VN}, v{VR}, 1, v{VN}
            v_add_u32 v{VN}, s{sT0}, v{VN}
            v_mul_u32_u24 v{VO}, {64*896}, v{VN}
            v_and_b32 v{VR}, 0x70, v1
            v_add_u32 v{VO}, v{VO}, v{VR}
            v_lshlrev_b32 v{VN}, 4, v{VN}
            buffer_load_dwordx4 {R(XRES+4*S)}, v{VO}, {S4(SX)}, s{sO0} offen offset:{1792*S}""")
            zl = [f"buffer_load_dword v{ZN+2*S}, v{VN}, {S4(SWS)}, s{sU0} offen offset:{1024*S} {SC1}"]
            if now: k.e(zl[0])
            k.e(f"""v_bfe_u32 v{VR}, v1, 6, 1
            v_lshlrev_b32 v{VR}, 14, v{VR}
            v_and_b32 v{TMP}, 0x30, v1
            v_lshl_add_u32 v{VR}, v{TMP}, 6, v{VR}
            v_lshlrev_b32 v{TMP}, 1, v{TMP}
            v_xor_b32 v{TMP}, v{TMP}, v{VN}
            v_add_u32 v{VR}, v{VR}, v{TMP}
            v_xor_b32 v{VR+1}, 528, v{VR}
            v_add_u32 v{VR+2}, {5*SL}, v{VR}
            v_add_u32 v{VR+3}, {5*SL}, v{VR+1}""")
            return zl
        k.srd(SOUT, 18, 2048 * 896); k.srd(SX, 4, 2048 * 896)
        k.e(f"""s_and_b32 s{sO0}, s{sS2}, 0x39
        s_lshl2_add_u32 s{sO0}, s{sHF}, s{sO0}
        s_lshl_b32 s{sT1}, s{sSG}, 9
        s_add_u32 s{sO0}, s{sO0}, s{sT1}
        s_mul_i32 s{sO0}, s{sO0}, 896
        s_lshl_b32 s{sT1}, s{sDT}, 7
        s_add_u32 s{sO0}, s{sO0}, s{sT1}
        s_add_u32 s{sO1}, s{sO0}, {256*896}
        v_lshrrev_b32 v{VN}, 8, v1
        v_mul_u32_u24 v{VO}, {64*896}, v{VN}
        v_bfe_u32 v{VR}, v1, 4, 4
        v_lshl_add_u32 v{VO}, v{VR}, 3, v{VO}
        s_lshl_b32 s{sT0}, s{sSG}, 3
        v_add_u32 v{VN}, s{sT0}, v{VN}
        v_lshlrev_b32 v{VN}, 4, v{VN}""")
        for S in SS:
            for g in range(2): k.e(f"buffer_load_dwordx2 {R(XRES+4*S+2*g, 2)}, v{VO}, {S4(SX)}, s{sO0+g} offen offset:{1792*S}")
        zl = [f"buffer_load_dword v{ZN+2*S+g}, v{VN}, {S4(SWS)}, s{sU0} offen offset:{1024*S + 64*g} {SC1}" for S in SS for g in range(2)]
        k.e("\n".join(zl))
        k.e(f"""v_bfe_u32 v{VR}, v1, 7, 1
        v_lshlrev_b32 v{VR}, 14, v{VR}
        v_and_b32 v{TMP}, 0x70, v1
        v_lshl_add_u32 v{VR}, v{TMP}, 5, v{VR}
        v_xor_b32 v{TMP}, v{TMP}, v{VN}
        v_add_u32 v{VR}, v{VR}, v{TMP}
        v_xor_b32 v{VR+1}, 64, v{VR}
        v_add_u32 v{VR+2}, {5*SL}, v{VR}
        v_add_u32 v{VR+3}, {5*SL}, v{VR+1}""")
        return zl
    def out_sum(s, SS, SUM, XRES):
        for S in SS[::-1]:
            for g in (1, 0):
                d = SUM + 8 * S + 4 * g
                for e in range(4):
                    x = XRES + 4 * S + 2 * g + (e >> 1)
                    yield s.k.e(f"v_and_b32 v{d+e}, 0xffff0000, v{x}" if e & 1 else f"v_lshlrev_b32 v{d+e}, 16, v{x}")
    def out_zn(s, SS, SUM, ZN, zl, TMP):
        k = s.k; I = [2 * S + g for S in SS for g in range(2)]
        if par("o4", 1):
            z = ZN + 2 * SS[0]
            s.check([z], zl[0], sent=True)
            k.e(f"v_lshlrev_b32 v{z}, 16, v{z}")
            for e in range(8): k.e(f"v_fma_f32 v{SUM+8*SS[0]+e}, v{z}, {'-0.5' if e & 1 else '0.5'}, v{SUM+8*SS[0]+e}")
            return
        s.checkm([ZN + i for i in I], "\n".join(zl), TMP)
        for i in I: k.e(f"v_lshlrev_b32 v{ZN+i}, 16, v{ZN+i}")
        for i in I:
            for e in range(4): k.e(f"v_fma_f32 v{SUM+4*i+e}, v{ZN+i}, {'-0.5' if e & 1 else '0.5'}, v{SUM+4*i+e}")
    def out_fin(s, S, SUM, RB, VR, VO):
        k = s.k
        if par("fp", 1): k.e("s_setprio 0")
        for g in range(2):
            for role in range(2):
                for w in range(4): k.e(f"ds_read_b128 {R(RB+32*g+16*role+4*w)}, v{VR+2*(role == S)+g} offset:{2*(1-role)*SL + w*4096}")
        for g in range(2):
            d = SUM + 8 * S + 4 * g; b = RB + 32 * g
            for w in range(0, 8, 2):
                if par("pk", 1):
                    for e in (0, 2): k.e(f"v_pk_add_f32 {R(b+4*w+e,2)}, {R(b+4*w+e,2)}, {R(b+4*w+4+e,2)}")
                    for e in (0, 2): k.e(f"v_pk_add_f32 {R(d+e,2)}, {R(d+e,2)}, {R(b+4*w+e,2)}")
                    continue
                for e in range(4): k.e(f"v_add_f32 v{b+4*w+e}, v{b+4*w+e}, v{b+4*w+4+e}")
                for e in range(4): k.e(f"v_add_f32 v{d+e}, v{d+e}, v{b+4*w+e}")
            if par("o4", 1):
                k.e(f"v_cvt_pk_bf16_f32 v{d-2*g}, v{d}, v{d+1}\nv_cvt_pk_bf16_f32 v{d-2*g+1}, v{d+2}, v{d+3}")
                if g: k.e(f"buffer_store_dwordx4 {R(d-4)}, v{VO}, {S4(SOUT)}, s{sO0} offen offset:{1792*S} {['', 'sc1', 'nt', 'sc0 sc1', 'sc1 nt'][par('os', 1)]}")
                continue
            k.e(f"v_cvt_pk_bf16_f32 v{d}, v{d}, v{d+1}\nv_cvt_pk_bf16_f32 v{d+1}, v{d+2}, v{d+3}")
            k.e(f"buffer_store_dwordx2 {R(d,2)}, v{VO}, {S4(SOUT)}, s{sO0+g} offen offset:{1792*S} {['', 'sc1', 'nt', 'sc0 sc1', 'sc1 nt'][par('os', 1)]}")
        if s.tson: k.e("s_waitcnt vmcnt(0)")
    def clears(s, CLR):
        k = s.k
        for i in range(4): k.e(f"v_mov_b32 v{CLR+i}, -1")
        k.e(f"s_lshl_b32 s{sT5}, s{sFT}, 7\ns_add_u32 s{sT5}, s{sT5}, s{sTL}\ns_lshl_b32 s{sT5}, s{sT5}, 10")
        st = lambda o: k.e(f"s_add_u32 s{sT4}, s{sT5}, {o}\nbuffer_store_dwordx4 {R(CLR)}, v1, {S4(SWS)}, s{sT4} offen {STF}", "C")
        for o in (QT, QT + 65536, ZT, ZT + 65536): st(o)
        L = k.label("nonyq")
        k.e(f"s_cmp_lg_u32 s{sFT}, 0\ns_cbranch_scc1 {L}")
        k.cond_begin()
        for o in (QT, ZT): st(o + 28 * 65536)
        k.cond_end()
        k.e(f"{L}:")
    def finish(s):
        k = s.k
        s.ts_store()
        k.e("s_endpgm")
        if "flows" in OPT: k.show_flows()
        if "log" in OPT: print("  nops", k.nops)
        k.issued = set(); k.lw = {}
    CSL = [6, 7, 8, 9, 2, 3, 4]

    def c_role(s):
        k = s.k; F = Fill(k); s.dbg = [(1, 0), (2, 2), (3, 3), (4, 4), (5, 6), (6, 8), (7, 1)]
        TRL, TRH, XRD, AR, ACC, XF = 2, 6, 10, 16, 48, 112
        VX, VW, VD, NR, NM, TB, NT, VO, VN, VR, TMP = 224, 228, 230, 231, 232, 234, 240, 248, 249, 250, 15
        WA, XRES, ZN = 2, 224, 236
        T = ACC
        done = {}
        def mark(n):
            done[n] = F.t
            if "log" in OPT: print("  C", n, "at", F.t)
        def force(n):
            while n not in done: F.run(40); F.t += (n not in done)
        k.e(f"""v_lshrrev_b32 v{T}, 7, v1
        v_mul_u32_u24 v{VX}, {64*896}, v{T}
        v_lshrrev_b32 v{T}, 4, v1
        v_xor_b32 v{T}, v{T}, v1
        v_and_b32 v{T}, 0x70, v{T}
        v_add_u32 v{VX}, v{T}, v{VX}
        v_xor_b32 v{VX+1}, 64, v{VX}
        v_add_u32 v{VX+2}, {2*(8*64*896-1024)}, v{VX}
        v_add_u32 v{VX+1}, {8*64*896-1024}, v{VX+1}
        v_add_u32 v{VX+3}, {2*(8*64*896-1024)}, v{VX+1}
        s_mul_i32 s{sU1}, s{sS2}, 896
        s_waitcnt lgkmcnt(0)""")
        s.nstamp(600)
        k.srd(SX, 4, 2048 * 896)
        NWC = par("nwc", 2)
        def hflag(n): return 6 + s.flag(sQB) + k.e(f"s_add_u32 s{sQB}, s{sQB}, {128*1024}")
        def ldq():
            for b in range(7 + NWC):
                if b == par("cpos", 99): s.clears(NT)
                yield from s.x_dma(b, VX) if b < 7 else s.w_dma(b - 7, VW)
            if par("cpos", 99) == 9: s.clears(NT)
        lq = ldq()
        def issue(n):
            for _ in range(n): next(lq, None)
        issue(par("x0n", 8))
        s.load_epoch(sPC)
        k.srd(SWS, 22, WS_BYTES)
        s.stamp(1); s.nstamp(601)
        s.gen_F(4 - par("fsw", 0), T, T + 8)
        s.nstamp(604)
        issue(par("ahead", 16) - par("x0n", 8))
        s.nstamp(605)
        s.x_addr(T, XRD)
        s.w_addr(T, VW)
        k.e(f"""v_bfe_u32 v{T}, v1, 8, 1
        v_bfe_u32 v{T+1}, v1, 6, 2
        v_lshrrev_b32 v{T+2}, 9, v1
        v_lshl_add_u32 v{T+3}, v{T+2}, 3, v{T+1}
        v_lshlrev_b32 v{T+3}, 7, v{T+3}
        v_lshl_add_u32 v{TRL}, v{T}, 13, v{T+3}
        v_and_or_b32 v{T+4}, v{T+1}, 2, v{T}
        v_lshl_add_u32 v{TRL}, v{T+4}, 5, v{TRL}
        v_bfe_u32 v{T+4}, v1, 4, 2
        v_lshl_add_u32 v{TRL}, v{T+4}, 3, v{TRL}""")
        for j in range(1, 4): k.e(f"v_xor_b32 v{TRL+j}, {32*j}, v{TRL}")
        for j in range(4): k.e(f"v_add_u32 v{TRH+j}, {4*SL}, v{TRL+j}")
        k.e(f"""v_bfe_u32 v{TMP}, v1, 4, 5
        s_lshl_b32 s{sT0}, s{sSG}, 7
        s_add_u32 s{sT0}, s{sT0}, {ST_L}
        v_lshl_add_u32 v{TMP}, v{TMP}, 2, s{sT0}
        s_lshl_b32 s{sQB}, s{sTL}, 4
        s_add_u32 s{sQB}, s{sQB}, s{sFT}
        s_lshl_b32 s{sQB}, s{sQB}, 7
        s_add_u32 s{sQB}, s{sQB}, {FH}
        s_waitcnt lgkmcnt(0)""")
        s.get_tag()
        s.stamp(9); s.inG and s.nstamp(606)
        SQ, SM, ONE, M4 = ACC + 16, ACC + 24, ACC + 32, ACC + 34
        k.e(f"""v_mov_b32 v{ONE}, 0x3f803f80
        v_mov_b32 v{ONE+1}, 0x3f803f80
        s_mov_b32 s{sM}, 0x22222222
        s_mov_b32 s{sM+1}, 0x22222222
        s_mov_b32 s{sM+2}, 0x44444444
        s_mov_b32 s{sM+3}, 0x44444444
        s_mov_b32 s{sM+4}, 0x88888888
        s_mov_b32 s{sM+5}, 0x88888888""")
        for b in range(7):
            if b in (1, 3, 5, 6): s.bar(("X", b))
            else: k.wait(vm=("X", b))
            if b == 0: s.stamp(2)
            if b == 6: s.stamp(3)
            if b == par("xp", 6) and par("prio", 1): k.e("s_setprio 1")
            s.nstamp(500 + b)
            s.xrd(b, XRD, XF + 16 * b)
            issue(4)
            s.nstamp(520 + b)
            if b == 0 and not par("late", 0) & 1: s.scal()
            if b == 1 and not par("late", 0) & 1: s.wd_addr(T, VD, TB, 0)
            if b == 2 and not par("late", 0) & 1:
                for i in range(2): k.e(f"v_add_u32 v{TB+2+i}, {4*SL}, v{TB+i}\nv_add_u32 v{TB+4+i}, {8*SL}, v{TB+i}")
            for bb in ([b] if not par("cp", 1) else [b - 1] if b < 6 else [5, 6]):
                for r in range(4 * (bb >= 0)):
                    y = XF + 16 * bb + 4 * r; z = bb + r == 0
                    k.e(mf4(SQ, y, y, z)); k.e(mf4(SM, ONE, y, z)); k.e(mf4(SQ + 4, y + 2, y + 2, z)); k.e(mf4(SM + 4, ONE, y + 2, z))
        issue(99)
        s.nstamp(507)
        S1, S2 = SM, SQ
        k.e(f"""v_add_f32 v{SQ}, v{SQ}, v{SQ+4}
        v_add_f32 v{SQ+1}, v{SQ+1}, v{SQ+5}
        v_add_f32 v{SQ+2}, v{SQ+2}, v{SQ+6}
        v_add_f32 v{SQ+3}, v{SQ+3}, v{SQ+7}
        v_add_f32 v{S1}, v{SM}, v{SM+4}
        v_cndmask_b32 v{SQ}, v{SQ}, v{SQ+1}, s[{sM}:{sM+1}]
        v_mov_b32 v{S1+1}, v{S1}
        v_cndmask_b32 v{SQ}, v{SQ}, v{SQ+2}, s[{sM+2}:{sM+3}]
        v_cndmask_b32 v{SQ}, v{SQ}, v{SQ+3}, s[{sM+4}:{sM+5}]
        v_permlane32_swap_b32 v{S1}, v{S1+1}
        v_mov_b32 v{S2+1}, v{S2}
        v_add_f32 v{S1}, v{S1}, v{S1+1}
        v_mul_f32 v{S1}, {fh(1/448)}, v{S1}
        v_permlane32_swap_b32 v{S2}, v{S2+1}
        v_cvt_pk_bf16_f32 v{M4}, -v{S1}, -v{S1}
        v_add_f32 v{S2}, v{S2}, v{S2+1}
        v_mul_f32 v{S2}, {fh(1/448)}, v{S2}
        ds_write_b32 v{TMP}, v{M4}
        v_fma_f32 v{S2}, -v{S1}, v{S1}, v{S2}
        v_max_f32 v{S2}, 0, v{S2}
        v_cvt_pk_bf16_f32 v{S2}, v{S2}, v{S2}
        v_and_b32 v{S2}, 0xffff0000, v{S2}
        v_add_f32 v{S2}, {fh(1e-5)}, v{S2}
        v_cvt_pk_bf16_f32 v{S2}, v{S2}, v{S2}
        v_and_b32 v{S2}, 0xffff0000, v{S2}
        v_sqrt_f32 v{S2}, v{S2}
        v_and_b32 v{S1}, 0xffff0000, v{M4}
        v_cvt_pk_bf16_f32 v{S2}, v{S2}, v{S2}
        v_and_b32 v{S2}, 0xffff0000, v{S2}
        v_rcp_f32 v{NR}, v{S2}
        s_nop 0
        ds_write_b32 v{TMP}, v{NR} offset:512
        v_mul_f32 v{NM}, v{S1}, v{NR}""")
        kmaj = lambda its: [(i, kk, j) for i in its for kk in range(4) for j in range(4)]
        tmaj = lambda its: [(i, kk, j) for j in range(4) for i in its for kk in range(4)]
        nt = par("nt", 2)
        M = kmaj(range(6)) + tmaj([6]) + tmaj([7]) + kmaj(range(8, 14 - nt)) + tmaj(range(14 - nt, 14))
        last = {}
        for m, (i, kk, j) in enumerate(M): last[i // 7, j] = m
        def norm():
            for kk in range(28):
                for h in range(2):
                    x = XF + 4 * kk + 2 * h; t = NT + 4 * h
                    yield from s.seq(f"""v_lshlrev_b32 v{t}, 16, v{x}
                    v_and_b32 v{t+1}, 0xffff0000, v{x}
                    v_lshlrev_b32 v{t+2}, 16, v{x+1}
                    v_and_b32 v{t+3}, 0xffff0000, v{x+1}
                    v_fma_f32 v{t}, v{t}, v{NR}, v{NM}
                    v_fma_f32 v{t+1}, v{t+1}, v{NR}, v{NM}
                    v_fma_f32 v{t+2}, v{t+2}, v{NR}, v{NM}
                    v_fma_f32 v{t+3}, v{t+3}, v{NR}, v{NM}
                    v_cvt_pk_bf16_f32 v{x}, v{t}, v{t+1}""")
                    if h: done["n", kk] = F.t
                    yield k.e(f"v_cvt_pk_bf16_f32 v{x+1}, v{t+2}, v{t+3}")
            mark("norm")
        def hepi():
            for P in range(2):
                if P: yield k.e(f"s_add_u32 s{sHS}, s{sHS}, {56*1024}")
                for j in range(4):
                    c = ACC + 16 * j; o = NT + 4 * (j & 1 if P else j)
                    yield at(last[P, j] + 2)
                    assert "norm" in done
                    for i in range(4):
                        yield from s.seq(f"v_mul_f32 v{c+2*i}, v{c+2*i}, v{c+8+2*i}\nv_mul_f32 v{c+2*i+1}, v{c+2*i+1}, v{c+9+2*i}")
                    for i in range(4):
                        if i == 3: done["e", P, j] = F.t
                        yield k.e(f"v_cvt_pk_bf16_f32 v{o+i}, v{c+2*i}, v{c+2*i+1}")
                    for jj in ([j] if P or not par("hs", 118) else range(4) if j == 3 else []):
                        if not P and par("hs", 118): yield at(par("hs", 118) + par("hd", 1) * jj); o = NT + 4 * jj
                        yield 10 + k.e(f"buffer_store_dwordx4 {R(o)}, v1, {S4(SWS)}, s{sHS} offen offset:{1024*jj} {STF}", ("H", P, jj))
                        mark(("H", P, jj))
                s.stamp(5 + 2 * P)
                if P == 0:
                    yield at(par("f0", 140))
                    k.wait(vm=("H", 0, 3)); yield hflag(0)
        rl = {}
        def hclr():
            assert par("f0", 140) > 128 + 32 * (par("kp", 3) == 7)
            yield at(par("cl0", 60))
            if par("kp", 3) == 9:
                yield k.e(f"s_add_u32 s{sT5}, s{sHS}, {56*1024}")
                for i in range(4): yield k.e(f"v_mov_b32 v{252+i}, -1")
            for j in range(4 * (par("kp", 3) == 9)):
                yield at(par("cl0", 60) + j * par("cls", 4))
                assert ("H", 0, 0) not in done
                yield 10 + k.e(f"buffer_store_dwordx4 {R(252)}, v1, {S4(SWS)}, s{sT5} offen offset:{1024*j} {STF}", "K")
            yield at(par("dm", 999) if par("dm", 999) < par("pm", 200) else 0)
            if par("dm", 999) < par("pm", 200): yield from dlate()
            if par("kp", 3) == 10 or not par("cpoll", 0): return
            yield at(par("pm", 200) - 6)
            for i in range(2): rl[i + 1] = s.vp_addr(i + 1, VX + 2 * i, VX + 2 * i + 1); yield 30
            yield at(par("pm", 200))
            for i in range(2): yield 6 + k.e(rl[i + 1], "P")
            if 224 > par("dm", 999) >= par("pm", 200): yield at(par("dm", 999)); yield from dlate()
        def dlate():
            assert par("dm", 999) > 188
            for i in (5, 6):
                for c in s.wd_dma(1, i, s.CSL[i], VD): yield c + 8
        F.add(norm(), -99); F.add(hepi(), -99)
        if "sent" in OPT: F.add(hclr(), -99)
        rp = [0]; pub = [1]
        def reads(upto):
            c = 0
            while rp[0] <= min(upto, 223) and M[rp[0]][0] <= pub[0]:
                i, kk, j = M[rp[0]]; slot = i % 6
                for hh in range(2): c += 2 + k.e(f"ds_read_b64_tr_b16 {R(AR+4*(rp[0]%8)+2*hh, 2)}, v{(TRH if slot >= 4 else TRL)+j} offset:{(slot&3)*SL + kk*2048 + hh*512}")
                rp[0] += 1
            return c
        DIST, DB = par("dist", 6), par("db", 4)
        F.t = -1
        force(("n", 0))
        s.nstamp(508)
        k.wait(vm="C"); k.wait(vm=("W", 1))
        s.nstamp(509)
        s.bar()
        s.nstamp(510)
        reads(DIST - 1)
        force(("n", par("n0", 1)))
        s.stamp(4)
        for m, (i, kk, j) in enumerate(M):
            P, ii = divmod(i, 7)
            F.t = m
            if P == 0: force(("n", 4 * ii + kk))
            if i == 7 and kk == 0: force(("e", 0, j))
            F.t = m
            k.e(mf32(ACC + 16 * j, AR + 4 * (m % 8), XF + 16 * ii + 4 * kk, ii + kk == 0))
            s.nstamp(m)
            if m % 32 == 32 - DB and m < 192:
                kb = m // 32
                assert rp[0] == 32 * kb + 32
                pub[0] = 2 * kb + 3
                if kb == 2 and par("late", 0) & 1:
                    assert "norm" in done
                    s.scal(); s.wd_addr(NT, VD, TB, 0)
                    for q in range(2): k.e(f"v_add_u32 v{TB+2+q}, {4*SL}, v{TB+q}\nv_add_u32 v{TB+4+q}, {8*SL}, v{TB+q}")
                s.bar(*[("W", w) for w in range(NWC) if w <= pub[0]])
            c = reads(m + DIST)
            F.run(max(4, (par("nb", 30) if "norm" not in done else par("bud", 24)) - c))
        s.stamp(6)
        F.drain()
        if par("prio", 1) == 1: k.e("s_setprio 0")
        NP = par("np", 3)
        ge = []
        def ard(f):
            i, kk, t = f >> 2, (f >> 1) & 1, f & 1; slot = s.CSL[i]
            assert i < NP or ge
            if i >= par("nd", 5): assert ("D", 1, i) in k.issued; k.wait(vm=("D", 1, i))
            for hh in range(2): k.e(f"ds_read_b64_tr_b16 {R(AR+4*(f%8)+2*hh, 2)}, v{TB+2*(slot>>2)+t} offset:{(slot&3)*SL + kk*2048 + hh*1024}")
        acc = lambda t, S: ACC + 16 * (2 * S + t)
        NU = par("nu", 7); SUMC = XF + (64 if NU == 7 else 96)
        n = 0
        def mm(i, kk, t, S):
            f = 4 * i + 2 * kk + t
            k.e(mf32(acc(t, S), AR + 4 * (f % 8), XF + 16 * i + 8 * kk + 4 * S, i + kk == 0))
            s.nstamp(280 + n)
            if S == 1 and f + 8 < 4 * NU: ard(f + 8)
            if n == par("r1", 28) and "r8" not in OPT: s.bar()
        CT = [
            "F1 a0 a1 F2 p1 p2 D5 D6 G0 c1 h0 h1 h2 c2 h3 g0 h4 g1 h5 g2 h6 g3 g4",
            "D5 D6 F1 a0 a1 F2 p1 p2 G0 c1 h0 h1 h2 c2 h3 g0 h4 g1 h5 g2 h6 g3 g4",
            "F1 a0 a1 F2 p1 p2 G0 c1 h0 h1 h2 D5 D6 g0 c2 h3 h4 g1 h5 g2 h6 g3 g4",
            "F1 a0 a1 G0 F2 p1 p2 D5 D6 c1 h0 h1 h2 c2 h3 g0 h4 g1 h5 g2 h6 g3 g4",
        ][par("ct", 0) & 3].split()
        if "sent" in OPT: CT = [
            "c1 c2 D5 D6 a0 a1 h0 h1 h2 G0 h3 h4 k0 g0 h5 k1 g1 h6 k2 g2 k3 g3 k4 g4 k5 k6",
            "c1 c2 h0 h1 h2 D5 D6 a0 a1 G0 h3 h4 k0 g0 h5 k1 g1 h6 k2 g2 k3 g3 k4 g4 k5 k6",
            "c1 c2 D5 D6 a0 a1 G0 h0 h1 h2 h3 h4 k0 g0 h5 k1 g1 h6 k2 g2 k3 g3 k4 g4 k5 k6",
            "c1 c2 D5 D6 a0 a1 h0 h1 h2 h3 h4 h5 h6 G0 k0 g0 k1 g1 k2 g2 k3 g3 k4 g4 k5 k6",
            "c1 c2 a0 a1 G0 D5 D6 h0 h1 h2 h3 k0 g0 h4 k1 g1 h5 k2 g2 h6 k3 g3 k4 g4 k5 k6",
            "c1 c2 a0 a1 h0 h1 G0 h2 h3 k0 g0 D5 h4 k1 g1 D6 h5 k2 g2 h6 k3 g3 k4 g4 k5 k6",
            "c1 c2 a0 a1 G0 h0 h1 h2 D5 k0 g0 h3 k1 g1 h4 D6 k2 g2 h5 h6 k3 g3 k4 g4 k5 k6",
            "c1 c2 a0 a1 G0 D5 h0 h1 h2 k0 g0 h3 k1 g1 h4 D6 k2 g2 h5 k3 g3 h6 k4 g4 k5 k6",
            "c1 c2 a0 a1 G0 D5 D6 h0 h1 h2 k0 g0 h3 k1 g1 h4 k2 g2 h5 k3 g3 h6 k4 g4 k5 k6",
            "c1 c2 a0 a1 G0 h0 h1 h2 D5 u2 k0 g0 h3 k1 g1 h4 D6 k2 g2 h5 h6 k3 g3 k4 g4 k5 k6",
            "c1 c2 a0 a1 G0 h0 h1 h2 D5 u2 k0 g0 h3 h4 k1 g1 D6 h5 h6 k2 g2 k3 g3 k4 g4 k5 k6",
            "c1 c2 a0 a1 G0 h0 h1 u2 h2 k0 g0 h3 D5 k1 g1 h4 D6 k2 g2 h5 h6 k3 g3 k4 g4 k5 k6",
            "c1 c2 a0 a1 G0 h0 h1 h2 D5 k0 g0 h3 h4 k1 g1 D6 h5 h6 u2 k2 g2 k3 g3 k4 g4 k5 k6",
            "c1 c2 a0 a1 G0 h0 h1 h2 h3 u2 k0 g0 h4 D5 k1 g1 h5 D6 k2 g2 h6 k3 g3 k4 g4 k5 k6",
            "c1 c2 a0 a1 G0 h0 h1 h2 h3 h4 D5 h5 D6 h6 u2 k0 g0 k1 g1 k2 g2 k3 g3 k4 g4 k5 k6",
            "c1 c2 a0 a1 h0 h1 G0 h2 k0 g0 h3 h4 k1 g1 h5 h6 u2 k2 g2 k3 g3 k4 g4 k5 k6",
            "c1 c2 a0 a1 h0 h1 G0 h2 h3 k0 g0 h4 k1 g1 h5 k2 g2 h6 u2 k3 g3 k4 g4 k5 k6",
            "c1 c2 a0 a1 G0 h0 h1 h2 D5 k0 g0 h3 h4 D6 h5 h6 u2 k1 g1 k2 g2 k3 g3 k4 g4 k5 k6",
            "c1 c2 a0 a1 G0 h0 h1 h2 k0 g0 h3 k1 g1 h4 D5 D6 h5 h6 u2 k2 g2 k3 g3 k4 g4 k5 k6",
            "c1 c2 a0 a1 G0 h0 h1 k0 g0 h2 k1 g1 h3 k2 g2 D5 h4 D6 h5 h6 u2 k3 g3 k4 g4 k5 k6",
            "c1 c2 a0 a1 G0 h0 h1 h2 k0 g0 D5 k1 g1 h3 h4 u2 k2 g2 D6 h5 h6 k3 g3 k4 g4 k5 k6",
            "c1 c2 a0 a1 h0 G0 h1 h2 k0 g0 h3 k1 g1 h4 D5 D6 h5 h6 u2 k2 g2 k3 g3 k4 g4 k5 k6",
            "c1 c2 D5 a0 a1 G0 h0 h1 h2 k0 g0 h3 k1 g1 h4 D6 h5 h6 u2 k2 g2 k3 g3 k4 g4 k5 k6",
            "c1 c2 a0 G0 h0 h1 a1 h2 k0 g0 h3 k1 g1 h4 D5 D6 h5 h6 u2 k2 g2 k3 g3 k4 g4 k5 k6",
        ][par("ct", 22)].split()
        if NU == 6: CT = [
            "D5 a0 a1 G0 h0 h1 h2 k0 g0 h3 k1 g1 h4 h5 u2 k2 g2 k3 g3 k4 k5",
            "D5 a0 a1 G0 h0 h1 h2 k0 g0 h3 k1 g1 h4 h5 k2 g2 k3 g3 k4 k5",
            "D5 a0 a1 G0 h0 h1 h2 k0 g0 h3 h4 k1 g1 h5 k2 g2 u2 k3 g3 k4 k5",
            "D5 a0 a1 G0 h0 h1 h2 h3 k0 g0 h4 h5 u2 k1 g1 k2 g2 k3 g3 k4 k5",
        ][par("cu", 0)].split()
        for tok in CT:
            c, i = tok[0], int(tok[1:])
            if c == "D" and (("D", 1, i) in k.issued or i < par("nd", 5)): continue
            if c == "c" and i not in rl: continue
            if c == "u": k.e(f"s_setprio {i}")
            if c == "h": assert ge or par("cpoll", 0)
            if c == "k": s.checkm([XF + 16 * i + 4 * q + 3 for q in range(4)], "\n".join(s.hld(1, i, XF + 16 * i)), TMP)
            if c == "F": k.wait(vm=("H", 1, 2 * i - 1)); hflag(i); s.nstamp(269 + i)
            if c == "a":
                for f in range(4 * i, 4 * i + 4): ard(f)
                if "sent" not in OPT: rl[i + 1] = s.vp_addr(i + 1, VX + 2 * i, VX + 2 * i + 1)
                if i == 0: s.wa_addr(WA, 7 * SL)
            if c == "G": s.bar(); ge.append(1); s.nstamp(272)
            if c == "D":
                for _ in s.wd_dma(1, i, s.CSL[i], VD): pass
            if c == "p": k.e(rl[i], "P")
            if c == "c": s.check([VX + 2 * i - 1], rl[i]); s.nstamp(272 + i)
            if c == "h":
                for l in s.hld(1, i, XF + 16 * i): k.e(l, ("h", i))
                if i == NU - 1: s.stamp(8)
            if c == "g":
                for kk in range(2):
                    for t in range(2):
                        for S in range(2): mm(i, kk, t, S); n += 1
            s.nstamp(700 + CT.index(tok))
            if tok == ["a1", "h2", "h1", "h0"][par("opp", 1)]:
                k.e(f"s_add_u32 s{sU0}, s{sZB}, {28*65536}")
                zl = s.out_pre((0,), VO, VN, VR, TMP, NT, NT + 4, False)
            if tok == f"g{par('op', 3)}": k.e(zl[0])
        F.t = 0
        if "r8" in OPT: F.add(s.out_sum((0,), SUMC, NT))
        for S in range(2):
            for t in range(2):
                for r, (i, kk) in enumerate((i, kk) for i in (NU - 2, NU - 1) for kk in range(2)):
                    mm(i, kk, t, S); n += 1
                    q = 2 * S + t
                    if q > 0 and r == 1:
                        if q == 3 and "r8" not in OPT: F.drain(); F.t = 0; s.bar()
                        F.add(s.wr(WA, acc((q - 1) & 1, (q - 1) >> 1), (q - 1) & 1, (q - 1) >> 1, -5))
                    F.run(20)
        F.drain()
        for _ in s.wr(WA, acc(1, 1), 1, 1, 0): pass
        if "r8" in OPT: s.out_zn((0,), SUMC, NT + 4, zl, TMP)
        s.nstamp(341)
        s.bar()
        s.nstamp(342)
        if "r8" in OPT: s.out_fin(0, SUMC, XF, VR, VO)
        if s.tson: s.stamp(1); s.nstamp(343)
        s.finish()

    def h_role(s):
        k = s.k; F = Fill(k); s.dbg = [(8, 4), (9, 5), (10, 7), (11, 1)]
        XRD, FA, VW, VD, TB, VQ, SGN, TMP = 2, 6, 7, 9, 10, 12, 13, 15
        WA, VP, PD, MS = 2, 6, 12, 0
        ACC, WDR, HB = 16, 80, 192
        D1, D2C, D2S, CLR, SQ, SM, ONE, M4, FC = 16, 32, 48, 76, 80, 88, 64, 68, 72
        E, RSR, PA, PB = 96, 112, 128, 136
        XB, FB, T = 144, 192, 240
        done = {}
        def force(n):
            while n not in done: F.run(40)
        def run(g):
            for _ in g: pass
        k.e(f"s_lshl_b32 s{sQB}, s{sFT}, 7\ns_add_u32 s{sQB}, s{sQB}, s{sTL}\ns_lshl_b32 s{sQB}, s{sQB}, 10\ns_waitcnt lgkmcnt(0)")
        s.nstamp(600)
        k.srd(SWS, 22, WS_BYTES)
        s.load_epoch(sU0)
        if par("cpos", 99) == 30: s.clears(CLR)
        s.stamp(1); s.nstamp(601)
        s.gen_F(3 + par("fsw", 0), T, XB)
        s.nstamp(604)
        k.e("s_waitcnt lgkmcnt(0)")
        s.nstamp(605)
        if par("cpos", 99) == 31: s.clears(CLR)
        s.get_tag()
        s.x_addr(T, XRD)
        k.e(f"""v_add_u32 v{FA}, {F_LDS}, v1
        v_lshrrev_b32 v{TMP}, 2, v1
        v_add_u32 v{TMP}, {FCS_L}, v{TMP}""")
        def etab():
            C_ = T + 4
            yield from s.seq(f"""v_bfe_u32 v{T}, v1, 4, 5
            v_cvt_f32_u32 v{T}, v{T}
            v_lshrrev_b32 v{T+1}, 9, v1
            v_lshlrev_b32 v{T+1}, 8, v{T+1}
            v_add_u32 v{T+1}, s{sS2}, v{T+1}
            v_cvt_f32_u32 v{T+1}, v{T+1}
            v_mul_f32 v{T+1}, {fh(1/2048)}, v{T+1}
            v_mul_f32 v{T+1}, v{T+1}, v{T}
            v_mul_f32 v{T}, {fh(1/32)}, v{T}""")
            for q in range(2):
                for jp in range(4):
                    c = C_ + 4 * (jp & 1)
                    for e in range(2):
                        j = 2 * jp + e
                        yield from s.seq(f"v_fmamk_f32 v{c+e}, v{T}, {fh(16*q + 8*(j>>2) + (j&3))}, v{T+1}\nv_sin_f32 v{c+2+e}, v{c+e}\nv_cos_f32 v{c+e}, v{c+e}")
                    yield from s.seq(f"v_cvt_pk_bf16_f32 v{E+8+4*q+jp}, v{c+2}, v{c+3}\nv_cvt_pk_bf16_f32 v{E+4*q+jp}, v{c}, v{c+1}")
            done["E"] = 1
        U0, U1 = PB, PB + 1
        def misc():
            for st in (4, 2, 1):
                for i in range(st): yield k.e(f"v_add_f32 v{D2C+i}, v{D2C+i}, v{D2C+st+i}")
            yield from s.seq(s.split_hilo(FC, D2C, D2C + 1))
            for i in range(1, 4): yield k.e(f"v_mov_b32 v{FC+i}, 0\nv_mov_b32 v{M4+i}, 0")
            yield k.e(f"""s_cmp_eq_u32 s{sFT}, 0
            s_cselect_b32 s{sXM}, 3, 0
            s_mov_b32 s{sXM+1}, s{sXM}
            s_and_b32 s{sM+6}, s{sXM}, 2
            s_mov_b32 s{sM+7}, s{sM+6}""")
            yield from s.seq(f"""v_and_b32 v{VQ}, 0xf0, v1
            v_bfe_u32 v{SGN}, v1, 8, 1
            v_lshl_add_u32 v{VQ}, v{SGN}, 16, v{VQ}
            v_mov_b32 v{SGN}, {28*65536}
            v_cndmask_b32 v{VQ}, v{VQ}, v{SGN}, s[{sM+6}:{sM+7}]
            v_lshrrev_b32 v{SGN}, 9, v1
            v_lshl_add_u32 v{VQ}, v{SGN}, 8, v{VQ}
            v_cndmask_b32 v{MS}, 1.0, 0, s[{sXM}:{sXM+1}]
            v_bfe_i32 v{U0}, v1, 4, 1
            v_lshlrev_b32 v{U1}, 4, v{SGN}
            v_and_b32 v{SGN}, 0x80008000, v{U0}
            v_bfe_u32 v{U0}, v1, 4, 5""")
            yield k.e(f"""s_lshl_b32 s{sT0}, s{sSG}, 7
            s_add_u32 s{sT0}, s{sT0}, {ST_L}
            v_lshl_add_u32 v{U0}, v{U0}, 2, s{sT0}
            v_add_u32 v{U1}, s{sT0}, v{U1}""")
            done["misc"] = 1
        ge = etab()
        s.w_addr(D2S, VW)
        if not par("late", 0) & 2: s.scal(); s.wd_addr(D2S, VD, TB, 6 * SL)
        k.e(f"s_lshl_b32 s{sU1}, s{sFT}, 6\ns_add_u32 s{sU1}, s{sU1}, s{sTL}\ns_lshl_b32 s{sU1}, s{sU1}, 7\ns_add_u32 s{sU1}, s{sU1}, {FQ}")
        for _ in range(par("epre", 73)): next(ge)
        s.nstamp(607)
        if par("cpos", 99) == 99: s.clears(CLR)
        s.stamp(9); s.inG and s.nstamp(606)
        NWC, NP = par("nwc", 2), par("np", 3)
        def early():
            for i in range(NWC, 6): yield from s.w_dma(i, VW)
        eq = early()
        def issue(n):
            for _ in range(n): next(eq, None)
        xr = lambda b: (XB, XB + 16, 80, RSR)[b & 3]
        fr = lambda b: XB + 32 + 16 * (b & 3)
        def frd(b):
            for r in range(4): k.e(f"ds_read_b128 {R(fr(b)+4*r)}, v{FA} offset:{(4*b+r)*1024}")
        MS_ = [[(0,), (1, 2), (3, 4), (5, 6)], [(), (0, 1), (2, 3), (4, 5, 6)], [(0, 1), (2,), (3,), (4, 5, 6)], [(0,), (1,), (2, 3), (4, 5, 6)]][par("ms", 0)]
        for st, bs in enumerate(((0, 1), (2, 3), (4, 5), (6,))):
            s.bar()
            if st == 0: s.stamp(2)
            if st == 3: s.stamp(3)
            for b in bs:
                assert b < 4 or ("d", b - 4) in done
                s.xrd(b, XRD, xr(b))
                if st == 0: frd(b)
            if st == 0:
                for w in range(8): k.e(f"ds_read_b32 v{D2C+w}, v{TMP} offset:{w*256}")
                frd(2); frd(3)
                F.add(misc()); F.add(ge)
            for b in MS_[st]:
                for r in range(4):
                    k.e(mf32(D1, xr(b) + 4 * r, fr(b) + 4 * r, b + r == 0)); F.run(par("xb", 24))
                done["d", b] = 1
                if b + 4 < 7: frd(b + 4)
            if par("cpos", 99) == 20 + st: s.clears(CLR)
            if st >= 2: issue(par(f"q{st+3}", (4, 6)[st - 2]))
            s.nstamp(501 + bs[-1])
        force("misc")
        issue(par("q7", 0))
        force("E")
        s.nstamp(508)
        s.bar(); done["sb"] = 1
        k.e(f"ds_read_b32 v{M4}, v{U0}")
        for q in range(4): k.e(f"ds_read_b128 {R(RSR+4*q)}, v{U1} offset:{512 + 32*q}")
        k.e(mf32(D1, M4, FC))
        issue(par("q1", 2))
        for h in range(2):
            for p in range(4 * h, 4 * h + 4):
                k.e(f"v_mul_f32 v{D1+2*p}, v{D1+2*p}, v{RSR+2*p}\nv_mul_f32 v{D1+2*p+1}, v{D1+2*p+1}, v{RSR+2*p+1}")
            for p in range(4 * h, 4 * h + 4): k.e(f"v_cvt_pk_bf16_f32 v{PA+p}, v{D1+2*p}, v{D1+2*p+1}")
            for p in range(4 * h, 4 * h + 4): k.e(f"v_xor_b32_dpp v{PB+p}, v{PA+p}, v{SGN} quad_perm:[1,0,3,2] row_mask:0xf bank_mask:0xf")
            k.e(mf32(D2C, E + 4 * h, PA + 4 * h, h == 0))
            k.e(f"s_mov_b64 exec, s[{sXM}:{sXM+1}]")
            for p in range(4 * h, 4 * h + 4): k.e(f"v_xor_b32 v{PB+p}, 0x80008000, v{PA+p}")
            k.e("s_mov_b64 exec, -1")
            k.e(mf32(D2S, E + 8 + 4 * h, PB + 4 * h, h == 0))
        issue(par("q2", 99))
        if not par("fq2", 0): k.wait(vm="C"); s.flag(sU1)
        for h in range(2):
            for r in range(8 * h, 8 * h + 8): k.e(f"v_fmac_f32 v{D2C+r}, v{D2S+r}, v{MS}")
            for p in range(4 * h, 4 * h + 4): k.e(f"v_cvt_pk_bf16_f32 v{PA+p}, v{D2C+2*p}, v{D2C+2*p+1}")
            k.e(f"buffer_store_dwordx4 {R(PA+4*h)}, v{VQ}, {S4(SWS)}, s{sQB} offen offset:{QT+512*h} {STF}", "Q")
        L = k.label("nonyq")
        k.e(f"s_cmp_lg_u32 s{sFT}, 0\ns_cbranch_scc1 {L}")
        k.cond_begin()
        for p in range(8): k.e(f"v_cvt_pk_bf16_f32 v{PB+p}, v{D2S+2*p}, v{D2S+2*p+1}")
        k.e(f"s_mov_b64 exec, s[{sXM}:{sXM+1}]")
        for h in range(2): k.e(f"buffer_store_dwordx4 {R(PB+4*h)}, v{VQ}, {S4(SWS)}, s{sQB} offen offset:{QT+512*h+16} {STF}", "Q")
        k.e("s_mov_b64 exec, -1")
        k.cond_end()
        k.e(f"{L}:")
        if par("fq2", 0): k.wait(vm="C"); s.flag(sU1)
        s.stamp(4)
        issue(99)
        if par("late", 0) & 2: s.scal(); s.wd_addr(T, VD, TB, 6 * SL)
        ASL = [7, 8, 6, 9, 7, 8, 9]
        own = {}
        def take(slot, who):
            if slot in own: assert ("ar", own[slot]) in k.issued, (slot, who); k.wait(lg=("ar", own[slot]))
            own[slot] = who
        cur = [-1]
        def do(tok):
            c, i = tok[0], int(tok[1:])
            if c == "W":
                assert i <= 2 * cur[0] + 7
                if i >= NWC: run(s.w_dma(i, VW))
            if c == "A": assert ASL[i] < 9 or cur[0] >= 0; take(ASL[i], i); run(s.wd_dma(0, i, ASL[i], VD))
            if c == "C":
                if i < 4: assert own[s.CSL[i]] == (2, 4, 5, 6)[i]; take(s.CSL[i], 99)
                else: assert 4 + i <= 2 * cur[0] + 1
                run(s.wd_dma(1, i, s.CSL[i], VD))
            if c == "r":
                k.wait(vm=("D", 0, i))
                for f in range(4):
                    for hh in range(2): k.e(f"ds_read_b64_tr_b16 {R(WDR+16*i+4*f+2*hh, 2)}, v{TB+(f&1)} offset:{(ASL[i]-6)*SL + (f>>1)*2048 + hh*1024}", ("ar", i))
            if c == "h":
                assert F.t >= 8 * (i - 3)
                for l in s.hld(0, i, HB + 16 * (i & 3)): k.e(l, ("h", i))
            if c == "p": k.e(rl, "P")
            if c == "q":
                k.e(f"v_bfe_u32 v13, v1, 4, 3\nv_bfe_u32 v15, v1, 7, 1\nv_lshl_add_u32 v13, v13, 5, v15\ns_lshl_b32 s{sT4}, s{sRT}, 1\ns_add_u32 s{sT4}, s{sT4}, {(FW + 32*1024) >> 7}\nv_add_lshl_u32 v13, v13, s{sT4}, 7")
                k.e(rq, "P")
            if c == "d": assert cur[0] < 5; s.check([15], rq)
            if c == "K":
                k.e(f"s_add_u32 s{sT5}, s{sHS}, {56*1024}")
                kw = par("kw", 0)
                if kw: k.e(f"v_lshlrev_b32 v{CLR+1}, {kw}, v1")
                for j in range(4 >> kw):
                    if kw: k.e(f"buffer_store_dword v{CLR}, v{CLR+1}, {S4(SWS)}, s{sT5} offen offset:{(1024<<kw)*j+12} {SC1}", "K")
                    else: k.e(f"buffer_store_dwordx4 {R(CLR)}, v1, {S4(SWS)}, s{sT5} offen offset:{1024*j} {STF}", "K")
            if c == "c": s.check([PD], rl); s.stamp(5)
        def kb(i):
            s.bar(*[("W", w) for w in (2 * i + 2, 2 * i + 3) if w >= NWC], *([("D", 1, c) for c in range(NP)] if i == 5 else []), *(["K"] if i == 3 + ("r3 K0" in P0) and "K0" in P0 else []))
            s.nstamp(32 * i + 32); cur[0] = i
        P0 = "A0|W6 W7 A1|W8 W9 A2 A3 r0 r1|W10 W11 A4 A5 r2 r3|"
        if "sent" in OPT: P0 = P0.replace(*[("A0", "A0 K0"), ("A1", "A1 K0"), ("W7", "W7 K0"), ("r1", "r1 K0"), ("A0", "K0 A0"), ("A0|W6 W7 A1", "K0|W6 W7 A0 A1"), ("W9", "W9 K0"), ("r3", "r3 K0"), ("A3", "A3 K0"), ("x", "x"), ("x", "x")][par("kp", 3)])
        PLAN = [
            P0 + "W12 W13 A6 C0 r4|C1 r5 C2 p0 C4 r6 C3",
            P0 + "W12 W13 A6 C0 r4|C1 C4 p0 r5 r6 c0 h0",
            P0 + "W12 W13 A6 C0 r4|C1 p0 C4 r5 r6 c0 h0 h1",
            "A0|W6 W7 A1|W8 W9 K0 A2 r0|W10 W11 A3 A4 r1 r2|W12 W13 A5 C0 r3|A6 r4 C1 p0 C4 r5",
            "A0|W6 W7 A1|W8 W9 A2 r0 K0|W10 W11 A3 A4 r1 r2|W12 W13 A5 C0 r3|r4 C1 A6 p0 C4 r5 C2",
            "A0|W6 W7 A1|W8 W9 K0|W10 W11 A2 A3 r0 r1|W12 W13 A4 A5 r2 C0|r4 C1 r3 A6 p0 r5",
            "A0|W6 W7 A1 A2|W8 W9 r0 K0|W10 W11 A3 A4 r1 r2|W12 W13 A5 C0 r3|r4 C1 A6 p0 C4 r5 C2",
            "A0|W6 W7 A1 A2|W8 W9 A3 r0 r1 K0|W10 W11 A4 A5 r2 r3|W12 W13 A6 C0 r4|C1 r5 C2 p0 C4 r6 C3",
            "A0|W6 W7 A1 A2 A3|W8 W9 r0 r1 K0|W10 W11 A4 A5 r2 r3|W12 W13 A6 C0 r4|C1 r5 C2 p0 C4 r6 C3",
            "A0 A1|W6 W7 A2 A3|W8 W9 r0 r1 K0|W10 W11 A4 A5 r2 r3|W12 W13 A6 C0 r4|C1 r5 C2 p0 C4 r6 C3",
            "A0|W6 W7 A1 A2 A3 K0|W8 W9 r0 r1 A4|W10 W11 A5 r2 r3 C0|W12 W13 A6 r4 C1|r5 C2 p0 C4 r6 C3",
            P0 + "W12 W13 A6 C0 r4|p0 C1 r5 C2 r6 c0 h0 h1",
            P0 + "W12 W13 A6 C0 r4|p0 C1 r5 C2 C4 r6 c0 h0",
            P0 + "W12 W13 A6 C0 r4|C1 p0 r5 C2 r6 C3 c0 h0",
            P0 + "W12 W13 A6 C0 r4|C1 r5 C2 C4 p0 r6 C3",
            P0 + "W12 W13 A6 C0 r4|C1 r5 C2 C4 r6 C3 p0",
        ][par("plan", 14)].split("|")
        rq = f"buffer_load_dword v15, v13, {S4(SWS)}, 0 offen offset:8 {SC1}"
        if "sent" in OPT and par("kp", 3) == 10:
            qp = par("qp", 4); PLAN[qp] += " q0"; PLAN[qp + 1] += " d0"
        TAIL = [
            "c0 h0 h1 h2 h3 C2 C3 g0 h4 g1 h5 g2 h6 G0 g3 g4 z0 g5 z1 g6",
            "c0 h0 h1 h2 h3 C2 C3 g0 h4 g1 h5 G0 g2 h6 g3 g4 z0 g5 z1 g6",
            "c0 h0 h1 h2 h3 C2 C3 g0 h4 g1 h5 g2 h6 g3 g4 G0 z0 g5 z1 g6",
            "c0 h0 h1 h2 h3 C2 C3 g0 h4 G0 g1 h5 g2 h6 g3 g4 z0 g5 z1 g6",
            "c0 h0 h1 h2 h3 C2 C3 G0 g0 h4 g1 h5 g2 h6 g3 g4 z0 g5 z1 g6",
            "c0 h0 h1 h2 C2 C3 g0 h3 h4 g1 h5 g2 h6 G0 g3 g4 z0 g5 z1 g6",
            "c0 h0 h1 h2 C2 C3 g0 h3 h4 g1 h5 G0 g2 h6 g3 g4 z0 g5 z1 g6",
            "c0 h0 h1 h2 C2 C3 g0 h3 g1 h4 h5 g2 h6 g3 g4 G0 z0 g5 z1 g6",
            "c0 h0 h1 h2 C2 C3 G0 g0 h3 h4 g1 h5 g2 h6 g3 g4 z0 g5 z1 g6",
            "c0 h0 h1 h2 C2 C3 g0 G0 h3 h4 g1 h5 g2 h6 g3 g4 z0 g5 z1 g6",
            "c0 h0 h1 C2 C3 g0 h2 G0 h3 g1 h4 h5 g2 h6 g3 g4 z0 g5 z1 g6",
            "c0 h0 h1 C5 C6 h2 g0 h3 G0 h4 g1 h5 g2 h6 g3 g4 z0 g5 z1 g6",
            "c0 h0 h1 h2 C5 C6 g0 h3 h4 g1 G0 h5 g2 h6 g3 g4 z0 g5 z1 g6",
            "c0 C5 C6 h0 h1 h2 G0 g0 h3 h4 g1 h5 g2 h6 g3 g4 z0 g5 z1 g6",
            "c0 h0 C5 h1 C6 h2 h3 g0 G0 h4 g1 h5 g2 h6 g3 g4 z0 g5 z1 g6",
            "c0 h0 C2 C4 r6 C3 h1 h2 g0 G0 h3 h4 g1 h5 g2 h6 g3 g4 z0 g5 z1 g6",
            "c0 h0 h1 C2 C4 r6 C3 h2 g0 h3 G0 h4 g1 h5 g2 h6 g3 g4 z0 g5 z1 g6",
            "c0 h0 h1 C3 C4 h2 g0 h3 G0 h4 g1 h5 g2 h6 g3 g4 z0 g5 z1 g6",
            "c0 h0 h1 h2 C3 C4 g0 h3 h4 g1 G0 h5 g2 h6 g3 g4 z0 g5 z1 g6",
            "c0 h0 h1 C3 C4 g0 h2 h3 G0 g1 h4 h5 g2 h6 g3 g4 z0 g5 z1 g6",
        ][par("tail", 9)].split()
        F.t = 0
        rl = s.vp_addr(0, VP, PD)
        s.wa_addr(WA, 0)
        for i in range(6):
            for tok in PLAN[i].split(): do(tok); s.nstamp(800 + " w ".join(PLAN).split().index(tok))
            k.wait(vm=("W", 2 * i + 3)); s.nstamp(800 + len(" w ".join(PLAN[:i+1]).split()))
            kb(i)
        acc = lambda t, S: ACC + 16 * (2 * S + t)
        H_ = lambda i, q=0: WDR + 16 * i + 4 * q
        D_ = lambda i, q=0: HB + 16 * i + 4 * q
        FIr = [[H_(1, 3)] + [H_(2, q) for q in range(4)] + [H_(3, 0), H_(3, 1)], [H_(3, 2), H_(3, 3)] + [D_(3, q) for q in range(4)] + [H_(4, 0)]]
        ZGr = [[H_(4, q) for q in (1, 2, 3)] + [D_(0, q) for q in range(4)], [H_(5, q) for q in range(4)] + [D_(1, q) for q in range(3)]]
        FI = lambda i, t: FIr[t][i]
        ZG = lambda S, i: ZGr[S][i]
        XRES, ZN, RB, SUM = H_(6), D_(1, 3), WDR, H_(4)
        VO, VN, VR = D_(2), D_(2) + 1, D_(2, 1)
        X6 = par("nu", 7) == 6
        if X6:
            XRES = D_(2, 1)
            TAIL = [
                "c0 h0 h1 h2 g0 G0 h3 h4 g1 h5 g2 h6 g3 C6 g4 z0 g5 z1 x6 g6",
                "c0 h0 h1 h2 g0 G0 h3 h4 g1 h5 g2 h6 g3 g4 z0 g5 x6 z1 C6 g6",
                "c0 h0 h1 h2 C6 g0 G0 h3 h4 g1 h5 g2 h6 g3 g4 z0 g5 x6 z1 g6",
                "c0 h0 h1 h2 g0 G0 h3 h4 g1 h5 g2 h6 C6 g3 g4 z0 g5 x6 z1 g6",
            ][par("tu", 0)].split()
        x6l = "\n".join(s.hld(1, 6, H_(0)))
        A_, B_, CI_, CF, X = 7, 12, 6, 0, WDR
        def zld(S, i): return f"s_add_u32 s{sT4}, s{sZB}, {i << 18}\nbuffer_load_dwordx4 {R(ZG(S, i))}, v1, {S4(SWS)}, s{sT4} offen offset:{1024*S} {SC1}"
        def figen():
            yield from s.seq(f"""v_bfe_u32 v{A_}, v1, 4, 5
            s_lshl_b32 s{sT0}, s{sDT}, 6
            v_add_u32 v{A_}, s{sT0}, v{A_}
            v_cvt_f32_u32 v{A_}, v{A_}
            v_add_f32 v{A_+1}, {fh(32)}, v{A_}
            v_mul_f32 v{A_}, {fh(1/448)}, v{A_}
            v_mul_f32 v{A_+1}, {fh(1/448)}, v{A_+1}
            v_lshrrev_b32 v{B_}, 9, v1
            s_lshl_b32 s{sT0}, s{sSG}, 3
            v_lshl_add_u32 v{B_}, v{B_}, 2, s{sT0}
            v_cmp_eq_u32 vcc, 0, v{B_}
            v_cvt_f32_u32 v{B_}, v{B_}
            v_mul_f32 v{B_+1}, v{B_}, v{A_+1}
            v_mul_f32 v{B_}, v{B_}, v{A_}
            v_cndmask_b32 v{CF}, 1.0, 0.5, vcc""")
            yield at(16)
            for t in range(2):
                yield from s.seq(f"v_mul_f32 v{CI_}, {fh(32)}, v{A_+t}\nv_cos_f32 v{CI_}, v{CI_}")
                for jp in range(2):
                    Y = lambda e, i: X + 14 * e + 2 * i
                    for e in range(2):
                        for i in (2, 3): yield from s.seq(f"v_fmamk_f32 v{Y(e,i)}, v{A_+t}, {fh(32*i+2*jp+e)}, v{B_+t}\nv_sin_f32 v{Y(e,i)+1}, v{Y(e,i)}\nv_cos_f32 v{Y(e,i)}, v{Y(e,i)}")
                    if jp == 0: yield k.e(f"v_add_f32 v{CI_}, v{CI_}, v{CI_}")
                    for i, a, b in ((1, 2, 3), (4, 3, 2), (0, 1, 2), (5, 4, 3), (6, 5, 4)):
                        for e in range(2):
                            for c in range(2): yield k.e(f"v_fma_f32 v{Y(e,i)+c}, v{CI_}, v{Y(e,a)+c}, -v{Y(e,b)+c}")
                    if jp == 0: yield k.e(f"v_mul_f32 v{Y(0,0)}, v{Y(0,0)}, v{CF}")
                    for i in range(7):
                        q = FI(i, t)
                        yield at(8 * (((q - WDR) >> 4) + 1) if q < HB else 32)
                        for e in range(2): yield k.e(f"v_cvt_pk_bf16_f32 v{q+2*jp+e}, v{Y(e,i)}, v{Y(e,i)+1}")
        k.e(f"s_lshl_b32 s{sT0}, s{sSG}, 16\ns_add_u32 s{sU0}, s{sZB}, {28*65536}\ns_add_u32 s{sZB}, s{sZB}, s{sT0}")
        F.t = 0
        for tok in TAIL:
            c, i = tok[0], int(tok[1:])
            if c == "G":
                s.bar(*[("D", 1, c) for c in range(par("nd", 5))]); s.nstamp(300)
                if par("prio", 1) == 1: k.e("s_setprio 1")
            elif tok in " ".join(PLAN).split(): pass
            elif c == "x":
                t_ = F.t; assert t_ >= 40; F.drain(); F.t = t_
                k.e(x6l)
            elif c == "z":
                assert F.t >= 8 * (5 + i) and TAIL.index("G0") < TAIL.index(tok)
                for z in range(7): k.e(zld(i, z), ("z", i, z))
            elif c == "g":
                if i == 0: F.add(figen())
                for kk in range(2):
                    for t in range(2):
                        for S in range(2):
                            k.e(mf32(acc(t, S), WDR + 16 * i + 8 * kk + 4 * t, HB + 16 * (i & 3) + 8 * kk + 4 * S, i + kk == 0))
                            s.nstamp(224 + F.t); F.t += 1
                            F.run(par("fb", 28))
            else: do(tok)
            if tok == "h6": s.stamp(6)
            s.nstamp(700 + TAIL.index(tok))
        s.stamp(7)
        if X6:
            k.wait(vm=("D", 1, 6))
            for q in range(2): k.e(f"v_subrev_u32 v{TB+q}, {(6 - s.CSL[6]) * SL}, v{TB+q}")
            for f in range(4):
                for hh in range(2): k.e(f"ds_read_b64_tr_b16 {R(H_(6)+4*f+2*hh, 2)}, v{TB+(f&1)} offset:{(f>>1)*2048 + hh*1024}")
        SS = (1,) if 'r8' in OPT else (0, 1)
        zl = s.out_pre(SS, VO, VN, VR, TMP, XRES, ZN)
        F.drain(); F.t = 0
        s.stamp(8)
        m = 400
        for S in range(2):
            for t in range(2):
                for i in range(7):
                    if t == 0 and i in (0, 4):
                        g = range(i, min(i + 4, 7))
                        s.checkm([ZG(S, z) + 3 for z in g] + ([ZG(S, 6) + 3] if i else []), "\n".join(zld(S, z) for z in g), TMP)
                    k.e(mf32(acc(t, S), FI(i, t), ZG(S, i)))
                    s.nstamp(m); m += 1
                    n = 2 * S + t
                    if n and i == 1: F.add(s.wr(WA, acc((n - 1) & 1, (n - 1) >> 1), (n - 1) & 1, (n - 1) >> 1, 5))
                    F.run(10)
                if X6:
                    if S + t == 0: s.checkm([H_(0, q) + 3 for q in range(4)], x6l, TMP)
                    for kk in range(2): k.e(mf32(acc(t, S), H_(6) + 8 * kk + 4 * t, H_(0) + 8 * kk + 4 * S)); F.run(10)
        F.drain()
        run(s.out_sum(SS, SUM, XRES))
        run(s.wr(WA, acc(1, 1), 1, 1, 0))
        s.out_zn(SS, SUM, ZN, zl, TMP)
        s.bar()
        s.nstamp(440)
        L = k.label("noep")
        k.e(f"s_add_u32 s{sT0}, s2, s{sW}\ns_cmp_lg_u32 s{sT0}, 36\ns_cbranch_scc1 {L}\ns_mov_b32 s{sT0}, {EPOCH}")
        k.cond_begin(); s.flag(sT0); k.cond_end()
        k.e(f"{L}:")
        def rd(role, S):
            for g in range(2):
                for w in range(4): k.e(f"ds_read_b128 {R(RB+32*S+16*g+4*w)}, v{VR+2*(role == S)+g} offset:{2*(1-role)*SL + w*4096}")
        def add(S, g):
            d = SUM + 8 * S + 4 * g; b = RB + 32 * S + 16 * g
            for w in range(4):
                for e in range(4): k.e(f"v_add_f32 v{d+e}, v{d+e}, v{b+4*w+e}")
            return d
        if "r8" in OPT: s.out_fin(1, SUM, RB, VR, VO)
        else: rd(1, 0); rd(1, 1)
        for S in range(2 * ("r8" not in OPT)):
            for g in range(2): add(S, g)
        for S in range(2 * ("r8" not in OPT)):
            s.bar()
            s.nstamp(441 + S)
            rd(0, S)
            for g in range(2):
                d = add(S, g)
                k.e(f"v_cvt_pk_bf16_f32 v{d}, v{d}, v{d+1}\nv_cvt_pk_bf16_f32 v{d+1}, v{d+2}, v{d+3}")
                k.e(f"buffer_store_dwordx2 {R(d,2)}, v{VO}, {S4(SOUT)}, s{sO0+g} offen offset:{1792*S}")
        if s.tson: k.e("s_waitcnt vmcnt(0)")
        if s.tson: s.stamp(9 if par("s9", 0) else 1)
        s.finish()

    def t_wg(s):
        k = s.k; T = 2; s.inG = False; s.dbg = [(12, 3), (13, 7), (14, 9), (15, 0)]
        if "not" in OPT: k.e("s_endpgm")
        if "dbg" in OPT: k.e(f"s_mov_b32 s{sTS+14}, 0\ns_mov_b32 s{sTS+18}, 0")
        TAB, ZL = 64 * 1024, 96 * 1024
        O_TOI, O_TW, O_TE = 0, 8192, 24576
        QR, WR, TE, TO, EV, XP, SP = 16, 48, 80, 112, 144, 176, 208
        sK = sFT
        k.e(f"""s_lshr_b32 s{sT0}, s2, 1
        s_lshl_b32 s{sT0}, s{sT0}, 2
        s_and_b32 s{sSG}, s{sW}, 3
        s_add_u32 s{sT0}, s{sT0}, s{sSG}
        s_lshl_b32 s{sT0}, s{sT0}, 1
        s_and_b32 s{sT1}, s2, 1
        s_add_u32 s{sT0}, s{sT0}, s{sT1}
        s_mul_i32 s{sT0}, s{sT0}, 7200
        s_add_u32 s{sT1}, s{sT0}, 4096
        s_lshl_b32 s{sLW}, s{sW}, 13
        s_cmp_ge_u32 s{sW}, 4
        s_waitcnt lgkmcnt(0)
        s_cselect_b32 s{SC}, s8, s6
        s_cselect_b32 s{SC+1}, s9, s7
        s_mov_b32 s{SC+2}, {2048*450}
        s_mov_b32 s{SC+3}, 0x20000""")
        for h in range(2):
            k.e(f"s_add_u32 m0, s{sLW}, {4096*h}")
            for i in range(4):
                if h == 1 and i == 3: k.e("s_mov_b64 exec, 3")
                k.e(f"buffer_load_dwordx4 v1, {S4(SC)}, s{sT0+h} offen offset:{1024*i} lds", "T")
        k.e("s_mov_b64 exec, -1")
        def ptouch():
            k.e(f"""s_cmp_ge_u32 s2, 16
            s_cselect_b32 s{SWU}, s14, s12
            s_cselect_b32 s{SWU+1}, s15, s13
            s_mov_b32 s{SWU+2}, {448*3584}
            s_mov_b32 s{SWU+3}, 0x20000
            s_lshl3_add_u32 s{sT2}, s2, s{sW}
            s_and_b32 s{sT3}, s{sT2}, 127
            s_mul_i32 s{sT3}, s{sT3}, {4*3584}
            s_lshl_b32 s{sT2}, s{sT2}, 13
            v_lshrrev_b32 v250, 8, v1
            v_mul_u32_u24 v250, 3584, v250
            v_and_b32 v251, 0xf0, v1
            v_min_u32 v251, 0xd0, v251
            v_lshl_add_u32 v250, v251, 3, v250
            v_add_u32 v250, s{sT3}, v250
            v_lshl_add_u32 v251, v1, 3, s{sT2}""")
            k.srd(SWD, 16, 1792 * 896)
            if par("pt", 0) & 4: k.e(f"buffer_load_dword v254, v250, {S4(SWU)}, 0 offen")
            if par("pt", 0) & 1: k.e(f"buffer_load_dword v252, v250, {S4(SWU)}, 0 offen offset:1792")
            if par("pt", 0) & 2: k.e(f"buffer_load_dword v253, v251, {S4(SWD)}, 0 offen")
        if par("pt", 0) and par("pe", 0): ptouch()
        s.load_epoch()
        k.srd(SWS, 22, WS_BYTES)
        k.srd(SWG, 22, 225 * 8192, WT)
        s.stamp(1)
        def pair(step, base, off):
            d = QR
            for i in range(4): k.e(f"v_fmamk_f32 v{d+8+i}, v{step}, {fh(i)}, v{base}\nv_sin_f32 v{d+12+i}, v{d+8+i}\nv_cos_f32 v{d+8+i}, v{d+8+i}")
            for i in range(4): k.e(f"v_cvt_pk_bf16_f32 v{d+i}, v{d+8+i}, v{d+12+i}\nv_cvt_pk_bf16_f32 v{d+4+i}, -v{d+12+i}, v{d+8+i}")
            k.e(f"ds_write_b128 v{T+5}, {R(d)} offset:{off}\nds_write_b128 v{T+5}, {R(d+4)} offset:{off+1024}")
        k.e(f"""v_bfe_u32 v{T}, v1, 4, 5
        v_cvt_f32_u32 v{T}, v{T}
        v_lshrrev_b32 v{T+1}, 9, v1
        v_lshlrev_b32 v{T+1}, 2, v{T+1}
        s_lshl_b32 s{sT0}, s{sSG}, 3
        v_add_u32 v{T+1}, s{sT0}, v{T+1}
        v_cvt_f32_u32 v{T+1}, v{T+1}
        s_lshr_b32 s{sT0}, s{sW}, 2
        v_cvt_f32_u32 v{T+2}, s{sT0}
        v_mul_f32 v{T+3}, {fh(1/32)}, v{T}
        v_fma_f32 v{T+4}, 0.5, v{T+2}, v{T+1}
        v_mul_f32 v{T+4}, v{T+4}, v{T+3}
        s_lshl_b32 s{sT0}, s{sW}, 11
        s_add_u32 s{sT0}, s{sT0}, {TAB}
        v_add_u32 v{T+5}, s{sT0}, v1""")
        pair(T + 3, T + 4, O_TE)
        NINV = 2.0 / (2048 * 448)
        k.e(f"""v_fma_f32 v{T+6}, 0.5, v{T+2}, v{T}
        v_mul_f32 v{T+6}, {fh(1/1024)}, v{T+6}
        v_mul_f32 v{T+7}, v{T+6}, v{T+1}""")
        d = WR
        for i in range(4): k.e(f"v_fmamk_f32 v{d+i}, v{T+6}, {fh(i)}, v{T+7}\nv_sin_f32 v{d+4+i}, v{d+i}\nv_cos_f32 v{d+i}, v{d+i}")
        for i in range(8): k.e(f"v_mul_f32 v{d+i}, {fh(NINV)}, v{d+i}")
        k.e(f"ds_write_b128 v{T+5}, {R(d)} offset:{O_TW}\nds_write_b128 v{T+5}, {R(d+4)} offset:{O_TW+1024}")
        k.e(f"s_cmp_ge_u32 s{sW}, 4\ns_cbranch_scc1 T_A")
        k.cond_begin()
        k.e(f"v_add_f32 v{T+3}, {fh(1/64)}, v{T+3}\nv_mul_f32 v{T+4}, v{T+1}, v{T+3}")
        pair(T + 3, T + 4, O_TOI)
        k.cond_end()
        k.e("T_A:")
        k.e(f"""s_lshl_b32 s{sLD}, s2, 16
        s_add_u32 s{sLD}, s{sLD}, s{sLW}
        s_add_u32 s{sU1}, s{sLD}, 4096""")
        k.e(f"""v_bfe_u32 v{T+3}, v1, 4, 4
        v_mul_u32_u24 v{T+4}, 450, v{T+3}
        v_lshrrev_b32 v{T+5}, 4, v0
        v_lshl_add_u32 v{T+4}, v{T+5}, 1, v{T+4}
        v_lshlrev_b32 v{T+5}, 13, v{T+5}
        v_lshl_add_u32 v{T+5}, v{T+3}, 4, v{T+5}
        s_lshl_b32 s{sT0}, s2, 8
        s_waitcnt lgkmcnt(0)""")
        s.get_tag()
        if par("pt", 0) and not par("pe", 0): ptouch()
        TK = "sent" in OPT and par("kp", 3) == 10
        KE = par("ke", 6)
        def tclr(a, b):
            for j in range(a, b):
                if j % 4 == 0 and j: k.e(f"s_add_u32 s{sDT}, s{sDT}, 4096")
                k.e(f"buffer_store_dwordx4 {R(248)}, v1, {S4(SWS)}, s{sDT} offen offset:{1024*(j&3)} {STF}", "K")
        if TK:
            k.e(f"s_lshr_b32 s{sT1}, s{sW}, 2\ns_lshl1_add_u32 s{sDT}, s2, s{sT1}\ns_lshl_b32 s{sDT}, s{sDT}, 3\ns_add_u32 s{sDT}, s{sDT}, s{sSG}\ns_mul_i32 s{sDT}, s{sDT}, {14*1024}\ns_add_u32 s{sDT}, s{sDT}, {HO + 56*1024}")
            for i in range(4): k.e(f"v_mov_b32 v{248+i}, -1")
            tclr(0, KE)
        k.wait(vm="T")
        k.e("s_barrier")
        s.stamp(2)
        GR = 16
        def rd(it):
            for i in range(4):
                for m in range(2): k.e(f"ds_read_u16 v{GR+8*it+4*m+i}, v{T+4} offset:{(4*m+i)*8192 + 64*it}")
        rd(0)
        for it in range(8):
            if it < 7: rd(it + 1)
            r = GR + 8 * it
            for i in range(4): k.e(f"v_lshl_or_b32 v{r+i}, v{r+4+i}, 16, v{r+i}")
            k.e(f"s_add_u32 s{sT1}, s{sT0}, {it*32*8192}\nbuffer_store_dwordx4 {R(r)}, v{T+5}, {S4(SWG)}, s{sT1} offen {STF}", "WT")
        s.stamp(3)
        k.e("s_barrier")
        k.e(f"v_add_u32 v{T+9}, {TAB}, v1")
        for i in range(8): k.e(f"ds_read_b128 {R(TE+4*i)}, v{T+9} offset:{O_TE+1024*i}\nds_read_b128 {R(TO+4*i)}, v{T+9} offset:{O_TE+8192+1024*i}")
        k.e(f"""s_lshl_b32 s{sA}, s{sW}, 5
        s_add_u32 s{sA}, s{sA}, s2
        s_lshl_b32 s{sA}, s{sA}, 7
        s_add_u32 s{sA}, s{sA}, {FW}
        s_cmp_lt_u32 s2, 29
        s_cbranch_scc1 T_M""")
        st = k.snap()
        k.wait(vm="WT"); s.flag(sA)
        if TK: tclr(KE, 14); k.wait(vm="K"); k.e(f"s_add_u32 s{sA}, s{sA}, {32*1024}"); s.flag(sA)
        k.e("s_branch T_FIN")
        k.restore(st)
        k.e("T_M:")
        k.e(f"""s_lshl_b32 s{sK}, s2, 3
        s_add_u32 s{sK}, s{sK}, s{sW}""")
        ZW, ZR = T, T + 4
        k.e(f"""v_bfe_u32 v{T+8}, v1, 6, 3
        v_lshlrev_b32 v{ZW}, 10, v{T+8}
        v_bfe_u32 v{T+8}, v1, 4, 2
        v_lshl_add_u32 v{ZW}, v{T+8}, 7, v{ZW}
        v_lshrrev_b32 v{T+8}, 5, v1
        v_and_b32 v{T+8}, 16, v{T+8}
        v_and_b32 v{T+10}, 0x70, v1
        v_xor_b32 v{T+8}, v{T+8}, v{T+10}
        s_add_u32 s{sT0}, s{sLW}, {ZL}
        v_add3_u32 v{ZW}, v{ZW}, v{T+8}, s{sT0}
        v_xor_b32 v{ZW+1}, 32, v{ZW}
        v_xor_b32 v{ZW+2}, 64, v{ZW}
        v_xor_b32 v{ZW+3}, 96, v{ZW}
        v_bfe_u32 v{ZR}, v1, 4, 5
        v_lshlrev_b32 v{ZR}, 2, v{ZR}
        v_lshrrev_b32 v{T+8}, 9, v1
        v_lshl_add_u32 v{ZR}, v{T+8}, 15, v{ZR}
        s_and_b32 s{sT0}, s{sW}, 1
        s_lshl_b32 s{sT0}, s{sT0}, 6
        v_xor_b32 v{ZR}, s{sT0}, v{ZR}
        s_lshl_b32 s{sT0}, s{sW}, 10
        s_add_u32 s{sT0}, s{sT0}, {ZL}
        v_add_u32 v{ZR}, s{sT0}, v{ZR}
        v_xor_b32 v{ZR+1}, {128+16}, v{ZR}
        v_xor_b32 v{ZR+2}, {256+32}, v{ZR}
        v_xor_b32 v{ZR+3}, {384+48}, v{ZR}
        """)
        PF, PD_, PW, QA, QM, QW = T + 8, T + 10, T + 11, 15, 0, 240
        sWD = sHF
        k.e(f"""s_lshr_b32 s{sT0}, s{sK}, 2
        s_and_b32 s{sT1}, s{sT0}, 7
        s_lshl_b32 s{sT1}, s{sT1}, 12
        s_add_u32 s{sU0}, s{sT1}, {FW}
        s_lshr_b32 s{sT0}, s2, 1
        s_cmp_eq_u32 s2, 28
        s_cselect_b32 s{sT0}, 0, s{sT0}
        s_lshl_b32 s{sT0}, s{sT0}, 13
        s_lshl_b32 s{sT1}, s{sW}, 10
        s_add_u32 s{sT0}, s{sT0}, s{sT1}
        s_add_u32 s{sT0}, s{sT0}, {FQ}
        v_bfe_u32 v{PF}, v1, 4, 3
        v_lshlrev_b32 v{PF}, 7, v{PF}""")
        rl = f"buffer_load_dword v{PD_}, v{PF}, {S4(SWS)}, s{sT0} offen offset:8 {SC1}"
        k.e(f"""v_bfe_u32 v{PW}, v1, 4, 5
        v_lshlrev_b32 v{PW}, 7, v{PW}
        v_bfe_u32 v{QM}, v1, 7, 1
        v_bfe_u32 v{QA}, v1, 8, 1
        v_lshl_add_u32 v{QM}, v{QM}, 1, v{QA}
        v_bfe_u32 v{QA}, v1, 4, 1
        v_lshl_add_u32 v{QM}, v{QM}, 1, v{QA}
        v_xor_b32 v{QA}, s{sW}, v{QM}
        v_lshlrev_b32 v{QA}, 5, v{QA}
        v_lshl_add_u32 v{QA}, v{QM}, 8, v{QA}
        v_bfe_u32 v{QM}, v1, 5, 2
        v_lshl_add_u32 v{QA}, v{QM}, 3, v{QA}
        v_lshrrev_b32 v{QM}, 9, v1
        v_lshl_add_u32 v{QA}, v{QM}, 13, v{QA}
        v_lshrrev_b32 v{QW}, 3, v1
        v_and_b32 v{QW}, 0x60, v{QW}
        v_xor_b32 v{QW}, v{QW}, v1
        v_add_u32 v{QW}, s{sLW}, v{QW}
        v_xor_b32 v{QW+1}, 128, v{QW}
        v_and_b32 v{QM}, 0xe0, v1
        s_cmp_eq_u32 s2, 28
        s_cselect_b32 s{sT1}, 0, 0xe0
        v_cmp_ge_u32 s[{sM}:{sM+1}], s{sT1}, v{QM}
        s_lshl_b32 s{sT2}, s{sK}, 13
        s_add_u32 s{sT3}, s{sT2}, 4096
        s_cmp_gt_u32 s{sK}, 224
        s_cselect_b32 s{sWD}, 1, 0""")
        if TK and par("kb4", 0): tclr(KE, 14)
        k.wait(vm="WT"); s.flag(sA)
        s.stamp(5)
        if TK and not par("kb4", 0): tclr(KE, 14)
        k.e(rl)
        if TK: k.wait(vm="K"); k.e(f"s_add_u32 s{sA}, s{sA}, {32*1024}"); s.flag(sA, reg=14)
        s.check([PD_], rl, sleep=par('tsl', 4))
        s.stamp(6)
        rw = f"buffer_load_dword v{PD_}, v{PW}, {S4(SWS)}, s{sU0} offen offset:8 {SC1}"
        wl = "\n".join(f"buffer_load_dwordx4 {R(WR+4*i)}, v1, {S4(SWG)}, s{sT3 if i >= 4 else sT2} offen offset:{1024*(i&3)} {SC1}" for i in range(8))
        QL = EV
        k.e("s_waitcnt vmcnt(0) lgkmcnt(0)\nT_P:")
        k.e(rw)
        for i in range(8): k.e(f"buffer_load_dwordx4 {R(QL+4*i)}, v1, {S4(SWS)}, s{sU1 if i >= 4 else sLD} offen offset:{(QT + 1024*(i&3))} {SC1}")
        k.e(f"v_cmp_ne_u32 vcc, s{sTAG}, v{PD_}\ns_cmp_lg_u32 s{sWD}, 0\ns_cbranch_scc1 T_P1\ns_cbranch_vccnz T_P1\ns_mov_b32 s{sWD}, 1")
        k.cond_begin(); k.e(wl, "wl"); k.cond_end()
        k.raw("    s_waitcnt vmcnt(8)\n    s_branch T_P2\nT_P1:\n    s_waitcnt vmcnt(0)\nT_P2:")
        k.vm = [e for e in k.vm if e["tag"] == "wl"]
        k.e(f"v_max3_u32 v{QM}, v{QL+3}, v{QL+7}, v{QL+11}\nv_max3_u32 v{QM}, v{QM}, v{QL+15}, v{QL+19}\nv_max3_u32 v{QM}, v{QM}, v{QL+23}, v{QL+27}\nv_max_u32 v{QM}, v{QM}, v{QL+31}")
        k.e(f"""v_cmp_eq_u32 vcc, -1, v{QM}
        s_add_u32 s{sCNT}, s{sCNT}, 1
        s_cmp_ge_u32 s{sCNT}, 0x4000
        s_cbranch_scc1 T_P3
        s_and_b64 vcc, vcc, s[{sM}:{sM+1}]
        s_cbranch_scc1 T_P
        T_P3:""")
        for i in range(8): k.e(f"ds_write_b128 v{QW+(i&1)}, {R(QL+4*i)} offset:{1024*i}")
        k.e(f"s_waitcnt lgkmcnt(0)\ns_barrier\ns_cmp_le_u32 s{sK}, 224\ns_cbranch_scc1 T_I")
        st = k.snap()
        for i in range(4): k.e(f"v_mov_b32 v{QR+i}, 0")
        for p in range(2):
            for q in range(4): k.e(f"ds_write_b128 v{ZW+q}, {R(QR)} offset:{512*p}")
        k.e("s_branch T_X")
        k.restore(st)
        k.e("T_I:")
        s.stamp(7)
        def qg(pp, j):
            for h in range(2): k.e(f"ds_read_b64_tr_b16 {R(QR+16*pp+4*j+2*h,2)}, v{QA} offset:{16384*j + 4096*pp + 2048*h}")
        for j in range(4): qg(0, j)
        for j in range(3): qg(1, j)
        for j in range(4):
            for c in range(2): k.e(mf32(EV + 16 * c, TE + 8 * j + 4 * c, QR + 4 * j, j == 0))
            if j == 0: qg(1, 3)
        k.e(f"s_cmp_lg_u32 s{sWD}, 0\ns_cbranch_scc1 T_W")
        k.cond_begin()
        c0 = (k._cs, k._cv)
        k.e(rw); s.check([PD_], rw); k.e(wl, "wl")
        k._cs, k._cv = c0
        k.cond_end()
        k.e("T_W:")
        for j in range(4):
            for c in range(2): k.e(mf32(XP + 16 * c, TO + 8 * j + 4 * c, QR + 16 + 4 * j, EV + 16 * c if j == 0 else None))
        for i in range(8): k.e(f"ds_read_b128 {R(TO+4*i)}, v{T+9} offset:{O_TOI+1024*i}")
        for i in range(32): k.e(f"v_lshlrev_b32 v{SP+i}, 16, v{WR+i}\nv_and_b32 v{WR+i}, 0xffff0000, v{WR+i}")
        PKT = par("pkt", 0); NG = 8 if PKT else 4
        if PKT: k.e("v_mov_b32 v12, 2.0\nv_mov_b32 v13, 2.0")
        def grp(ls):
            op, rest = ls[0].split(" ", 1)
            if not PKT or "cvt" in op:
                for l in ls: k.e(l)
                return
            for l in ls[::2]:
                r = [x.strip() for x in l.split(" ", 1)[1].split(",")]
                if op == "v_fmac_f32": r.append(r[0])
                ng = [int(x.startswith("-")) for x in r[1:]]
                r = [R(int(x.lstrip("-v")), 2) if "v" in x else R(12, 2) for x in r]
                assert all(int(x[2:].split(":")[0]) % 2 == 0 for x in r)
                m = f" neg_lo:{ng} neg_hi:{ng}".replace(", ", ",") if any(ng) else ""
                k.e(f"v_pk_{'mul' if op == 'v_mul_f32' else 'fma'}_f32 {', '.join(r)}{m}")
        A_, B_ = 240, 248
        for e0 in range(0, 16, NG):
            for L in (lambda e, a, b: f"v_fma_f32 v{EV+e}, 2.0, v{EV+e}, -v{XP+e}",
                      lambda e, a, b: f"v_fma_f32 v{EV+16+e}, 2.0, v{EV+16+e}, -v{XP+16+e}",
                      lambda e, a, b: f"v_mul_f32 v{a}, v{XP+e}, v{SP+e}",
                      lambda e, a, b: f"v_mul_f32 v{b}, v{XP+e}, v{WR+e}",
                      lambda e, a, b: f"v_fma_f32 v{a}, -v{XP+16+e}, v{WR+e}, v{a}",
                      lambda e, a, b: f"v_fmac_f32 v{b}, v{XP+16+e}, v{SP+e}",
                      lambda e, a, b: f"v_fma_f32 v{XP+e}, v{EV+e}, v{SP+16+e}, v{a}",
                      lambda e, a, b: f"v_fma_f32 v{XP+16+e}, v{EV+e}, v{WR+16+e}, v{b}",
                      lambda e, a, b: f"v_fma_f32 v{XP+e}, -v{EV+16+e}, v{WR+16+e}, v{XP+e}",
                      lambda e, a, b: f"v_fmac_f32 v{XP+16+e}, v{EV+16+e}, v{SP+16+e}",
                      lambda e, a, b: f"v_fma_f32 v{a}, 2.0, v{a}, -v{XP+e}",
                      lambda e, a, b: f"v_fma_f32 v{b}, 2.0, v{b}, -v{XP+16+e}",
                      lambda e, a, b: f"v_cvt_pk_bf16_f32 v{QR+e}, v{XP+e}, -v{XP+16+e}",
                      lambda e, a, b: f"v_cvt_pk_bf16_f32 v{QR+16+e}, v{a}, -v{b}"):
                grp([L(e0 + i, A_ + i, B_ + i) for i in range(NG)])
        for p in range(2):
            for i in range(8): k.e(f"ds_read_b128 {R((WR, SP)[p]+4*i)}, v{T+9} offset:{O_TW + 8192*p + 1024*i}")
        for p in range(2):
            for q in range(4):
                for c in range(2): k.e(mf32((EV, XP)[p] + 16 * c, QR + 16 * p + 4 * q, (TE, TO)[p] + 8 * q + 4 * c, q == 0))
        for p in range(2):
            Y = (EV, XP)[p]; TWr = (WR, SP)[p]
            for e0 in range(0, 16, NG):
                for L in (lambda e, a, b, c_, s_: f"v_mul_f32 v{a}, v{Y+e}, v{c_}",
                          lambda e, a, b, c_, s_: f"v_mul_f32 v{b}, v{Y+16+e}, v{c_}",
                          lambda e, a, b, c_, s_: f"v_fmac_f32 v{a}, v{Y+16+e}, v{s_}",
                          lambda e, a, b, c_, s_: f"v_fma_f32 v{b}, -v{Y+e}, v{s_}, v{b}",
                          lambda e, a, b, c_, s_: f"v_cvt_pk_bf16_f32 v{QR+16*p+e}, v{a}, v{b}"):
                    grp([L(e, A_ + e - e0, B_ + e - e0, TWr + 8 * (e >> 2) + (e & 3), TWr + 8 * (e >> 2) + 4 + (e & 3)) for e in range(e0, e0 + NG)])
            for q in range(4):
                for c in range(2): k.e(mf32(Y + 16 * c, TE + 8 * q + 4 * c, QR + 16 * p + 4 * q, q == 0))
        for p in range(2):
            Y = (EV, XP)[p]
            for q in range(4):
                for i in range(4): k.e(f"v_cvt_pk_bf16_f32 v{Y+4*q+i}, v{Y+4*q+i}, v{Y+16+4*q+i}")
                k.e(f"ds_write_b128 v{ZW+q}, {R(Y+4*q)} offset:{512*p}")
        s.stamp(8)
        k.e("T_X:\ns_waitcnt lgkmcnt(0)\ns_barrier")
        for tt in range(8):
            for h in range(2): k.e(f"ds_read2st64_b32 {R(QR+4*tt+2*h,2)}, v{ZR+(tt&3)} offset0:{64*h + 2*(tt>>2)} offset1:{64*h + 32 + 2*(tt>>2)}")
        k.e(f"s_add_u32 s{sLD}, s{sLD}, {ZT}\ns_add_u32 s{sU1}, s{sU1}, {ZT}")
        for tt in range(8): k.e(f"buffer_store_dwordx4 {R(QR+4*tt)}, v1, {S4(SWS)}, s{sU1 if tt >= 4 else sLD} offen offset:{1024*(tt&3)} {STF}")
        s.stamp(9); s.inG and s.nstamp(606)
        k.e("T_FIN:")
        s.ts_store()
        k.e("s_endpgm")

    def build(s):
        k = s.k
        k.raw(f".globl {NAME}_kernel\n.p2align 8\n.type {NAME}_kernel,@function\n{NAME}_kernel:")
        s.stamp(0)
        k.e(f"""s_load_dwordx16 s[4:19], s[0:1], 0
        s_load_dwordx4 s[20:23], s[0:1], 64
        v_readfirstlane_b32 s{sW}, v0
        v_and_b32 v1, 63, v0
        s_cmp_ge_u32 s2, 256
        s_cbranch_scc1 K_END
        v_lshlrev_b32 v1, 4, v1
        s_lshr_b32 s{sW}, s{sW}, 6
        s_and_b32 s{sW}, s{sW}, 7
        s_sub_u32 s{sT0}, s2, 32
        s_cbranch_scc0 G_WG
        s_getpc_b64 s[{sT2}:{sT3}]
        PCREF:
        s_lshr_b32 s{sT0}, s2, 3
        s_lshl_b32 s{sT0}, s{sT0}, 7
        v_lshlrev_b32 v2, 9, v0
        v_add_u32 v2, s{sT0}, v2
        v_cmp_gt_u32 vcc, CODE_END-PCREF-4, v2
        s_cbranch_vccz T_WG
        v_min_u32 v2, CODE_END-PCREF-4, v2
        global_load_dword v255, v2, s[{sT2}:{sT3}]
        s_branch T_WG
        G_WG:""")
        stT = k.snap()
        k.vm = []
        k.e(f"""s_lshr_b32 s{sT0}, s{sT0}, 3
        s_and_b32 s{sRT}, s2, 6
        s_lshr_b32 s{sT2}, s{sRT}, 1
        s_lshl_b32 s{sRT}, s{sRT}, 1
        s_and_b32 s{sT1}, s{sT0}, 3
        s_add_u32 s{sRT}, s{sRT}, s{sT1}
        s_lshr_b32 s{sDT}, s{sT0}, 2
        s_and_b32 s{sT1}, s{sT1}, {1 if par("fb2", 0) else 3}
        s_mul_i32 s{sT1}, s{sT1}, {par("rr", 1)}
        s_mul_i32 s{sT2}, s{sT2}, {par("rx", 1)}
        s_add_u32 s{sT1}, s{sT1}, s{sT2}
        s_mul_i32 s{sT2}, s{sDT}, {par("rd", 1)}
        s_add_u32 s{sT1}, s{sT1}, s{sT2}
        s_mul_i32 s{sT2}, s{sT1}, 37
        s_lshr_b32 s{sT2}, s{sT2}, 8
        s_mul_i32 s{sT2}, s{sT2}, 7
        s_sub_u32 s{sT1}, s{sT1}, s{sT2}
        s_lshl_b32 s{sT1}, s{sT1}, {0 if 'norot' in OPT else 2}
        s_and_b32 s{sT1}, s{sT1}, {0 if 'norot' in OPT else 31}
        s_mov_b32 s{sT2}, 0x06543210
        s_mov_b32 s{sT3}, 0x00654321
        s_lshr_b64 s[{sT2}:{sT3}], s[{sT2}:{sT3}], s{sT1}
        s_mov_b32 s{sPK}, s{sT2}
        s_and_b32 s{sHF}, s2, 1
        s_mul_i32 s{sFT}, s{sHF}, 7
        s_add_u32 s{sFT}, s{sFT}, s{sDT}
        s_and_b32 s{sSG}, s{sW}, 3
        s_lshl_b32 s{sTL}, s{sRT}, 2
        s_add_u32 s{sTL}, s{sTL}, s{sSG}
        s_and_b32 s{sS2}, s{sTL}, 0x38
        s_and_b32 s{sT1}, s{sRT}, 1
        s_add_u32 s{sS2}, s{sS2}, s{sT1}
        s_lshl_b32 s{sT1}, s{sSG}, 1
        s_add_u32 s{sS2}, s{sS2}, s{sT1}""")
        k.e(f"s_lshl_b32 s{sLW}, s{sSG}, 11\ns_cmp_ge_u32 s{sW}, 4\ns_cbranch_scc1 G_R1")
        st = k.snap()
        s.c_role()
        k.restore(st); k.e("G_R1:")
        s.h_role()
        k.restore(stT); k.vm = [dict(e, opt=True) for e in k.vm]; k.e("T_WG:")
        s.t_wg()
        k.e("K_END:\ns_endpgm\nCODE_END:")
        k.lines += s.cold
        ref = open(f"cdna_kernels/{NAME}.s.ref").read().split("\n")
        head = [l for l in ref if l.startswith(";") and "@launch" not in l]
        out = head + [f"; @launch grid=(256,1,1) block=(512,1,1) lds={LDS_BYTES}", '.amdgcn_target "amdgcn-amd-amdhsa--gfx950"', ".text"] + k.lines
        out += ['.section .rodata,"a"', ".p2align 6", f""".amdhsa_kernel {NAME}_kernel
  .amdhsa_next_free_vgpr 256
  .amdhsa_next_free_sgpr 102
  .amdhsa_accum_offset 256
  .amdhsa_group_segment_fixed_size 0
  .amdhsa_kernarg_size 80
  .amdhsa_user_sgpr_count 2
  .amdhsa_user_sgpr_kernarg_segment_ptr 1
  .amdhsa_system_sgpr_workgroup_id_x 1
  .amdhsa_float_denorm_mode_32 3
  .amdhsa_float_denorm_mode_16_64 3
.end_amdhsa_kernel"""]
        return "\n".join(out) + "\n"

if __name__ == "__main__":
    if len(sys.argv) == 1:
        open("t/v6.s", "w").write(G(False).build())
        open("t/v6ts.s", "w").write(G(True).build())
    for o in sys.argv[1:]:
        OPT.clear(); PAR.clear(); OPT.update(("sent", "r8"))
        for x in o.split("+"):
            if "=" in x: a, b = x.split("="); PAR[a] = float(b) if "." in b else int(b)
            else: OPT.add(x)
        open(f"t/y_{o}.s", "w").write(G("nots" not in OPT).build())
```
